```python
import torch

def _softmax(x, axis=-1):
    return torch.softmax(x, dim=axis)
def _gelu(x):
    return torch.nn.functional.gelu(x, approximate="tanh")
def _silu(x):
    return torch.nn.functional.silu(x)
def _sigmoid(x):
    return torch.sigmoid(x)
def _layernorm(x, axis=-1, eps=1e-5):
    m = x.mean(dim=axis, keepdim=True)
    v = x.var(dim=axis, keepdim=True, unbiased=False)
    return (x - m) / torch.sqrt(v + eps)
def _scatter_add(tgt, idx, src, axis=0):
    return tgt.clone().index_add_(axis, idx, src)
def _segment_sum(src, seg, n):
    out = torch.zeros((n,) + src.shape[1:], dtype=src.dtype)
    return out.index_add_(0, seg, src)
def _pad(x, pw):
    flat = tuple(v for pair in reversed(pw) for v in pair)
    return torch.nn.functional.pad(x, flat)

kernel_name = 'gated_mix__mha_block__geglu_ffn__prompt'

def setup_inputs():

    _w = (lambda a: (lambda t: t.to(torch.bfloat16) if t.is_floating_point() else t)(torch.as_tensor(a)))
    def _A_setup():
        B, S, D, H = 1, 2048, 448, 16
        return {
            "x": _w((lambda *s: torch.randn(*s, dtype=torch.bfloat16) * 0.05)(B, S, D)),
            "wqkv": _w((lambda *s: torch.randn(*s, dtype=torch.bfloat16) * 0.8)(D, 3 * D)),
            "wo": _w((lambda *s: torch.randn(*s, dtype=torch.bfloat16) * 0.05)(D, D)),
        }
    _A_in = _A_setup()

    def _B_setup():
        B, S, D, F = 1, 2048, 448, 1792
        return {
            "x": _w((lambda *s: torch.randn(*s, dtype=torch.bfloat16) * 0.05)(B, S, D)),
            "w_gate": _w((lambda *s: torch.randn(*s, dtype=torch.bfloat16) * 0.1)(D, F)),
            "w_up": _w((lambda *s: torch.randn(*s, dtype=torch.bfloat16) * 0.1)(D, F)),
            "w_down": _w((lambda *s: torch.randn(*s, dtype=torch.bfloat16) * 0.1)(F, D)),
        }
    _B_in = _B_setup()

    return {
        "A_x": _A_in["x"],
        "A_wqkv": _A_in["wqkv"],
        "A_wo": _A_in["wo"],
        "B_x": _B_in["x"],
        "B_w_gate": _B_in["w_gate"],
        "B_w_up": _B_in["w_up"],
        "B_w_down": _B_in["w_down"],
        "gate_w": _w((lambda *s: torch.randn(*s, dtype=torch.bfloat16) * 0.05)(448) * 16.0),
    }

def reference(A_x, A_wqkv, A_wo, B_x, B_w_gate, B_w_up, B_w_down, gate_w):
    def _A_ref(x, wqkv, wo):
        B, S, D = x.shape
        H = 16
        Dh = D // H
        qkv = (lambda x, *d: x.permute(*d))((x @ wqkv).reshape(B, S, 3, H, Dh), 2, 0, 3, 1, 4)
        q, k, v = qkv[0], qkv[1], qkv[2]
        scores = torch.einsum("bhqd,bhkd->bhqk", q, k) * (Dh ** -0.5)
        p = _softmax(scores, axis=-1)
        o = torch.einsum("bhqk,bhkd->bhqd", p, v)
        return (lambda x, *d: x.permute(*d))(o, 0, 2, 1, 3).reshape(B, S, D) @ wo

    def _B_ref(x, w_gate, w_up, w_down):
        return (_gelu(x @ w_gate) * (x @ w_up)) @ w_down

    x = A_x
    g = _sigmoid((x * gate_w).sum(-1, keepdims=True))
    a = _A_ref(x, A_wqkv, A_wo)
    b = _B_ref(x, B_w_gate, B_w_up, B_w_down)
    return g * a + (1 - g) * b
```

```python
import re

TRANS = ("v_exp_f32", "v_log_f32", "v_rcp_f32", "v_rsq_f32", "v_sqrt_f32", "v_sin_f32", "v_cos_f32")

def _regs(tok):
    tok = tok.strip()
    neg = tok.startswith("-")
    if neg: tok = tok[1:]
    m = re.fullmatch(r"abs\((.*)\)", tok)
    if m: tok = m.group(1)
    m = re.fullmatch(r"\|(.*)\|", tok)
    if m: tok = m.group(1)
    m = re.fullmatch(r"([vs])(\d+)", tok)
    if m: return [(m.group(1), int(m.group(2)))]
    m = re.fullmatch(r"([vs])\[(\d+):(\d+)\]", tok)
    if m: return [(m.group(1), i) for i in range(int(m.group(2)), int(m.group(3)) + 1)]
    if tok == "vcc": return [("x", "vcc")]
    if tok in ("vcc_lo", "vcc_hi"): return [("x", "vcc")]
    if tok in ("exec", "exec_lo", "exec_hi"): return [("x", "exec")]
    if tok == "m0": return [("x", "m0")]
    return []

class Ins:
    __slots__ = ("text", "op", "kind", "wr", "rd", "srcc", "ab", "data", "ws", "label", "target", "lds")
    def __init__(self, text):
        self.text = text
        t = text.split(";")[0].strip()
        self.label = None; self.target = None
        self.wr = []; self.rd = []; self.srcc = []; self.ab = []; self.data = []; self.ws = 1; self.lds = False
        if t.endswith(":"):
            self.kind = "label"; self.label = t[:-1]; self.op = ""; self.ws = 0; return
        if t == "" or t.startswith("."):
            self.kind = "dir"; self.op = ""; self.ws = 0; return
        parts = t.split(None, 1)
        op = parts[0]; self.op = op
        rest = parts[1] if len(parts) > 1 else ""
        ops = [o.strip() for o in re.split(r",(?![^\[]*\])", rest)] if rest else []
        mods = ""
        if ops:
            last = ops[-1].split(None, 1)
            if len(last) > 1:
                ops[-1] = last[0]; mods = last[1]
        R = [_regs(o) for o in ops]
        if op == "s_nop":
            self.kind = "nop"; self.ws = int(ops[0], 0) + 1; return
        if op.startswith("v_mfma"):
            self.kind = "mfma"; self.wr = R[0]; self.ab = R[1] + R[2]; self.srcc = R[3]; self.rd = self.ab + self.srcc; return
        if op.startswith("v_"):
            self.kind = "trans" if op.replace("_e32", "").replace("_e64", "") in TRANS else "valu"
            if op.startswith("v_permlane32_swap") or op.startswith("v_permlane16_swap") or op.startswith("v_swap"):
                self.kind = "permlane"; self.wr = R[0] + R[1]; self.rd = R[0] + R[1]; return
            if op.startswith("v_cmpx"):
                self.wr = R[0] + [("x", "exec")]; self.rd = sum(R[1:], []); return
            if op.startswith("v_add_co") or op.startswith("v_sub_co") or op.startswith("v_addc_co") or op.startswith("v_subb_co"):
                self.wr = R[0] + R[1]; self.rd = sum(R[2:], []); return
            self.wr = R[0]; self.rd = sum(R[1:], [])
            if op.startswith("v_fmac") or op.startswith("v_pk_fmac") or op.startswith("v_dot2c") or op.startswith("v_writelane"):
                self.rd = self.rd + R[0]
            if op.startswith("v_readfirstlane") or op.startswith("v_readlane"):
                self.kind = "readlane"
            if "dpp" in mods or "row_" in mods or "quad_perm" in mods:
                self.kind = "dpp"
            return
        if op.startswith("ds_"):
            self.kind = "ds"
            if op.startswith("ds_read") or "rtn" in op or op.startswith("ds_bpermute") or op.startswith("ds_permute") or op.startswith("ds_swizzle"):
                self.wr = R[0]; self.rd = sum(R[1:], [])
            else:
                self.rd = sum(R, [])
            return
        if op.startswith("buffer_") or op.startswith("global_"):
            self.kind = "vmem"
            mm = mods.split()
            if "lds" in mm or "_lds_" in op:
                self.lds = True; self.rd = sum(R, []) + [("x", "m0")]
            elif "load" in op:
                self.wr = R[0]; self.rd = sum(R[1:], [])
            else:
                self.rd = sum(R, [])
                if op.endswith("x4") or op.endswith("x3"):
                    self.data = R[0] if op.startswith("buffer_") else R[1]
                if "atomic" in op and "sc0" in mm:
                    self.wr = R[0]
            return
        if op.startswith("s_"):
            self.kind = "salu"
            if op.startswith("s_cbranch") or op == "s_branch":
                self.kind = "branch"; self.target = ops[0]
                if "vcc" in op: self.rd = [("x", "vcc")]
                if "exec" in op: self.rd = [("x", "exec")]
                return
            if op.startswith("s_cmp") or op in ("s_waitcnt", "s_barrier", "s_endpgm", "s_setprio", "s_sleep", "s_bitcmp0_b32", "s_bitcmp1_b32"):
                self.rd = sum(R, []); return
            if op.startswith("s_load") or op.startswith("s_memtime") or op.startswith("s_memrealtime") or op.startswith("s_getreg"):
                self.kind = "smem"; self.wr = R[0]; self.rd = sum(R[1:], []); return
            self.wr = R[0]; self.rd = sum(R[1:], [])
            if "saveexec" in op: self.wr = self.wr + [("x", "exec")]
            return
        raise ValueError("unknown instruction: " + text)

VALUK = ("valu", "trans", "permlane", "readlane", "dpp")

def mfma_passes(op):
    return 8 if "32x32x16" in op else 4

def need_between(p, c):
    n = 0
    pw = set(p.wr); cr = set(c.rd); cw = set(c.wr)
    if p.kind in VALUK:
        vw = {r for r in pw if r[0] == "v"}
        sw = {r for r in pw if r[0] == "s" or r == ("x", "vcc")}
        if c.kind == "mfma" and vw & cr: n = max(n, 2)
        if c.kind == "permlane" and vw & cr: n = max(n, 2)
        if c.kind == "dpp" and vw & cr: n = max(n, 2)
        if c.kind == "readlane" and vw & cr: n = max(n, 1)
        if p.kind == "trans" and c.kind in ("valu", "permlane", "readlane", "dpp", "mfma", "ds", "vmem") and vw & cr: n = max(n, 1)
        if sw:
            if c.kind == "vmem" and sw & cr: n = max(n, 5)
            if c.kind in VALUK and sw & cr: n = max(n, 4 if c.kind == "readlane" else 2)
            if c.kind in ("salu", "smem", "branch") and sw & cr: n = max(n, 1)
            if c.kind == "branch" and ("x", "vcc") in sw and ("x", "vcc") in cr: n = max(n, 5)
        if ("x", "exec") in pw:
            if c.kind == "mfma": n = max(n, 4)
            if c.kind in ("readlane", "permlane"): n = max(n, 4)
            if c.kind == "dpp": n = max(n, 5)
            if c.kind == "branch" and ("x", "exec") in cr: n = max(n, 5)
    if p.kind == "mfma":
        P = mfma_passes(p.op)
        big = 12 if P == 8 else 8
        if c.kind == "mfma":
            if pw & set(c.ab): n = max(n, big)
            cc = set(c.srcc)
            if pw & cc:
                if not (p.wr == c.srcc and mfma_passes(c.op) == P): n = max(n, big - 2)
            elif pw & cw:
                if p.wr != c.wr: n = max(n, big)
                else: n = max(n, big)
        elif c.kind in VALUK or c.kind in ("ds", "vmem"):
            if pw & (cr | cw): n = max(n, big)
        if c.kind in VALUK and set(p.srcc) & cw: n = max(n, 7 if P == 8 else 3)
    if p.kind == "salu" and ("x", "m0") in pw and c.kind == "vmem" and c.lds: n = max(n, 1)
    if p.kind == "vmem" and p.data:
        if set(p.data) & cw:
            n = max(n, 2 if c.kind in VALUK or c.kind == "mfma" else 1)
    return n

WINDOW = 14

class Asm:
    def __init__(self):
        self.ins = []
        self.vm_issued = 0
    def __call__(self, text):
        for line in text.strip("\n").split("\n"):
            line = line.strip()
            if not line or line.startswith(";"): continue
            self.ins.append(Ins(line))
    def label(self, name): self.ins.append(Ins(name + ":"))
    def vm(self, text):
        self(text); self.vm_issued += 1
        return self.vm_issued
    def vm_wait(self, tok, extra=""):
        n = self.vm_issued - tok
        assert n >= 0
        n = min(n, 63)
        self(f"s_waitcnt vmcnt({n}) {extra}".strip())
    def finalize(self):
        out = []
        for c in self.ins:
            if c.kind in ("label", "dir"):
                out.append(c); continue
            dist = 0; need = 0
            for p in reversed(out):
                if p.kind in ("label", "dir"): continue
                if p.kind == "branch" and p.op == "s_branch": break
                if p.op == "s_endpgm": break
                k = need_between(p, c)
                if k > dist: need = max(need, k - dist)
                dist += p.ws
                if dist >= WINDOW: break
            while need > 0:
                k = min(need, 16)
                out.append(Ins(f"s_nop {k-1}")); need -= k
            out.append(c)
        labels = {x.label: i for i, x in enumerate(out) if x.kind == "label"}
        problems = []
        for i, b in enumerate(out):
            if b.kind != "branch": continue
            t = labels[b.target]
            pre = []
            d = 0
            for p in reversed(out[:i + 1]):
                if p.kind in ("label", "dir"): continue
                if p is not b and ((p.kind == "branch" and p.op == "s_branch") or p.op == "s_endpgm"): break
                pre.append(p); d += p.ws
                if d >= WINDOW: break
            d0 = 0
            for c in out[t:]:
                if c.kind in ("label", "dir"): continue
                dist = d0
                for p in pre:
                    k = need_between(p, c)
                    if k > dist: problems.append((b.text, p.text, c.text, k, dist))
                    dist += p.ws
                d0 += c.ws
                if d0 >= WINDOW or (c.kind == "branch" and c.op == "s_branch") or c.op == "s_endpgm": break
        if problems:
            for p in problems: print("HAZARD across branch:", p)
            raise SystemExit("hazards across branch edges")
        return "\n".join(("" if x.kind == "label" else "    ") + x.text for x in out) + "\n"
```

```python
import math, struct, sys, os
from collections import deque
sys.path.insert(0, os.path.dirname(os.path.abspath(__file__)))
from asmlib import Asm

NAME = "gated_mix__mha_block__geglu_ffn__prompt"
OPT = dict(profile=0, stop="", fill=6, force_slow=0)
for a in sys.argv[1:]:
    if "=" in a:
        k, v = a.split("=", 1)
        OPT[k] = int(v) if v.lstrip("-").isdigit() else v
OUT = OPT.get("out", f"cdna_kernels/{NAME}.s")

def f32(x): return "0x%08x" % struct.unpack("<I", struct.pack("<f", x))[0]

WS_QK = 0x000000
QK_RT = 112 * 512
WS_VT = 0x400000
WS_H = 0x600000
H_RT = 112 * 1024
WS_O = 0xD00000
O_RT = 32 * 1024
WS_G = 0xF00000
WS_FQ = 0xF10000
WS_FH = 0xF20000
WS_FO = 0xF40000
WS_PROF = 0xF80000
WS_SIZE = 0x1000000

LOG2E = 1.4426950408889634
QSCALE = LOG2E / math.sqrt(28.0)
GK0 = -2.0 * math.sqrt(2.0 / math.pi) * LOG2E
GK1 = GK0 * 0.044715

S_W = 3
SRD_X, SRD_QKV, SRD_GU, SRD_WD, SRD_WO, SRD_WS, SRD_OUT, SRD_DBG, SRD_GW = 4, 8, 12, 16, 20, 24, 28, 32, 36
S_XCD, S_SLOT, S_RB, S_J, S_RT, S_RTG = 40, 41, 42, 43, 44, 45
S_MA, S_MX, S_MV = 46, 47, 48
T0, T1, T2, T3, T4, T5, T6, T7 = 50, 51, 52, 53, 54, 55, 56, 57
S_CNT = 58
S_TAG = 60
S_HEAD, S_QB, S_RB64, S_CT = 62, 63, 64, 65
S_VMASK = 66
S_KOFF, S_VOFF, S_IT, S_C0 = 68, 69, 70, 71
S_PROF = 72
def srd(n): return f"s[{n}:{n+3}]"
def vr(a, n): return f"v[{a}:{a+n-1}]"

SLOT = 16384
NSLOT = 10
RING_N = 13
RING_B = RING_N * 2048
LDS_AR = 4 * RING_B
LDS_CNT = LDS_AR + 49152
LDS_BYTES = 163840

A = Asm()
_lbl = [0]
def newlabel(p):
    _lbl[0] += 1
    return f"L_{p}_{_lbl[0]}"

def stamp(k):
    if OPT["profile"]:
        A(f"s_memtime s[{S_PROF+2*k}:{S_PROF+2*k+1}]")

def prof_dump(nst, vtmp):
    if not OPT["profile"]: return
    A("s_waitcnt lgkmcnt(0)")
    A(f"s_lshl_b32 s{T0}, s2, 3")
    A(f"s_add_u32 s{T0}, s{T0}, s{S_W}")
    A(f"s_lshl_b32 s{T0}, s{T0}, 6")
    A(f"s_add_u32 s{T0}, s{T0}, {WS_PROF}")
    A(f"v_mov_b32 v{vtmp}, s{T0}")
    A("s_mov_b64 exec, 1")
    for k in range(nst):
        A(f"v_mov_b32 v{vtmp+1}, s{S_PROF+2*k}")
        A(f"buffer_store_dword v{vtmp+1}, v{vtmp}, {srd(SRD_WS)}, 0 offen offset:{4*k}")
    A("s_mov_b64 exec, -1")

def poll(vaddr, vtmp, sleep=2):
    L = newlabel("poll"); D = newlabel("polld")
    A(f"s_mov_b32 s{S_CNT}, 0x4000")
    A.label(L)
    A(f"buffer_load_dwordx2 {vr(vtmp,2)}, v{vaddr}, {srd(SRD_WS)}, 0 offen sc1")
    A("s_waitcnt vmcnt(0)")
    A(f"v_cmp_ne_u64 vcc, s[{S_TAG}:{S_TAG+1}], {vr(vtmp,2)}")
    A(f"s_cbranch_vccz {D}")
    A(f"s_sleep {sleep}")
    A(f"s_sub_u32 s{S_CNT}, s{S_CNT}, 1")
    A(f"s_cmp_lg_u32 s{S_CNT}, 0")
    A(f"s_cbranch_scc1 {L}")
    A.label(D)

def get_tag_spin(vtmp):
    L = newlabel("tag"); D = newlabel("tagd")
    A(f"s_mov_b32 s{S_CNT}, 0x4000")
    A(f"v_mov_b32 v{vtmp+2}, 0")
    A.label(L)
    A(f"buffer_load_dwordx2 {vr(vtmp,2)}, v{vtmp+2}, {srd(SRD_DBG)}, 0 offen sc1")
    A("s_waitcnt vmcnt(0)")
    A(f"v_readfirstlane_b32 s{S_TAG}, v{vtmp}")
    A(f"v_readfirstlane_b32 s{S_TAG+1}, v{vtmp+1}")
    A(f"s_cmp_lg_u32 s{S_TAG+1}, 0")
    A(f"s_cbranch_scc1 {D}")
    A("s_sleep 4")
    A(f"s_sub_u32 s{S_CNT}, s{S_CNT}, 1")
    A(f"s_cmp_lg_u32 s{S_CNT}, 0")
    A(f"s_cbranch_scc1 {L}")
    A.label(D)

def flag_store(soff_reg, vtmp):
    A(f"v_mov_b32 v{vtmp}, s{S_TAG}")
    A(f"v_mov_b32 v{vtmp+1}, s{S_TAG+1}")
    A(f"v_mov_b32 v{vtmp+2}, 0")
    A("s_mov_b64 exec, 1")
    t = A.vm(f"buffer_store_dwordx2 {vr(vtmp,2)}, v{vtmp+2}, {srd(SRD_WS)}, s{soff_reg} offen sc1")
    A("s_mov_b64 exec, -1")
    return t

def prologue():
    A("s_cmp_ge_u32 s2, 256")
    A("s_cbranch_scc1 L_end")
    A("s_load_dwordx16 s[72:87], s[0:1], 0")
    A("s_load_dwordx4 s[88:91], s[0:1], 64")
    A("s_load_dwordx2 s[92:93], s[0:1], 80")
    A("v_lshrrev_b32 v1, 6, v0")
    A(f"v_readfirstlane_b32 s{S_W}, v1")
    A("v_and_b32 v1, 63, v0")
    A(f"s_and_b32 s{S_XCD}, s2, 7")
    A(f"s_lshr_b32 s{S_SLOT}, s2, 3")
    A(f"s_and_b32 s{S_RT}, s{S_W}, 3")
    A(f"s_mul_i32 s{T0}, s{S_SLOT}, 37")
    A(f"s_lshr_b32 s{T0}, s{T0}, 8")
    A(f"s_mul_i32 s{T1}, s{T0}, 7")
    A(f"s_sub_u32 s{T1}, s{S_SLOT}, s{T1}")
    A(f"s_lshr_b32 s{T2}, s{S_XCD}, 1")
    A(f"s_lshl_b32 s{T2}, s{T2}, 2")
    A(f"s_add_u32 s{S_RB}, s{T2}, s{T0}")
    A(f"s_and_b32 s{T3}, s{S_XCD}, 1")
    A(f"s_mul_i32 s{T3}, s{T3}, 7")
    A(f"s_add_u32 s{S_J}, s{T3}, s{T1}")
    A(f"s_lshl_b32 s{S_RB64}, s{S_XCD}, 2")
    A(f"s_add_u32 s{S_RB64}, s{S_RB64}, s{T0}")
    A(f"s_mov_b32 s{S_CT}, s{T1}")
    A(f"s_lshr_b32 s{T4}, s{S_SLOT}, 4")
    A(f"s_lshl_b32 s{S_HEAD}, s{S_XCD}, 1")
    A(f"s_add_u32 s{S_HEAD}, s{S_HEAD}, s{T4}")
    A(f"s_and_b32 s{S_QB}, s{S_SLOT}, 15")
    A(f"s_sub_u32 s{T4}, s{S_SLOT}, 28")
    A(f"s_add_u32 s{T4}, s{T4}, s{T2}")
    A(f"s_cmp_ge_u32 s{S_SLOT}, 28")
    A(f"s_cselect_b32 s{S_RB}, s{T4}, s{S_RB}")
    A(f"s_lshl_b32 s{S_RTG}, s{S_RB}, 2")
    A(f"s_add_u32 s{S_RTG}, s{S_RTG}, s{S_RT}")
    A("s_waitcnt lgkmcnt(0)")
    def mk(n, p, size):
        A(f"s_mov_b32 s{n}, s{p}")
        A(f"s_mov_b32 s{n+1}, s{p+1}")
        A(f"s_mov_b32 s{n+2}, {size}")
        A(f"s_mov_b32 s{n+3}, 0x00020000")
    mk(SRD_X, 72, 2048 * 896)
    mk(SRD_QKV, 74, 448 * 2688)
    mk(SRD_WO, 76, 448 * 896)
    mk(SRD_WD, 84, 1792 * 896)
    mk(SRD_GW, 86, 896)
    mk(SRD_OUT, 88, 2048 * 896)
    mk(SRD_DBG, 90, 256)
    mk(SRD_WS, 92, WS_SIZE)
    A(f"s_cmp_ge_u32 s{S_W}, 4")
    A(f"s_cselect_b32 s{SRD_GU}, s82, s80")
    A(f"s_cselect_b32 s{SRD_GU+1}, s83, s81")
    A(f"s_mov_b32 s{SRD_GU+2}, {448*3584}")
    A(f"s_mov_b32 s{SRD_GU+3}, 0x00020000")
    stamp(0)
    A(f"s_or_b32 s{T0}, s2, s{S_W}")
    A(f"s_cmp_lg_u32 s{T0}, 0")
    A("s_cbranch_scc1 L_notag")
    A(f"s_memrealtime s[{S_TAG}:{S_TAG+1}]")
    A("s_waitcnt lgkmcnt(0)")
    A(f"s_or_b32 s{S_TAG+1}, s{S_TAG+1}, 0x80000000")
    A(f"v_mov_b32 v2, s{S_TAG}")
    A(f"v_mov_b32 v3, s{S_TAG+1}")
    A("v_mov_b32 v4, 0")
    A("s_mov_b64 exec, 1")
    A(f"buffer_store_dwordx2 v[2:3], v4, {srd(SRD_DBG)}, 0 offen sc1")
    A("s_mov_b64 exec, -1")
    A("s_waitcnt vmcnt(0)")
    A.label("L_notag")

V_X0, V_X1, V_Q, V_F, V_XB = 2, 3, 4, 5, 6
V_TB = 7
V_TV = 10
V_VA = 11
V_XA = 15
V_L16 = 16
V_T = 18
XF = 24
ACC1 = 136
RG = 200
ACC2 = 216
TMP8 = 248

def phaseA_setup():
    w = S_W
    A(f"v_lshlrev_b32 v{V_L16}, 4, v1")
    A(f"s_lshl_b32 s{S_MA}, s{w}, 10")
    A(f"s_lshl_b32 s{S_MX}, s{w}, 11")
    A(f"s_lshr_b32 s{T0}, s{w}, 2")
    A(f"s_lshl_b32 s{S_MV}, s{T0}, 13")
    A(f"s_lshl_b32 s{T1}, s{S_RT}, 10")
    A(f"s_add_u32 s{S_MV}, s{S_MV}, s{T1}")
    t0, t1, t2, t3 = V_T, V_T + 1, V_T + 2, V_T + 3
    A(f"s_lshl_b32 s{T1}, s{S_RB}, 7")
    A(f"s_lshl_b32 s{T2}, s{w}, 4")
    A(f"s_add_u32 s{T1}, s{T1}, s{T2}")
    A(f"v_lshrrev_b32 v{t0}, 3, v1")
    A(f"v_add_u32 v{t1}, s{T1}, v{t0}")
    A(f"v_mul_u32_u24 v{t1}, 896, v{t1}")
    A(f"v_lshrrev_b32 v{t2}, 4, v1")
    A(f"v_and_b32 v{t3}, 7, v1")
    A(f"v_xor_b32 v{t3}, v{t3}, v{t2}")
    A(f"v_lshl_add_u32 v{V_X0}, v{t3}, 4, v{t1}")
    A(f"v_xor_b32 v{t3}, 4, v{t3}")
    A(f"v_lshl_add_u32 v{V_X1}, v{t3}, 4, v{t1}")
    A(f"v_add_u32 v{V_X1}, {8*896}, v{V_X1}")
    A(f"s_lshl_b32 s{T1}, s{w}, 2")
    A(f"v_add_u32 v{t1}, s{T1}, v{t2}")
    A(f"v_mul_u32_u24 v{t1}, 2688, v{t1}")
    A(f"v_bfe_u32 v{t3}, v1, 1, 3")
    A(f"v_lshlrev_b32 v{V_Q}, 1, v{t2}")
    A(f"v_xor_b32 v{t3}, v{t3}, v{V_Q}")
    A(f"v_lshl_add_u32 v{t1}, v{t3}, 5, v{t1}")
    A(f"v_and_b32 v{t3}, 1, v1")
    A(f"v_lshl_add_u32 v{t1}, v{t3}, 4, v{t1}")
    A(f"s_mul_i32 s{T1}, s{S_J}, 3")
    A(f"s_lshr_b32 s{T1}, s{T1}, 1")
    A(f"s_lshl_b32 s{T1}, s{T1}, 7")
    A(f"v_add_u32 v{V_Q}, s{T1}, v{t1}")
    A(f"s_lshl_b32 s{T1}, s{S_RT}, 3")
    A(f"v_add_u32 v{t1}, s{T1}, v{t0}")
    A(f"v_mul_u32_u24 v{t1}, 3584, v{t1}")
    A(f"v_lshl_add_u32 v{t1}, v{t3}, 4, v{t1}")
    A(f"v_bfe_u32 v{t3}, v1, 1, 2")
    A(f"v_bfe_u32 v{V_F}, v1, 4, 1")
    A(f"v_lshlrev_b32 v{V_F}, 1, v{V_F}")
    A(f"v_add_u32 v{V_F}, s{T0}, v{V_F}")
    A(f"v_xor_b32 v{t3}, v{t3}, v{V_F}")
    A(f"v_lshl_add_u32 v{t1}, v{t3}, 5, v{t1}")
    A(f"s_lshl_b32 s{T1}, s{S_J}, 8")
    A(f"v_add_u32 v{V_F}, s{T1}, v{t1}")

def issue_item(it):
    slot = (it % NSLOT) * SLOT
    if it < 21:
        c, k = divmod(it, 3)
        if k == 0:
            A(f"s_add_u32 m0, s{S_MX}, {slot}")
            A(f"s_mov_b32 s{T6}, {c*128}")
            A.vm(f"buffer_load_dwordx4 v{V_X0}, {srd(SRD_X)}, s{T6} offen lds")
            A(f"s_add_u32 m0, s{S_MX}, {slot+1024}")
            return A.vm(f"buffer_load_dwordx4 v{V_X1}, {srd(SRD_X)}, s{T6} offen lds")
        b = 2 * c + k - 1
        A(f"s_add_u32 m0, s{S_MA}, {slot}")
        A(f"s_mov_b32 s{T6}, {b*32*2688}")
        A.vm(f"buffer_load_dwordx4 v{V_Q}, {srd(SRD_QKV)}, s{T6} offen lds")
        A(f"s_add_u32 m0, s{S_MA}, {slot+8192}")
        A(f"s_mov_b32 s{T7}, {b*32*3584}")
        return A.vm(f"buffer_load_dwordx4 v{V_F}, {srd(SRD_GU)}, s{T7} offen lds")
    v = it - 21
    A(f"s_add_u32 m0, s{S_MV}, {slot}")
    A(f"s_mov_b32 s{T6}, {v*64*3584+128}")
    A.vm(f"buffer_load_dwordx4 v{V_F}, {srd(SRD_GU)}, s{T6} offen lds")
    A(f"s_add_u32 m0, s{S_MV}, {slot+4096}")
    A(f"s_mov_b32 s{T7}, {(v*64+32)*3584+128}")
    return A.vm(f"buffer_load_dwordx4 v{V_F}, {srd(SRD_GU)}, s{T7} offen lds")

def phaseA_readbases(cg):
    t0, t1, t2, t3 = V_T, V_T + 1, V_T + 2, V_T + 3
    hf, g16, r, c4 = V_T, V_T + 1, V_T + 2, V_T + 3
    u0, u1 = V_T + 4, V_T + 5
    A(f"v_lshrrev_b32 v{hf}, 5, v1")
    A(f"v_bfe_u32 v{g16}, v1, 4, 1")
    A(f"v_bfe_u32 v{r}, v1, 2, 2")
    A(f"v_and_b32 v{c4}, 3, v1")
    A(f"v_and_b32 v{u0}, 31, v1")
    A(f"s_lshl_b32 s{T1}, s{S_RT}, 5")
    A(f"v_add_u32 v{u0}, s{T1}, v{u0}")
    A(f"v_lshlrev_b32 v{u0}, 7, v{u0}")
    A(f"v_bfe_u32 v{u1}, v1, 1, 3")
    A(f"v_xor_b32 v{u1}, v{u1}, v{hf}")
    A(f"v_lshl_add_u32 v{V_XB}, v{u1}, 4, v{u0}")
    A(f"v_lshl_add_u32 v{u0}, v{hf}, 3, v{r}")
    A(f"v_and_b32 v{u1}, 2, v{r}")
    A(f"v_add_u32 v{u1}, v{u1}, v{g16}")
    A(f"v_lshlrev_b32 v{u1}, 5, v{u1}")
    A(f"v_lshl_add_u32 v{u1}, v{c4}, 3, v{u1}")
    A(f"v_lshl_add_u32 v{u1}, v{u0}, 7, v{u1}")
    A(f"v_lshl_add_u32 v{V_TV}, v{g16}, 13, v{u1}")
    if cg == 1:
        A(f"v_lshl_add_u32 v{V_TB}, v{g16}, 12, v{u1}")
        A(f"v_add_u32 v{V_TB}, 8192, v{V_TB}")
    else:
        A(f"v_lshlrev_b32 v{u0}, 8, v{u0}")
        A(f"v_lshl_add_u32 v{u0}, v{c4}, 3, v{u0}")
        A(f"v_lshlrev_b32 v{u1}, 1, v{r}")
        A(f"v_xor_b32 v{u1}, v{u1}, v{g16}")
        A(f"v_lshl_add_u32 v{u0}, v{u1}, 5, v{u0}")
        A(f"s_and_b32 s{T1}, s{S_J}, 1")
        for t in range(3):
            A(f"s_add_u32 s{T2}, s{T1}, {t}")
            A(f"s_lshl_b32 s{T2}, s{T2}, 6")
            A(f"v_xor_b32 v{V_TB+t}, s{T2}, v{u0}")

def gelu_tile(acc, fs_sreg_base, fs_add, tmp):
    F = []
    e = lambda s: F.append(lambda s=s: A(s))
    for i in range(8): e(f"v_mul_f32 v{tmp+i}, v{acc+i}, v{acc+i}")
    for i in range(8): e(f"v_fmamk_f32 v{tmp+i}, v{tmp+i}, {f32(GK1)}, v{V_T+4}")
    for i in range(8): e(f"v_mul_f32 v{tmp+i}, v{tmp+i}, v{acc+i}")
    for i in range(8):
        e(f"v_exp_f32 v{tmp+i}, v{tmp+i}")
        e(f"v_mul_f32 v{acc+i}, v{acc+i}, v{acc+8+i}")
    for i in range(8): e(f"v_add_f32 v{tmp+i}, 1.0, v{tmp+i}")
    for i in range(8): e(f"v_rcp_f32 v{tmp+i}, v{tmp+i}")
    for i in range(8): e(f"v_mul_f32 v{acc+i}, v{acc+i}, v{tmp+i}")
    for i in range(4): e(f"v_cvt_pk_bf16_f32 v{acc+8+i}, v{acc+2*i}, v{acc+2*i+1}")
    def st():
        A(f"s_add_u32 s{T5}, s{fs_sreg_base}, {fs_add*1024}")
        STORES.append(A.vm(f"buffer_store_dwordx4 {vr(acc+8,4)}, v{V_L16}, {srd(SRD_WS)}, s{T5} offen sc1"))
    F.append(st)
    return F

STORES = []
S_HB = 49

def qk_tile(acc, t):
    F = []
    e = lambda s: F.append(lambda s=s: A(s))
    e(f"s_mul_i32 s{T3}, s{S_J}, 3\ns_add_u32 s{T3}, s{T3}, {t}\ns_cmp_lt_u32 s{T3}, 14\ns_cselect_b32 s{T4}, {f32(QSCALE)}, 1.0")
    for i in range(16): e(f"v_mul_f32 v{acc+i}, s{T4}, v{acc+i}")
    for i in range(8): e(f"v_cvt_pk_bf16_f32 v{acc+i}, v{acc+2*i}, v{acc+2*i+1}")
    e(f"s_lshl_b32 s{T3}, s{T3}, 11")
    e(f"s_mul_i32 s{T4}, s{S_RTG}, {QK_RT}")
    e(f"s_add_u32 s{T3}, s{T3}, s{T4}")
    for a, b in ((0, 2), (1, 3), (4, 6), (5, 7)):
        e(f"v_permlane32_swap_b32 v{acc+a}, v{acc+b}")
    F.append(lambda: STORES.append(A.vm(f"buffer_store_dwordx4 {vr(acc,4)}, v{V_L16}, {srd(SRD_WS)}, s{T3} offen sc1")))
    F.append(lambda: STORES.append(A.vm(f"buffer_store_dwordx4 {vr(acc+4,4)}, v{V_L16}, {srd(SRD_WS)}, s{T3} offen offset:1024 sc1")))
    return F

def v_tile(acc, t, tmp):
    F = []
    e = lambda s: F.append(lambda s=s: A(s))
    for i in range(8): e(f"v_cvt_pk_bf16_f32 v{acc+i}, v{acc+2*i}, v{acc+2*i+1}")
    e(f"s_mul_i32 s{T3}, s{S_J}, 96")
    e(f"s_add_u32 s{T3}, s{T3}, {(t-28)*32 & 0xffffffff}")
    e(f"v_and_b32 v{tmp}, 31, v1")
    e(f"v_add_u32 v{tmp}, s{T3}, v{tmp}")
    e(f"v_mul_u32_u24 v{tmp+1}, 2341, v{tmp}")
    e(f"v_lshrrev_b32 v{tmp+1}, 16, v{tmp+1}")
    e(f"v_mul_u32_u24 v{tmp+2}, 28, v{tmp+1}")
    e(f"v_sub_u32 v{tmp}, v{tmp}, v{tmp+2}")
    e(f"v_lshlrev_b32 v{tmp}, 4, v{tmp}")
    e(f"v_lshl_add_u32 v{tmp}, v{tmp+1}, 17, v{tmp}")
    e(f"v_and_b32 v{tmp+1}, 32, v1")
    e(f"v_lshl_add_u32 v{tmp}, v{tmp+1}, 4, v{tmp}")
    e(f"s_lshl_b32 s{T3}, s{S_RTG}, 11")
    e(f"s_add_u32 s{T3}, s{T3}, {WS_VT}")
    F.append(lambda: STORES.append(A.vm(f"buffer_store_dwordx4 {vr(acc,4)}, v{tmp}, {srd(SRD_WS)}, s{T3} offen sc1")))
    F.append(lambda: STORES.append(A.vm(f"buffer_store_dwordx4 {vr(acc+4,4)}, v{tmp}, {srd(SRD_WS)}, s{T3} offen offset:1024 sc1")))
    return F

def phaseA_body(cg, vflags):
    global STORES
    STORES = []
    A.vm_issued = 0
    tok = {}
    for it in range(NSLOT): tok[it] = issue_item(it)
    phaseA_readbases(cg)
    A(f"v_mov_b32 v{V_T+4}, {f32(GK0)}")
    A(f"s_mul_i32 s{S_HB}, s{S_RTG}, {H_RT}")
    A(f"s_lshl_b32 s{T1}, s{S_J}, 13")
    A(f"s_add_u32 s{S_HB}, s{S_HB}, s{T1}")
    A(f"s_add_u32 s{S_HB}, s{S_HB}, {WS_H}")
    n1 = 3 if cg == 0 else 4
    next_item = NSLOT
    steps = []
    for b in range(14):
        for ks in range(2): steps.append((("W", b), ks == 0, 1, ks, 2 * b + ks))
    for v in range(7):
        for ks in range(4): steps.append((("V", v), ks == 0, 2, ks, 4 * v + ks))
    def items_of(key):
        if key[0] == "W":
            b = key[1]
            return [3 * (b // 2), 3 * (b // 2) + 1] if b % 2 == 0 else [3 * (b // 2) + 2]
        return [21 + key[1]]
    def fbase(i, p):
        if p == 1: return RG + 16 * (i & 1)
        return RG + 8 * (i & 1)
    fill = deque()
    def drain(n):
        for _ in range(n):
            if not fill: break
            fill.popleft()()
    def mfmas(i):
        key, first, p, ks, gk = steps[i]
        fb = fbase(i, p)
        x = vr(XF + 4 * gk, 4)
        n = n1 if p == 1 else 2
        for t in range(n):
            acc = (ACC1 if p == 1 else ACC2) + 16 * t
            c = "0" if gk == 0 else vr(acc, 16)
            w = vr(fb + 4 * t, 4)
            if p == 1 and cg == 0 and vflags[t]:
                A(f"v_mfma_f32_32x32x16_bf16 {vr(acc,16)}, {x}, {w}, {c}")
            else:
                A(f"v_mfma_f32_32x32x16_bf16 {vr(acc,16)}, {w}, {x}, {c}")
            if p == 2: drain(OPT["fill"])
    prev_items = []
    qflag_done = False
    tagtok = None
    for i, (key, first, p, ks, gk) in enumerate(steps):
        nreads = 0
        if first:
            its = items_of(key)
            A.vm_wait(tok[its[-1]], "lgkmcnt(0)")
            A("s_barrier")
            for _ in prev_items:
                if next_item < 28:
                    tok[next_item] = issue_item(next_item); next_item += 1
            prev_items = its
            if key == ("W", 10):
                A(f"v_mov_b32 v{V_T+2}, 0")
                tagtok = A.vm(f"buffer_load_dwordx2 {vr(V_T,2)}, v{V_T+2}, {srd(SRD_DBG)}, 0 offen sc1")
            if key == ("V", 0):
                A.vm_wait(tagtok)
                A(f"v_readfirstlane_b32 s{S_TAG}, v{V_T}")
                A(f"v_readfirstlane_b32 s{S_TAG+1}, v{V_T+1}")
                ok = newlabel("tagok")
                A(f"s_cmp_lg_u32 s{S_TAG+1}, 0")
                A(f"s_cbranch_scc1 {ok}")
                get_tag_spin(V_T)
                A.label(ok)
                if cg == 0:
                    sk = newlabel("cinit")
                    A(f"s_cmp_lg_u32 s{S_W}, 0")
                    A(f"s_cbranch_scc1 {sk}")
                    A(f"v_mov_b32 v{V_T}, {LDS_CNT}")
                    A(f"v_mov_b32 v{V_T+1}, 0")
                    A(f"ds_write_b32 v{V_T}, v{V_T+1}")
                    A.label(sk)
            if cg == 0 and key == ("V", 4):
                assert not fill, "QKV epilogue must be issued by now"
                A.vm_wait(STORES[-1])
                A(f"s_lshl_b32 s{T3}, s{S_J}, 6")
                A(f"s_add_u32 s{T3}, s{T3}, s{S_RTG}")
                A(f"s_lshl_b32 s{T3}, s{T3}, 3")
                A(f"s_add_u32 s{T3}, s{T3}, {WS_FQ}")
                flag_store(T3, V_T)
            wslot = (its[-1] % NSLOT) * SLOT
            if p == 1:
                for t in range(n1):
                    if cg == 0: A(f"v_add_u32 v{V_VA+t}, {wslot}, v{V_TB+t}")
                    else: A(f"v_xor_b32 v{V_VA+t}, {wslot | (t << 5)}, v{V_TB}")
                if key[1] % 2 == 0:
                    xslot = (its[0] % NSLOT) * SLOT
                    for kk in range(4):
                        A(f"v_xor_b32 v{V_XA}, {xslot | (kk << 5)}, v{V_XB}")
                        A(f"ds_read_b128 {vr(XF + 4*(gk+kk), 4)}, v{V_XA}")
            else:
                for t in range(2):
                    A(f"v_xor_b32 v{V_VA+t}, {wslot | ((2*cg + t) << 5)}, v{V_TV}")
        fb = fbase(i, p)
        n = n1 if p == 1 else 2
        pitch = 256 if (p == 1 and cg == 0) else 128
        for t in range(n):
            for a in range(2):
                A(f"ds_read_b64_tr_b16 {vr(fb + 4*t + 2*a, 2)}, v{V_VA+t} offset:{(16*ks + 4*a) * pitch}")
                nreads += 1
        if i > 0:
            if not first: A(f"s_waitcnt lgkmcnt({nreads})")
            mfmas(i - 1)
            if i == 28:
                stamp(1)
                for t in range(n1):
                    acc = ACC1 + 16 * t
                    if cg == 1: fill.extend(gelu_tile(acc, S_HB, t, TMP8))
                    elif vflags[t]: fill.extend(v_tile(acc, t, TMP8))
                    else: fill.extend(qk_tile(acc, t))
    A("s_waitcnt lgkmcnt(0)")
    A("s_barrier")
    if cg == 1: phaseC_prefetch()
    mfmas(len(steps) - 1)
    stamp(2)
    drain(10 ** 6)
    for t in range(2):
        for f in gelu_tile(ACC2 + 16 * t, S_HB, 4 + 2 * cg + t, TMP8): f()
    A(f"s_lshl_b32 s{T3}, s{S_RTG}, 4")
    A(f"s_add_u32 s{T3}, s{T3}, s{S_J}")
    A(f"s_lshl_b32 s{T3}, s{T3}, 7")
    A(f"s_add_u32 s{T3}, s{T3}, {WS_FH + 8*cg}")
    A("s_waitcnt vmcnt(0)")
    flag_store(T3, V_T)
    stamp(3)

def gate_path():
    A(f"v_lshlrev_b32 v{V_L16}, 4, v1")
    sk = newlabel("cinit")
    A(f"s_cmp_lg_u32 s{S_W}, 0")
    A(f"s_cbranch_scc1 {sk}")
    A(f"v_mov_b32 v{V_T}, {LDS_CNT}")
    A(f"v_mov_b32 v{V_T+1}, 0")
    A(f"ds_write_b32 v{V_T}, v{V_T+1}")
    A("s_waitcnt lgkmcnt(0)")
    A.label(sk)
    A("s_barrier")
    A(f"s_cmp_ge_u32 s{S_W}, 4")
    A("s_cbranch_scc1 L_end")
    A(f"s_and_b32 s{T0}, s{S_XCD}, 1")
    A(f"s_cmp_lg_u32 s{T0}, 0")
    A("s_cbranch_scc1 L_gate_skip")
    A("v_and_b32 v2, 31, v1")
    A(f"s_lshl_b32 s{T0}, s{S_RTG}, 5")
    A(f"v_add_u32 v2, s{T0}, v2")
    A("v_lshrrev_b32 v4, 5, v1")
    A("v_lshlrev_b32 v4, 4, v4")
    A("v_mul_u32_u24 v3, 896, v2")
    A("v_add_u32 v3, v3, v4")
    for hh in range(2):
        for k in range(14):
            A(f"buffer_load_dwordx4 {vr(24+4*k,4)}, v3, {srd(SRD_X)}, 0 offen offset:{(14*hh+k)*32}")
            A(f"buffer_load_dwordx4 {vr(80+4*k,4)}, v4, {srd(SRD_GW)}, 0 offen offset:{(14*hh+k)*32}")
        A("s_waitcnt vmcnt(0)")
        for k in range(14):
            c = "0" if (hh == 0 and k == 0) else vr(136, 16)
            A(f"v_mfma_f32_32x32x16_bf16 {vr(136,16)}, {vr(80+4*k,4)}, {vr(24+4*k,4)}, {c}")
    A(f"v_mul_f32 v5, {f32(-LOG2E)}, v136")
    A("v_exp_f32 v5, v5")
    A("v_add_f32 v5, 1.0, v5")
    A("v_rcp_f32 v5, v5")
    A("v_lshlrev_b32 v2, 2, v2")
    A(f"s_mov_b32 s{T0}, {WS_G}")
    A("s_mov_b32 exec_hi, 0")
    A(f"buffer_store_dword v5, v2, {srd(SRD_WS)}, s{T0} offen sc1")
    A("s_mov_b32 exec_hi, -1")
    get_tag_spin(V_T)
    A(f"s_lshl_b32 s{T3}, s{S_RTG}, 11")
    A(f"s_add_u32 s{T3}, s{T3}, {WS_FH + 14*128}")
    flag_store(T3, V_T)
    A("s_branch L_attn")
    A.label("L_gate_skip")
    get_tag_spin(V_T)
    A("s_branch L_attn")

QF = 24
OA = 56
SB = 120
PB = 152
KB = 160
VB = 192
V_G = 17

def div3(dst, src):
    A(f"s_mul_i32 s{dst}, s{src}, 43")
    A(f"s_lshr_b32 s{dst}, s{dst}, 7")

def attention():
    A.label("L_attn")
    h = S_HEAD
    A(f"s_mul_i32 s{S_C0}, s{h}, 7")
    A(f"s_lshr_b32 s{S_C0}, s{S_C0}, 1")
    A(f"s_lshr_b32 s{T0}, s{S_C0}, 2")
    A(f"s_add_u32 s{T1}, s{S_C0}, 3")
    A(f"s_lshr_b32 s{T1}, s{T1}, 2")
    div3(T6, T0)
    div3(T2, T1)
    A(f"s_lshl_b32 s{T2}, s{T2}, 8")
    A(f"s_or_b32 s{T6}, s{T6}, s{T2}")
    A(f"s_add_u32 s{T0}, s{T0}, 14")
    A(f"s_add_u32 s{T1}, s{T1}, 14")
    div3(T5, T0)
    div3(T2, T1)
    A(f"s_lshl_b32 s{T2}, s{T2}, 8")
    A(f"s_or_b32 s{T5}, s{T5}, s{T2}")
    A(f"s_mul_i32 s{T0}, s{h}, 28")
    A(f"s_add_u32 s{T1}, s{T0}, 27")
    A(f"s_lshr_b32 s{T0}, s{T0}, 5")
    A(f"s_lshr_b32 s{T1}, s{T1}, 5")
    A(f"s_add_u32 s{T0}, s{T0}, 28")
    A(f"s_add_u32 s{T1}, s{T1}, 28")
    div3(T2, T0)
    A(f"s_lshl_b32 s{T2}, s{T2}, 16")
    A(f"s_or_b32 s{T5}, s{T5}, s{T2}")
    div3(T2, T1)
    A(f"s_lshl_b32 s{T2}, s{T2}, 24")
    A(f"s_or_b32 s{T5}, s{T5}, s{T2}")
    A("v_lshrrev_b32 v2, 4, v1")
    A("v_lshlrev_b32 v2, 3, v2")
    A(f"v_lshrrev_b32 v2, v2, s{T5}")
    A("v_and_b32 v2, 0xff, v2")
    A("v_lshlrev_b32 v2, 6, v2")
    A("v_and_b32 v3, 15, v1")
    A(f"s_lshl_b32 s{T0}, s{S_W}, 4")
    A(f"v_add3_u32 v2, v2, v3, s{T0}")
    A("v_lshlrev_b32 v2, 3, v2")
    A(f"v_add_u32 v2, {WS_FQ}, v2")
    A("v_bfe_u32 v3, v1, 2, 1")
    A("v_lshlrev_b32 v3, 3, v3")
    A(f"v_lshrrev_b32 v3, v3, s{T6}")
    A("v_and_b32 v3, 0xff, v3")
    A("v_lshlrev_b32 v3, 6, v3")
    A("v_and_b32 v4, 3, v1")
    A(f"s_lshl_b32 s{T0}, s{S_QB}, 2")
    A(f"v_add3_u32 v3, v3, v4, s{T0}")
    A("v_lshlrev_b32 v3, 3, v3")
    A(f"v_add_u32 v3, {WS_FQ}, v3")
    A(f"s_add_u32 s{S_RTG}, s{T0}, s{S_W}")
    A(f"s_lshl_b32 s{T1}, s{S_RTG}, 11")
    A(f"s_add_u32 s{T1}, s{T1}, {WS_FH + 14*128}")
    A(f"v_mov_b32 v4, s{T1}")
    A("v_and_b32 v5, 8, v1")
    A("v_cmp_ne_u32 vcc, 0, v5")
    A("v_cndmask_b32 v3, v3, v4, vcc")
    A("v_and_b32 v5, 31, v1")
    A("v_cmp_eq_u32 vcc, 28, v5")
    A("v_mov_b32 v6, 0x3f803f80")
    A("v_cndmask_b32 v6, 0, v6, vcc")
    for i in range(32): A(f"v_mov_b32 v{VB+i}, v6")
    A(f"s_mov_b32 s{S_VMASK}, 0x0fffffff")
    A(f"s_mov_b32 s{S_VMASK+1}, 0x0fffffff")
    poll(2, V_T)
    poll(3, V_T)
    stamp(4)
    A(f"s_mul_i32 s{T0}, s{S_QB}, {4*QK_RT}")
    A(f"s_lshl_b32 s{T1}, s{S_C0}, 9")
    A(f"s_add_u32 s{T0}, s{T0}, s{T1}")
    for qt in range(4):
        A(f"s_add_u32 s{T2}, s{T0}, {qt*QK_RT}")
        for ks in range(2):
            A(f"buffer_load_dwordx4 {vr(QF+8*qt+4*ks,4)}, v{V_L16}, {srd(SRD_WS)}, s{T2} offen offset:{1024*ks} sc1")
    A(f"s_lshl_b32 s{T2}, s{S_RTG}, 7")
    A(f"s_add_u32 s{T2}, s{T2}, {WS_G}")
    A("v_lshlrev_b32 v5, 2, v5")
    A(f"buffer_load_dword v{V_G}, v5, {srd(SRD_WS)}, s{T2} offen sc1")
    A(f"s_mul_i32 s{S_KOFF}, s{S_W}, {16*QK_RT}")
    A(f"s_add_u32 s{S_KOFF}, s{S_KOFF}, s{T1}")
    A(f"s_add_u32 s{S_KOFF}, s{S_KOFF}, {56*512}")
    A(f"s_lshl_b32 s{S_VOFF}, s{h}, 17")
    A(f"s_lshl_b32 s{T2}, s{S_W}, 15")
    A(f"s_add_u32 s{S_VOFF}, s{S_VOFF}, s{T2}")
    A(f"s_add_u32 s{S_VOFF}, s{S_VOFF}, {WS_VT}")
    def loadK(buf):
        for ks in range(2):
            A(f"buffer_load_dwordx4 {vr(KB+8*buf+4*ks,4)}, v{V_L16}, {srd(SRD_WS)}, s{S_KOFF} offen offset:{1024*ks} sc1")
        A(f"s_add_u32 s{S_KOFF}, s{S_KOFF}, {QK_RT}")
    def loadV(buf):
        A(f"s_mov_b64 exec, s[{S_VMASK}:{S_VMASK+1}]")
        for ks in range(2):
            A(f"buffer_load_dwordx4 {vr(VB+8*buf+4*ks,4)}, v{V_L16}, {srd(SRD_WS)}, s{S_VOFF} offen offset:{1024*ks} sc1")
        A("s_mov_b64 exec, -1")
        A(f"s_add_u32 s{S_VOFF}, s{S_VOFF}, 2048")
    loadK(0); loadV(0); loadK(1); loadV(1); loadK(2); loadV(2); loadK(3)
    for i in range(64): A(f"v_mov_b32 v{OA+i}, 0")
    for i in range(4): A(f"v_mov_b32 v{PB+4+i}, 0")
    A("s_waitcnt vmcnt(12)")
    ev = newlabel("qeven"); dn = newlabel("qdone")
    A(f"s_and_b32 s{T0}, s{h}, 1")
    A(f"s_cmp_eq_u32 s{T0}, 0")
    A(f"s_cbranch_scc1 {ev}")
    A("s_mov_b32 exec_hi, 0")
    for qt in range(4):
        A(f"v_mov_b32 v{QF+8*qt}, 0"); A(f"v_mov_b32 v{QF+8*qt+1}, 0")
    A(f"s_branch {dn}")
    A.label(ev)
    A("s_mov_b32 exec_lo, 0")
    for qt in range(4):
        A(f"v_mov_b32 v{QF+8*qt+6}, 0"); A(f"v_mov_b32 v{QF+8*qt+7}, 0")
    A.label(dn)
    A("s_mov_b64 exec, -1")
    A("s_nop 1")
    def qk(buf, qt, sb, ks):
        c = "0" if ks == 0 else vr(SB + 16 * sb, 16)
        A(f"v_mfma_f32_32x32x16_bf16 {vr(SB+16*sb,16)}, {vr(KB+8*buf+4*ks,4)}, {vr(QF+8*qt+4*ks,4)}, {c}")
    def pv(buf, qt, ks):
        A(f"v_mfma_f32_32x32x16_bf16 {vr(OA+16*qt,16)}, {vr(VB+8*buf+4*ks,4)}, {vr(PB+4*ks,4)}, {vr(OA+16*qt,16)}")
    qk(0, 0, 0, 0); qk(0, 0, 0, 1)
    A(f"s_mov_b32 s{S_IT}, 0")
    A("s_nop 7")
    A("s_nop 3")
    A.label("L_attn_loop")
    for tt in range(4):
        for qt in range(4):
            u = 4 * tt + qt
            s = SB + 16 * (u & 1)
            nb, nq = (tt, qt + 1) if qt < 3 else ((tt + 1) & 3, 0)
            pb_, pq = (tt, qt - 1) if qt > 0 else ((tt - 1) & 3, 3)
            E = lambda i: A(f"v_exp_f32 v{s+i}, v{s+i}")
            C = lambda i: A(f"v_cvt_pk_bf16_f32 v{PB+i}, v{s+2*i}, v{s+2*i+1}")
            if qt == 3:
                A("s_waitcnt vmcnt(10)")
            qk(nb, nq, (u + 1) & 1, 0)
            if qt == 3:
                if tt == 0:
                    A(f"s_cmp_eq_u32 s{S_IT}, 3")
                    A(f"s_cselect_b32 s{S_KOFF}, {WS_SIZE}, s{S_KOFF}")
                    A(f"s_cselect_b32 s{S_VOFF}, {WS_SIZE}, s{S_VOFF}")
                loadK(tt)
            for i in range(0, 4): E(i)
            qk(nb, nq, (u + 1) & 1, 1)
            for i in range(4, 8): E(i)
            C(0); C(1)
            pv(pb_, pq, 1)
            if qt == 0: loadV((tt - 1) & 3)
            E(8); C(2); E(9); C(3); E(10); E(11)
            if qt == 0: A("s_waitcnt vmcnt(12)")
            pv(tt, qt, 0)
            E(12); E(13); C(4); E(14); C(5); E(15); C(6)
            A("s_nop 0")
            C(7)
    A(f"s_add_u32 s{S_IT}, s{S_IT}, 1")
    A(f"s_cmp_lt_u32 s{S_IT}, 4")
    A("s_cbranch_scc1 L_attn_loop")
    pv(3, 3, 1)
    stamp(5)
    A("s_waitcnt vmcnt(0)")
    for d in range(4):
        sk = newlabel("ow")
        A(f"s_cmp_eq_u32 s{S_W}, {d}")
        A(f"s_cbranch_scc1 {sk}")
        A(f"s_sub_u32 s{T0}, s{S_W}, {d+1}")
        A(f"s_and_b32 s{T0}, s{T0}, 3")
        A(f"s_lshl_b32 s{T0}, s{T0}, 12")
        A(f"s_add_u32 s{T0}, s{T0}, {LDS_AR + d*12288}")
        A(f"v_add_u32 v2, s{T0}, v{V_L16}")
        if d == 3: A("s_nop 7")
        for q in range(4):
            A(f"ds_write_b128 v2, {vr(OA+16*d+4*q,4)} offset:{1024*q}")
        A.label(sk)
    A("s_nop 7")
    A("s_nop 3")
    for d in range(4):
        sk = newlabel("om")
        A(f"s_cmp_lg_u32 s{S_W}, {d}")
        A(f"s_cbranch_scc1 {sk}")
        for i in range(16): A(f"v_mov_b32 v{SB+i}, v{OA+16*d+i}")
        A.label(sk)
    A(f"v_mov_b32 v3, {LDS_CNT}")
    A("v_mov_b32 v4, 1")
    A("s_waitcnt lgkmcnt(0)")
    A("s_mov_b64 exec, 1")
    A("ds_add_u32 v3, v4")
    A("s_mov_b64 exec, -1")
    L = newlabel("cnt"); D = newlabel("cntd")
    A(f"s_mov_b32 s{S_CNT}, 0x100000")
    A.label(L)
    A("ds_read_b32 v4, v3")
    A("s_waitcnt lgkmcnt(0)")
    A(f"v_readfirstlane_b32 s{T0}, v4")
    A(f"s_cmp_ge_u32 s{T0}, 4")
    A(f"s_cbranch_scc1 {D}")
    A(f"s_sub_u32 s{S_CNT}, s{S_CNT}, 1")
    A(f"s_cmp_lg_u32 s{S_CNT}, 0")
    A(f"s_cbranch_scc1 {L}")
    A.label(D)
    A(f"s_mul_i32 s{T0}, s{S_W}, 12288")
    A(f"s_add_u32 s{T0}, s{T0}, {LDS_AR}")
    A(f"v_add_u32 v2, s{T0}, v{V_L16}")
    for k in range(12):
        A(f"ds_read_b128 {vr(OA+4*k,4)}, v2 offset:{1024*k}")
    for p in range(3):
        A(f"s_waitcnt lgkmcnt({8-4*p})")
        for i in range(16): A(f"v_add_f32 v{SB+i}, v{SB+i}, v{OA+16*p+i}")
    A(f"v_mov_b32 v2, v{SB+12}")
    A(f"v_mov_b32 v3, v{SB+12}")
    A("v_permlane32_swap_b32 v2, v3")
    A(f"s_mov_b32 s{T0}, {f32(2.0**-64)}")
    A(f"s_mov_b32 s{T1}, {f32(2.0**64)}")
    A(f"v_cmp_le_f32 vcc, s{T0}, v3")
    A(f"v_cmp_ge_f32 s[{T2}:{T3}], s{T1}, v3")
    A(f"s_and_b64 s[{T2}:{T3}], s[{T2}:{T3}], vcc")
    A(f"s_cmp_eq_u64 s[{T2}:{T3}], -1")
    if OPT["force_slow"]:
        A("s_branch L_slow")
    else:
        A("s_cbranch_scc0 L_slow")
    A.label("L_ofin")
    A("v_rcp_f32 v3, v3")
    A(f"v_mul_f32 v3, v3, v{V_G}")
    for i in range(16): A(f"v_mul_f32 v{SB+i}, v{SB+i}, v3")
    for i in range(8): A(f"v_cvt_pk_bf16_f32 v{PB+i}, v{SB+2*i}, v{SB+2*i+1}")
    A("s_mov_b32 exec_lo, 0")
    A(f"v_mov_b32 v{PB+6}, 0")
    A(f"v_mov_b32 v{PB+7}, 0")
    A("s_mov_b64 exec, -1")
    A(f"s_lshl_b32 s{T0}, s{S_RTG}, 4")
    A(f"s_add_u32 s{T0}, s{T0}, s{h}")
    A(f"s_lshl_b32 s{T1}, s{T0}, 11")
    A(f"s_add_u32 s{T1}, s{T1}, {WS_O}")
    A(f"buffer_store_dwordx4 {vr(PB,4)}, v{V_L16}, {srd(SRD_WS)}, s{T1} offen sc1")
    A(f"buffer_store_dwordx4 {vr(PB+4,4)}, v{V_L16}, {srd(SRD_WS)}, s{T1} offen offset:1024 sc1")
    A(f"s_lshl_b32 s{T3}, s{T0}, 7")
    A(f"s_add_u32 s{T3}, s{T3}, {WS_FO}")
    A("s_waitcnt vmcnt(0)")
    flag_store(T3, V_T)
    stamp(6)
    prof_dump(7, 2)
    A("s_endpgm")

    A.label("L_slow")
    A("v_lshrrev_b32 v2, 4, v1")
    A("v_lshlrev_b32 v2, 3, v2")
    A(f"v_lshrrev_b32 v2, v2, s{T5}")
    A("v_and_b32 v2, 0xff, v2")
    A("v_lshlrev_b32 v2, 6, v2")
    A("v_and_b32 v3, 15, v1")
    A("v_add_u32 v2, v2, v3")
    A("v_lshlrev_b32 v2, 3, v2")
    A(f"v_add_u32 v2, {WS_FQ}, v2")
    for qq in range(4):
        poll(2, V_T)
        if qq < 3: A("v_add_u32 v2, 128, v2")
    SQ = OA
    for d in range(4):
        sk = newlabel("sq")
        A(f"s_cmp_lg_u32 s{S_W}, {d}")
        A(f"s_cbranch_scc1 {sk}")
        for i in range(8): A(f"v_mov_b32 v{SQ+i}, v{QF+8*d+i}")
        A.label(sk)
    SS = OA + 16
    for i in range(16): A(f"v_mov_b32 v{SB+i}, 0")
    A(f"v_mov_b32 v4, {f32(-3.0e38)}")
    A(f"s_lshl_b32 s{S_KOFF}, s{S_C0}, 9")
    A(f"s_add_u32 s{S_KOFF}, s{S_KOFF}, {56*512}")
    A(f"s_lshl_b32 s{S_VOFF}, s{h}, 17")
    A(f"s_add_u32 s{S_VOFF}, s{S_VOFF}, {WS_VT}")
    A(f"s_mov_b32 s{S_IT}, 0")
    A.label("L_slow_loop")
    loadK(0); loadV(0)
    A("s_waitcnt vmcnt(0)")
    A(f"v_mfma_f32_32x32x16_bf16 {vr(SS,16)}, {vr(KB,4)}, {vr(SQ,4)}, 0")
    A(f"v_mfma_f32_32x32x16_bf16 {vr(SS,16)}, {vr(KB+4,4)}, {vr(SQ+4,4)}, {vr(SS,16)}")
    A(f"v_max3_f32 v5, v{SS}, v{SS+1}, v4")
    for i in range(1, 8): A(f"v_max3_f32 v5, v{SS+2*i}, v{SS+2*i+1}, v5")
    A("v_mov_b32 v6, v5")
    A("v_permlane32_swap_b32 v5, v6")
    A("v_max_f32 v5, v5, v6")
    A("v_sub_f32 v6, v4, v5")
    A("v_exp_f32 v6, v6")
    A("v_mov_b32 v4, v5")
    for i in range(16): A(f"v_mul_f32 v{SB+i}, v{SB+i}, v6")
    for i in range(16): A(f"v_sub_f32 v{SS+i}, v{SS+i}, v5")
    for i in range(16): A(f"v_exp_f32 v{SS+i}, v{SS+i}")
    for i in range(8): A(f"v_cvt_pk_bf16_f32 v{PB+i}, v{SS+2*i}, v{SS+2*i+1}")
    A(f"v_mfma_f32_32x32x16_bf16 {vr(SB,16)}, {vr(VB,4)}, {vr(PB,4)}, {vr(SB,16)}")
    A(f"v_mfma_f32_32x32x16_bf16 {vr(SB,16)}, {vr(VB+4,4)}, {vr(PB+4,4)}, {vr(SB,16)}")
    A("s_nop 7")
    A("s_nop 3")
    A(f"s_add_u32 s{S_IT}, s{S_IT}, 1")
    A(f"s_cmp_lt_u32 s{S_IT}, 64")
    A("s_cbranch_scc1 L_slow_loop")
    A(f"v_mov_b32 v2, v{SB+12}")
    A(f"v_mov_b32 v3, v{SB+12}")
    A("v_permlane32_swap_b32 v2, v3")
    A("s_branch L_ofin")

V_CW = 2
V_CT = 3
S_RING, S_WDB, S_WOB = 46, 47, 48
CTOK = {}

def cW(s):
    slot = (s % RING_N) * 2048
    for e in range(2):
        A(f"s_add_u32 m0, s{S_RING}, {slot + 1024*e}")
        if s < 28:
            A(f"s_add_u32 s{T6}, s{S_WDB}, {(16*s + 8*e) * 896}")
            t = A.vm(f"buffer_load_dwordx4 v{V_CW}, {srd(SRD_WD)}, s{T6} offen lds")
        else:
            hh, ks = divmod(s - 28, 2)
            A(f"s_add_u32 s{T6}, s{S_WOB}, {(28*hh + 16*ks + 8*e) * 896}")
            t = A.vm(f"buffer_load_dwordx4 v{V_CW}, {srd(SRD_WO)}, s{T6} offen lds")
    CTOK[("W", s)] = t

def phaseC_prefetch():
    t0, t1 = V_VA, V_VA + 1
    A(f"s_mul_i32 s{S_RING}, s{S_RT}, {RING_B}")
    A(f"s_mul_i32 s{S_WDB}, s{S_RT}, {448*896}")
    A(f"s_mul_i32 s{S_WOB}, s{S_RT}, {112*896}")
    A(f"v_lshrrev_b32 v{t0}, 3, v1")
    A(f"v_mul_u32_u24 v{t0}, 896, v{t0}")
    A(f"v_bfe_u32 v{t1}, v1, 1, 2")
    A(f"v_bfe_u32 v{V_CW}, v1, 4, 1")
    A(f"v_lshlrev_b32 v{V_CW}, 1, v{V_CW}")
    A(f"v_xor_b32 v{t1}, v{t1}, v{V_CW}")
    A(f"v_lshl_add_u32 v{t0}, v{t1}, 5, v{t0}")
    A(f"v_and_b32 v{t1}, 1, v1")
    A(f"v_lshl_add_u32 v{t0}, v{t1}, 4, v{t0}")
    A(f"s_lshl_b32 s{T1}, s{S_CT}, 7")
    A(f"v_add_u32 v{V_CW}, s{T1}, v{t0}")
    for s in range(RING_N): cW(s)

CACC = 24
CWF = 88
CAF = 104

def phaseC():
    wq = S_RT
    A("v_lshrrev_b32 v5, 5, v1")
    A("v_bfe_u32 v6, v1, 2, 2")
    A("v_lshl_add_u32 v5, v5, 2, v6")
    A("v_lshlrev_b32 v5, 7, v5")
    A("v_and_b32 v6, 2, v6")
    A("v_bfe_u32 v7, v1, 4, 1")
    A("v_xor_b32 v6, v6, v7")
    A("v_lshl_add_u32 v5, v6, 5, v5")
    A("v_and_b32 v6, 3, v1")
    A("v_lshl_add_u32 v5, v6, 3, v5")
    A(f"v_xor_b32 v6, 64, v5")
    A(f"v_add_u32 v{V_CT}, s{S_RING}, v5")
    A(f"v_add_u32 v{V_CT+1}, s{S_RING}, v6")
    A(f"s_mul_i32 s{T0}, s{wq}, 7")
    A(f"s_lshr_b32 s{T0}, s{T0}, 1")
    A("v_bfe_u32 v5, v1, 2, 2")
    A(f"v_add_u32 v5, s{T0}, v5")
    A("v_and_b32 v6, 16, v1")
    A("v_cmp_ne_u32 vcc, 0, v6")
    A("v_lshlrev_b32 v5, 7, v5")
    A("v_bfe_u32 v6, v1, 1, 1")
    A("v_lshl_add_u32 v5, v6, 3, v5")
    A(f"v_mov_b32 v6, {14*128}")
    A("v_cndmask_b32 v5, v5, v6, vcc")
    A("v_and_b32 v6, 1, v1")
    A(f"s_lshl_b32 s{T1}, s{S_RB64}, 1")
    A(f"v_add_u32 v6, s{T1}, v6")
    A("v_lshl_add_u32 v5, v6, 11, v5")
    A(f"v_add_u32 v5, {WS_FH}, v5")
    A("v_bfe_u32 v7, v1, 1, 2")
    A(f"s_lshl_b32 s{T0}, s{wq}, 2")
    A(f"v_add_u32 v7, s{T0}, v7")
    A("v_lshlrev_b32 v7, 7, v7")
    A("v_lshl_add_u32 v7, v6, 11, v7")
    A(f"v_add_u32 v7, {WS_FO}, v7")
    poll(5, V_T)
    stamp(4)
    A.vm_issued = 0
    for k in list(CTOK): CTOK[k] = 0
    S_H0, S_H1, S_O0 = S_KOFF, S_VOFF, S_IT
    A(f"s_mul_i32 s{S_H0}, s{S_RB64}, {2*H_RT}")
    A(f"s_mul_i32 s{T0}, s{wq}, {28*1024}")
    A(f"s_add_u32 s{S_H0}, s{S_H0}, s{T0}")
    A(f"s_add_u32 s{S_H0}, s{S_H0}, {WS_H}")
    A(f"s_add_u32 s{S_H1}, s{S_H0}, {H_RT}")
    A(f"s_lshl_b32 s{S_O0}, s{S_RB64}, 16")
    A(f"s_lshl_b32 s{T0}, s{wq}, 13")
    A(f"s_add_u32 s{S_O0}, s{S_O0}, s{T0}")
    A(f"s_add_u32 s{S_O0}, s{S_O0}, {WS_O}")
    def af(s, rt2): return CAF + 8 * (s % RING_N) + 4 * rt2
    def cA(s):
        for rt2 in range(2):
            if s < 28:
                base = S_H0 if rt2 == 0 else S_H1
                hi, lo = divmod(s, 4)
                if hi:
                    A(f"s_add_u32 s{T7}, s{base}, {hi*4096}")
                    so = T7
                else: so = base
                t = A.vm(f"buffer_load_dwordx4 {vr(af(s,rt2),4)}, v{V_L16}, {srd(SRD_WS)}, s{so} offen offset:{lo*1024} sc1")
            else:
                hi, lo = divmod(s - 28, 4)
                A(f"s_add_u32 s{T7}, s{S_O0}, {rt2*O_RT + hi*4096}")
                t = A.vm(f"buffer_load_dwordx4 {vr(af(s,rt2),4)}, v{V_L16}, {srd(SRD_WS)}, s{T7} offen offset:{lo*1024} sc1")
        CTOK[("A", s)] = t
    A("v_and_b32 v8, 31, v1")
    A("v_lshlrev_b32 v8, 2, v8")
    A(f"s_lshl_b32 s{T0}, s{S_RB64}, 8")
    A(f"s_add_u32 s{T0}, s{T0}, {WS_G}")
    A.vm(f"buffer_load_dword v9, v8, {srd(SRD_WS)}, s{T0} offen sc1")
    A.vm(f"buffer_load_dword v10, v8, {srd(SRD_WS)}, s{T0} offen offset:128 sc1")
    for s in range(RING_N): cA(s)
    def reads(s):
        fb = CWF + 8 * (s & 1)
        for t2 in range(2):
            for a in range(2):
                A(f"ds_read_b64_tr_b16 {vr(fb+4*t2+2*a,2)}, v{V_CT+t2} offset:{(s % RING_N)*2048 + a*1024}")
    def mf(s):
        fb = CWF + 8 * (s & 1)
        for rt2 in range(2):
            for t2 in range(2):
                acc = CACC + 16 * (2 * rt2 + t2)
                c = "0" if s == 0 else vr(acc, 16)
                A(f"v_mfma_f32_32x32x16_bf16 {vr(acc,16)}, {vr(fb+4*t2,4)}, {vr(af(s,rt2),4)}, {c}")
    def run(s0, s1):
        A.vm_wait(CTOK[("W", s0)])
        reads(s0)
        for s in range(s0, s1):
            if s + 1 < s1:
                A.vm_wait(max(CTOK[("W", s + 1)], CTOK[("A", s)]))
                reads(s + 1)
                A("s_waitcnt lgkmcnt(4)")
            else:
                A.vm_wait(CTOK[("A", s)], "lgkmcnt(0)")
            mf(s)
            n = s + RING_N
            if n < 36: cW(n)
            if n < 28: cA(n)
    run(0, 28)
    stamp(5)
    A("v_sub_f32 v9, 1.0, v9")
    A("v_sub_f32 v10, 1.0, v10")
    for rt2 in range(2):
        for i in range(32): A(f"v_mul_f32 v{CACC+32*rt2+i}, v{CACC+32*rt2+i}, v{9+rt2}")
    poll(7, V_T, sleep=1)
    stamp(6)
    A.vm_issued = 0
    for k in list(CTOK): CTOK[k] = 0
    for s in range(28, 36): cA(s)
    run(28, 36)
    A("v_and_b32 v5, 31, v1")
    A("v_lshrrev_b32 v6, 5, v1")
    A("v_and_b32 v7, 7, v1")
    A("v_xor_b32 v6, v6, v7")
    A("v_lshlrev_b32 v5, 8, v5")
    A("v_lshl_add_u32 v5, v6, 4, v5")
    A(f"v_add_u32 v5, s{S_RING}, v5")
    for G2 in range(4):
        A(f"v_xor_b32 v{8+G2}, {G2 << 5}, v5")
    for rt2 in range(2):
        for t2 in range(2):
            for q in range(4):
                A(f"ds_write_b128 v{8+q}, {vr(CACC+16*(2*rt2+t2)+4*q,4)} offset:{rt2*8192 + t2*128}")
    A("s_waitcnt lgkmcnt(0)")
    A("s_barrier")
    A("v_lshrrev_b32 v5, 3, v1")
    A("v_and_b32 v6, 7, v1")
    A("v_lshlrev_b32 v7, 1, v6")
    A("v_xor_b32 v7, v7, v5")
    A(f"s_lshl_b32 s{T0}, s{wq}, 4")
    A(f"v_add_u32 v8, s{T0}, v5")
    A("v_lshlrev_b32 v9, 8, v8")
    A("v_lshl_add_u32 v9, v7, 4, v9")
    A("v_xor_b32 v10, 16, v9")
    A(f"v_add_u32 v11, {2*RING_B}, v9")
    A(f"v_add_u32 v12, {2*RING_B}, v10")
    R0 = CACC
    for p in range(4):
        for e in range(2):
            for z in range(2):
                ar = (9 if p < 2 else 11) + z
                A(f"ds_read_b128 {vr(R0+16*p+8*e+4*z,4)}, v{ar} offset:{(p & 1)*RING_B + e*2048}")
    A(f"s_lshl_b32 s{T0}, s{S_RB64}, 6")
    A(f"v_add_u32 v8, s{T0}, v8")
    A("v_mul_u32_u24 v8, 896, v8")
    A("v_lshl_add_u32 v8, v6, 4, v8")
    A(f"s_lshl_b32 s{T0}, s{S_CT}, 7")
    A("s_waitcnt lgkmcnt(8)")
    for i in range(16): A(f"v_add_f32 v{R0+i}, v{R0+i}, v{R0+16+i}")
    A("s_waitcnt lgkmcnt(0)")
    for i in range(16): A(f"v_add_f32 v{R0+32+i}, v{R0+32+i}, v{R0+48+i}")
    for i in range(16): A(f"v_add_f32 v{R0+i}, v{R0+i}, v{R0+32+i}")
    for i in range(8): A(f"v_cvt_pk_bf16_f32 v{R0+16+i}, v{R0+2*i}, v{R0+2*i+1}")
    A(f"buffer_store_dwordx4 {vr(R0+16,4)}, v8, {srd(SRD_OUT)}, s{T0} offen")
    A(f"s_add_u32 s{T0}, s{T0}, {8*896}")
    A(f"buffer_store_dwordx4 {vr(R0+20,4)}, v8, {srd(SRD_OUT)}, s{T0} offen")
    stamp(7)
    prof_dump(8, 2)
    A("s_endpgm")

def main():
    prologue()
    A(f"s_cmp_ge_u32 s{S_SLOT}, 28")
    A("s_cbranch_scc1 L_gate")
    phaseA_setup()
    A(f"s_cmp_ge_u32 s{S_W}, 4")
    A("s_cbranch_scc1 L_A_g")
    A(f"s_cmp_ge_u32 s{S_J}, 10")
    A("s_cbranch_scc1 L_A_vvv")
    A(f"s_cmp_eq_u32 s{S_J}, 9")
    A("s_cbranch_scc1 L_A_kvv")
    phaseA_body(0, [False, False, False])
    A("s_branch L_attn")
    A.label("L_A_kvv")
    phaseA_body(0, [False, True, True])
    A("s_branch L_attn")
    A.label("L_A_vvv")
    phaseA_body(0, [True, True, True])
    A("s_branch L_attn")
    A.label("L_gate")
    gate_path()
    attention()
    A.label("L_A_g")
    phaseA_body(1, None)
    phaseC()
    A.label("L_end")
    body = A.finalize()
    hdr = open(f"cdna_kernels/{NAME}.s.ref").read().split("; Override launch")[0]
    text = hdr + f"""; @launch grid=(256,1,1) block=(512,1,1) lds={LDS_BYTES}
.amdgcn_target "amdgcn-amd-amdhsa--gfx950"
.text
.globl {NAME}_kernel
.p2align 8
.type {NAME}_kernel,@function
{NAME}_kernel:
{body}    s_endpgm
.section .rodata,"a"
.p2align 6
.amdhsa_kernel {NAME}_kernel
  .amdhsa_next_free_vgpr 256
  .amdhsa_next_free_sgpr 102
  .amdhsa_accum_offset 256
  .amdhsa_group_segment_fixed_size 0
  .amdhsa_kernarg_size 88
  .amdhsa_user_sgpr_count 2
  .amdhsa_user_sgpr_kernarg_segment_ptr 1
  .amdhsa_system_sgpr_workgroup_id_x 1
.end_amdhsa_kernel
"""
    open(OUT, "w").write(text)
    print("wrote", OUT, len(text), "bytes,", len(A.ins), "instructions")

main()
```

```python
import re

TRANS = ("v_exp_f32", "v_log_f32", "v_rcp_f32", "v_rsq_f32", "v_sqrt_f32", "v_sin_f32", "v_cos_f32")

def _regs(tok):
    tok = tok.strip()
    neg = tok.startswith("-")
    if neg: tok = tok[1:]
    m = re.fullmatch(r"abs\((.*)\)", tok)
    if m: tok = m.group(1)
    m = re.fullmatch(r"\|(.*)\|", tok)
    if m: tok = m.group(1)
    m = re.fullmatch(r"([vs])(\d+)", tok)
    if m: return [(m.group(1), int(m.group(2)))]
    m = re.fullmatch(r"([vs])\[(\d+):(\d+)\]", tok)
    if m: return [(m.group(1), i) for i in range(int(m.group(2)), int(m.group(3)) + 1)]
    if tok == "vcc": return [("x", "vcc")]
    if tok in ("vcc_lo", "vcc_hi"): return [("x", "vcc")]
    if tok in ("exec", "exec_lo", "exec_hi"): return [("x", "exec")]
    if tok == "m0": return [("x", "m0")]
    return []

class Ins:
    __slots__ = ("text", "op", "kind", "wr", "rd", "srcc", "ab", "data", "ws", "label", "target", "lds")
    def __init__(self, text):
        self.text = text
        t = text.split(";")[0].strip()
        self.label = None; self.target = None
        self.wr = []; self.rd = []; self.srcc = []; self.ab = []; self.data = []; self.ws = 1; self.lds = False
        if t.endswith(":"):
            self.kind = "label"; self.label = t[:-1]; self.op = ""; self.ws = 0; return
        if t == "" or t.startswith("."):
            self.kind = "dir"; self.op = ""; self.ws = 0; return
        parts = t.split(None, 1)
        op = parts[0]; self.op = op
        rest = parts[1] if len(parts) > 1 else ""
        ops = [o.strip() for o in re.split(r",(?![^\[]*\])", rest)] if rest else []
        mods = ""
        if ops:
            last = ops[-1].split(None, 1)
            if len(last) > 1:
                ops[-1] = last[0]; mods = last[1]
        R = [_regs(o) for o in ops]
        if op == "s_nop":
            self.kind = "nop"; self.ws = int(ops[0], 0) + 1; return
        if op.startswith("v_mfma"):
            self.kind = "mfma"; self.wr = R[0]; self.ab = R[1] + R[2]; self.srcc = R[3]; self.rd = self.ab + self.srcc; return
        if op.startswith("v_"):
            self.kind = "trans" if op.replace("_e32", "").replace("_e64", "") in TRANS else "valu"
            if op.startswith("v_permlane32_swap") or op.startswith("v_permlane16_swap") or op.startswith("v_swap"):
                self.kind = "permlane"; self.wr = R[0] + R[1]; self.rd = R[0] + R[1]; return
            if op.startswith("v_cmpx"):
                self.wr = R[0] + [("x", "exec")]; self.rd = sum(R[1:], []); return
            if op.startswith("v_add_co") or op.startswith("v_sub_co") or op.startswith("v_addc_co") or op.startswith("v_subb_co"):
                self.wr = R[0] + R[1]; self.rd = sum(R[2:], []); return
            self.wr = R[0]; self.rd = sum(R[1:], [])
            if op.startswith("v_fmac") or op.startswith("v_pk_fmac") or op.startswith("v_dot2c") or op.startswith("v_writelane"):
                self.rd = self.rd + R[0]
            if op.startswith("v_readfirstlane") or op.startswith("v_readlane"):
                self.kind = "readlane"
            if "dpp" in mods or "row_" in mods or "quad_perm" in mods:
                self.kind = "dpp"
            return
        if op.startswith("ds_"):
            self.kind = "ds"
            if op.startswith("ds_read") or "rtn" in op or op.startswith("ds_bpermute") or op.startswith("ds_permute") or op.startswith("ds_swizzle"):
                self.wr = R[0]; self.rd = sum(R[1:], [])
            else:
                self.rd = sum(R, [])
            return
        if op.startswith("buffer_") or op.startswith("global_"):
            self.kind = "vmem"
            mm = mods.split()
            if "lds" in mm or "_lds_" in op:
                self.lds = True; self.rd = sum(R, []) + [("x", "m0")]
            elif "load" in op:
                self.wr = R[0]; self.rd = sum(R[1:], [])
            else:
                self.rd = sum(R, [])
                if op.endswith("x4") or op.endswith("x3"):
                    self.data = R[0] if op.startswith("buffer_") else R[1]
                if "atomic" in op and "sc0" in mm:
                    self.wr = R[0]
            return
        if op.startswith("s_"):
            self.kind = "salu"
            if op.startswith("s_cbranch") or op == "s_branch":
                self.kind = "branch"; self.target = ops[0]
                if "vcc" in op: self.rd = [("x", "vcc")]
                if "exec" in op: self.rd = [("x", "exec")]
                return
            if op.startswith("s_cmp") or op in ("s_waitcnt", "s_barrier", "s_endpgm", "s_setprio", "s_sleep", "s_bitcmp0_b32", "s_bitcmp1_b32"):
                self.rd = sum(R, []); return
            if op.startswith("s_load") or op.startswith("s_memtime") or op.startswith("s_memrealtime") or op.startswith("s_getreg"):
                self.kind = "smem"; self.wr = R[0]; self.rd = sum(R[1:], []); return
            self.wr = R[0]; self.rd = sum(R[1:], [])
            if "saveexec" in op: self.wr = self.wr + [("x", "exec")]
            return
        raise ValueError("unknown instruction: " + text)

VALUK = ("valu", "trans", "permlane", "readlane", "dpp")

def mfma_passes(op):
    return 8 if "32x32x16" in op else 4

def need_between(p, c):
    n = 0
    pw = set(p.wr); cr = set(c.rd); cw = set(c.wr)
    if p.kind in VALUK:
        vw = {r for r in pw if r[0] == "v"}
        sw = {r for r in pw if r[0] == "s" or r == ("x", "vcc")}
        if c.kind == "mfma" and vw & cr: n = max(n, 2)
        if c.kind == "permlane" and vw & cr: n = max(n, 2)
        if c.kind == "dpp" and vw & cr: n = max(n, 2)
        if c.kind == "readlane" and vw & cr: n = max(n, 1)
        if p.op.startswith("v_dot") and c.op != p.op and vw & (cr | cw): n = max(n, 3)
        if p.kind == "trans" and c.kind in ("valu", "permlane", "readlane", "dpp", "mfma", "ds", "vmem") and vw & cr: n = max(n, 1)
        if sw:
            if c.kind == "vmem" and sw & cr: n = max(n, 5)
            if c.kind in VALUK and sw & cr: n = max(n, 4 if c.kind == "readlane" else 2)
            if c.kind in ("salu", "smem", "branch") and sw & cr: n = max(n, 1)
            if c.kind == "branch" and ("x", "vcc") in sw and ("x", "vcc") in cr: n = max(n, 5)
        if ("x", "exec") in pw:
            if c.kind == "mfma": n = max(n, 4)
            if c.kind in ("readlane", "permlane"): n = max(n, 4)
            if c.kind == "dpp": n = max(n, 5)
            if c.kind == "branch" and ("x", "exec") in cr: n = max(n, 5)
    if p.kind == "mfma":
        P = mfma_passes(p.op)
        big = 12 if P == 8 else 8
        if c.kind == "mfma":
            if pw & set(c.ab): n = max(n, big)
            cc = set(c.srcc)
            if pw & cc:
                if not (p.wr == c.srcc and mfma_passes(c.op) == P): n = max(n, big - 2)
            elif pw & cw:
                if p.wr != c.wr: n = max(n, big)
                else: n = max(n, big)
        elif c.kind in VALUK or c.kind in ("ds", "vmem"):
            if pw & (cr | cw): n = max(n, big)
        if c.kind in VALUK and set(p.srcc) & cw: n = max(n, 7 if P == 8 else 3)
    if p.kind == "salu" and ("x", "m0") in pw and c.kind == "vmem" and c.lds: n = max(n, 1)
    if p.kind == "vmem" and p.data:
        if set(p.data) & cw:
            n = max(n, 2 if c.kind in VALUK or c.kind == "mfma" else 1)
    return n

WINDOW = 14

class Asm:
    def __init__(self):
        self.ins = []
        self.vm_issued = 0
        self.lg_issued = 0
        self.lg_done = 0
    def lg(self, text):
        self(text); self.lg_issued += 1
        return self.lg_issued
    def lg_wait(self, tok):
        if tok <= self.lg_done: return
        n = min(self.lg_issued - tok, 15)
        self(f"s_waitcnt lgkmcnt({n})")
        self.lg_done = self.lg_issued - n
    def lg_all(self):
        self.lg_done = self.lg_issued
    def __call__(self, text):
        for line in text.strip("\n").split("\n"):
            line = line.strip()
            if not line or line.startswith(";"): continue
            self.ins.append(Ins(line))
    def label(self, name): self.ins.append(Ins(name + ":"))
    def vm(self, text):
        self(text); self.vm_issued += 1
        return self.vm_issued
    def vm_wait(self, tok, extra=""):
        n = self.vm_issued - tok
        assert n >= 0
        n = min(n, 63)
        self(f"s_waitcnt vmcnt({n}) {extra}".strip())
    def finalize(self):
        out = []
        for c in self.ins:
            if c.kind in ("label", "dir"):
                out.append(c); continue
            dist = 0; need = 0
            for p in reversed(out):
                if p.kind in ("label", "dir"): continue
                if p.kind == "branch" and p.op == "s_branch": break
                if p.op == "s_endpgm": break
                k = need_between(p, c)
                if k > dist: need = max(need, k - dist)
                dist += p.ws
                if dist >= WINDOW: break
            while need > 0:
                k = min(need, 16)
                out.append(Ins(f"s_nop {k-1}")); need -= k
            out.append(c)
        labels = {x.label: i for i, x in enumerate(out) if x.kind == "label"}
        problems = []
        for i, b in enumerate(out):
            if b.kind != "branch": continue
            t = labels[b.target]
            pre = []
            d = 0
            for p in reversed(out[:i + 1]):
                if p.kind in ("label", "dir"): continue
                if p is not b and ((p.kind == "branch" and p.op == "s_branch") or p.op == "s_endpgm"): break
                pre.append(p); d += p.ws
                if d >= WINDOW: break
            d0 = 0
            for c in out[t:]:
                if c.kind in ("label", "dir"): continue
                dist = d0
                for p in pre:
                    k = need_between(p, c)
                    if k > dist: problems.append((b.text, p.text, c.text, k, dist))
                    dist += p.ws
                d0 += c.ws
                if d0 >= WINDOW or (c.kind == "branch" and c.op == "s_branch") or c.op == "s_endpgm": break
        if problems:
            for p in problems: print("HAZARD across branch:", p)
            raise SystemExit("hazards across branch edges")
        return "\n".join(("" if x.kind == "label" else "    ") + x.text for x in out) + "\n"
```

```python
import math, struct, sys, os, copy
from collections import deque
sys.path.insert(0, os.path.dirname(os.path.abspath(__file__)))
from asmlib import Asm

NAME = "gated_mix__mha_block__geglu_ffn__prompt"
OPT = dict(profile=0, rt=0, barm=2, fill=6, force_slow=0, exp="", codepf=1, qflag=16, prio=2, gprio=3, cprio=0, cpre=3, gtouch=1, pre1=2, pre2=5, ring=13, vbar="14:21,15:22,16:27", touch=1)
for a in sys.argv[1:]:
    if "=" in a:
        k, v = a.split("=", 1)
        OPT[k] = int(v) if v.lstrip("-").isdigit() else v
OUT = OPT.get("out", f"cdna_kernels/{NAME}.s")

def f32(x): return "0x%08x" % struct.unpack("<I", struct.pack("<f", x))[0]

WS_QK = 0x000000
QK_RT = 112 * 512
WS_VT = 0x400000
WS_H = 0x600000
H_RT = 112 * 1024
WS_O = 0xD00000
O_RT = 32 * 1024
WS_G = 0xF00000
WS_FQ = 0xF10000
WS_FH = 0xF20000
WS_FO = 0xF40000
WS_PROF = 0xF80000
WS_SIZE = 0x1000000

LOG2E = 1.4426950408889634
QSCALE = LOG2E / math.sqrt(28.0)
GK0 = -2.0 * math.sqrt(2.0 / math.pi) * LOG2E
GK1 = GK0 * 0.044715

S_W = 3
SRD_X, SRD_QKV, SRD_GU, SRD_WD, SRD_WO, SRD_WS, SRD_OUT, SRD_DBG, SRD_GW = 4, 8, 12, 16, 20, 24, 28, 32, 36
S_XCD, S_SLOT, S_RB, S_J, S_RT, S_RTG = 40, 41, 42, 43, 44, 45
S_MA, S_MX, S_MV = 46, 47, 48
S_HB = 49
T0, T1, T2, T3, T4, T5, T6, T7 = 50, 51, 52, 53, 54, 55, 56, 57
S_CNT = 58
S_HF = 59
S_TAG = 60
S_HEAD, S_QB, S_RB64, S_CT = 62, 63, 64, 65
S_VMASK = 66
S_KOFF, S_VOFF, S_IT, S_C0 = 68, 69, 70, 71
S_PROF = 72
S_PC = 96
S_KVJ, S_QRT = 98, 99
def srd(n): return f"s[{n}:{n+3}]"
def vr(a, n): return f"v[{a}:{a+n-1}]"

SLOT = 16384
NSLOT = 10
RING_N = OPT["ring"]
RING_B = 13 * 2048
LDS_AR = 4 * RING_B
LDS_CNT = LDS_AR + 49152
LDS_BYTES = 163840

A = Asm()
_lbl = [0]
def newlabel(p):
    _lbl[0] += 1
    return f"L_{p}_{_lbl[0]}"

CLK = "s_memrealtime" if OPT["rt"] else "s_memtime"
def stamp2(k):
    if OPT["profile"] == 2:
        A(f"{CLK} s[{S_PROF+2*k}:{S_PROF+2*k+1}]")

def stamp(k):
    if OPT["profile"] == 2 and k > 0: return
    if OPT["profile"]:
        A(f"{CLK} s[{S_PROF+2*k}:{S_PROF+2*k+1}]")
        if k == 0: A(f"s_memrealtime s[{S_PROF+20}:{S_PROF+21}]")

def prof_dump(vtmp):
    if not OPT["profile"]: return
    A(f"s_memrealtime s[{S_PROF+22}:{S_PROF+23}]")
    A("s_waitcnt lgkmcnt(0)")
    A(f"s_lshl_b32 s{T0}, s2, 3")
    A(f"s_add_u32 s{T0}, s{T0}, s{S_W}")
    A(f"s_lshl_b32 s{T0}, s{T0}, 6")
    A(f"s_add_u32 s{T0}, s{T0}, {WS_PROF}")
    A(f"v_mov_b32 v{vtmp}, s{T0}")
    A("s_mov_b64 exec, 1")
    for k in range(12):
        A(f"v_mov_b32 v{vtmp+1}, s{S_PROF+2*k}")
        A(f"buffer_store_dword v{vtmp+1}, v{vtmp}, {srd(SRD_WS)}, 0 offen offset:{4*k}")
    A(f"v_mov_b32 v{vtmp+1}, s100")
    A(f"buffer_store_dword v{vtmp+1}, v{vtmp}, {srd(SRD_WS)}, 0 offen offset:48")
    A("s_mov_b64 exec, -1")

def poll(vaddr, vtmp, sleep=2):
    L = newlabel("poll"); D = newlabel("polld")
    A(f"s_mov_b32 s{S_CNT}, 0x4000")
    A.label(L)
    A(f"buffer_load_dwordx2 {vr(vtmp,2)}, v{vaddr}, {srd(SRD_WS)}, 0 offen sc1")
    A("s_waitcnt vmcnt(0)")
    A(f"v_cmp_ne_u64 vcc, s[{S_TAG}:{S_TAG+1}], {vr(vtmp,2)}")
    A(f"s_cbranch_vccz {D}")
    A(f"s_sleep {sleep}")
    A(f"s_sub_u32 s{S_CNT}, s{S_CNT}, 1")
    A(f"s_cmp_lg_u32 s{S_CNT}, 0")
    A(f"s_cbranch_scc1 {L}")
    A.label(D)

def get_tag_spin(vtmp):
    L = newlabel("tag"); D = newlabel("tagd")
    A(f"s_mov_b32 s{S_CNT}, 0x4000")
    A(f"v_mov_b32 v{vtmp+2}, 0")
    A.label(L)
    A(f"buffer_load_dwordx2 {vr(vtmp,2)}, v{vtmp+2}, {srd(SRD_DBG)}, 0 offen sc1")
    A("s_waitcnt vmcnt(0)")
    A(f"v_readfirstlane_b32 s{S_TAG}, v{vtmp}")
    A(f"v_readfirstlane_b32 s{S_TAG+1}, v{vtmp+1}")
    A(f"s_cmp_lg_u32 s{S_TAG+1}, 0")
    A(f"s_cbranch_scc1 {D}")
    A("s_sleep 4")
    A(f"s_sub_u32 s{S_CNT}, s{S_CNT}, 1")
    A(f"s_cmp_lg_u32 s{S_CNT}, 0")
    A(f"s_cbranch_scc1 {L}")
    A.label(D)

def flag_store(soff_reg, vtmp):
    A(f"v_mov_b32 v{vtmp}, s{S_TAG}")
    A(f"v_mov_b32 v{vtmp+1}, s{S_TAG+1}")
    A(f"v_mov_b32 v{vtmp+2}, 0")
    A("s_mov_b64 exec, 1")
    t = A.vm(f"buffer_store_dwordx2 {vr(vtmp,2)}, v{vtmp+2}, {srd(SRD_WS)}, s{soff_reg} offen sc1")
    A("s_mov_b64 exec, -1")
    return t

V_X0, V_X1, V_Q, V_F, V_XB = 2, 3, 4, 5, 6
V_TB = 7
V_TV = 10
V_VA = 11
V_XA = 15
V_L16 = 16
V_G = 17
V_T = 18
XF = 24
ACC1 = 136
RG = 200
ACC2 = 216
TMP8 = 248
QF = 24
KB = 56
VB = 88
PB = 120
PL = 128
OA = 136
SB = 200

def mk_srd(n, p, size):
    A(f"s_mov_b32 s{n}, s{p}")
    A(f"s_mov_b32 s{n+1}, s{p+1}")
    A(f"s_mov_b32 s{n+2}, {size}")
    A(f"s_mov_b32 s{n+3}, 0x00020000")

def prologue():
    if OPT["profile"]: A("s_memrealtime s[100:101]")
    A("s_cmp_ge_u32 s2, 256")
    A("s_cbranch_scc1 L_end")
    A("s_load_dwordx16 s[72:87], s[0:1], 0")
    A("s_load_dwordx4 s[88:91], s[0:1], 64")
    A("s_load_dwordx2 s[92:93], s[0:1], 80")
    A(f"s_lshr_b32 s{S_SLOT}, s2, 3")
    if OPT["codepf"]:
        A(f"s_getpc_b64 s[{S_PC}:{S_PC+1}]")
        A.label("L_pc")
        A(f"s_lshl_b32 s{T0}, s{S_SLOT}, 13")
        A("v_lshlrev_b32 v2, 4, v0")
        A(f"v_add_u32 v2, s{T0}, v2")
        A("v_and_b32 v2, 0xffff, v2")
        A("v_min_u32 v2, L_codeend-L_pc-16, v2")
        A.vm(f"global_load_dwordx4 v[252:255], v2, s[{S_PC}:{S_PC+1}]")
    A("v_lshrrev_b32 v1, 6, v0")
    A(f"v_readfirstlane_b32 s{S_W}, v1")
    A("v_and_b32 v1, 63, v0")
    A(f"s_and_b32 s{S_XCD}, s2, 7")
    A(f"s_and_b32 s{S_RT}, s{S_W}, 3")
    A(f"s_mul_i32 s{T0}, s{S_SLOT}, 37")
    A(f"s_lshr_b32 s{T0}, s{T0}, 8")
    A(f"s_mul_i32 s{T1}, s{T0}, 7")
    A(f"s_sub_u32 s{S_CT}, s{S_SLOT}, s{T1}")
    A(f"s_lshr_b32 s{T2}, s{S_XCD}, 1")
    A(f"s_lshl_b32 s{T2}, s{T2}, 2")
    A(f"s_add_u32 s{S_RB}, s{T2}, s{T0}")
    A(f"s_and_b32 s{T3}, s{S_XCD}, 1")
    A(f"s_mul_i32 s{T3}, s{T3}, 7")
    A(f"s_add_u32 s{S_J}, s{T3}, s{S_CT}")
    A(f"s_lshl_b32 s{S_RB64}, s{S_XCD}, 2")
    A(f"s_add_u32 s{S_RB64}, s{S_RB64}, s{T0}")

def prologue2():
    A(f"s_lshr_b32 s{T4}, s{S_SLOT}, 4")
    A(f"s_lshl_b32 s{S_HEAD}, s{S_XCD}, 1")
    A(f"s_add_u32 s{S_HEAD}, s{S_HEAD}, s{T4}")
    A(f"s_and_b32 s{S_QB}, s{S_SLOT}, 15")
    A(f"s_lshl_b32 s{S_RTG}, s{S_RB}, 2")
    A(f"s_add_u32 s{S_RTG}, s{S_RTG}, s{S_RT}")
    mk_srd(SRD_WO, 76, 448 * 896)
    mk_srd(SRD_WD, 84, 1792 * 896)
    mk_srd(SRD_GW, 86, 896)
    mk_srd(SRD_OUT, 88, 2048 * 896)
    mk_srd(SRD_DBG, 90, 256)
    mk_srd(SRD_WS, 92, WS_SIZE)
    A(f"v_lshlrev_b32 v{V_L16}, 4, v1")
    stamp(0)

def publish_tag():
    sk = newlabel("notag")
    A(f"s_xor_b32 s{T0}, s2, 255")
    A(f"s_or_b32 s{T0}, s{T0}, s{S_W}")
    A(f"s_cmp_lg_u32 s{T0}, 0")
    A(f"s_cbranch_scc1 {sk}")
    A(f"s_memrealtime s[{S_TAG}:{S_TAG+1}]")
    A("s_waitcnt lgkmcnt(0)")
    A(f"s_or_b32 s{S_TAG+1}, s{S_TAG+1}, 0x80000000")
    A(f"v_mov_b32 v2, s{S_TAG}")
    A(f"v_mov_b32 v3, s{S_TAG+1}")
    A("v_mov_b32 v4, 0")
    A("s_mov_b64 exec, 1")
    A(f"buffer_store_dwordx2 v[2:3], v4, {srd(SRD_DBG)}, 0 offen sc1")
    A("s_mov_b64 exec, -1")
    A.label(sk)

def phaseA_setup():
    w = S_W
    A(f"s_lshl_b32 s{S_MA}, s{w}, 10")
    A(f"s_lshl_b32 s{S_MX}, s{w}, 11")
    A(f"s_lshr_b32 s{T0}, s{w}, 2")
    A(f"s_lshl_b32 s{S_MV}, s{T0}, 13")
    A(f"s_lshl_b32 s{T1}, s{S_RT}, 10")
    A(f"s_add_u32 s{S_MV}, s{S_MV}, s{T1}")
    t0, t1, t2, t3 = V_T, V_T + 1, V_T + 2, V_T + 3
    A(f"s_lshl_b32 s{T1}, s{S_RB}, 7")
    A(f"s_lshl_b32 s{T2}, s{w}, 4")
    A(f"s_add_u32 s{T1}, s{T1}, s{T2}")
    A(f"v_lshrrev_b32 v{t0}, 3, v1")
    A(f"v_add_u32 v{t1}, s{T1}, v{t0}")
    A(f"v_mul_u32_u24 v{t1}, 896, v{t1}")
    A(f"v_lshrrev_b32 v{t2}, 4, v1")
    A(f"v_and_b32 v{t3}, 7, v1")
    A(f"v_xor_b32 v{t3}, v{t3}, v{t2}")
    A(f"v_lshl_add_u32 v{V_X0}, v{t3}, 4, v{t1}")
    A(f"v_xor_b32 v{t3}, 4, v{t3}")
    A(f"v_lshl_add_u32 v{V_X1}, v{t3}, 4, v{t1}")
    A(f"v_add_u32 v{V_X1}, {8*896}, v{V_X1}")
    A(f"s_lshl_b32 s{T1}, s{w}, 2")
    A(f"v_add_u32 v{t1}, s{T1}, v{t2}")
    A(f"v_mul_u32_u24 v{t1}, 2688, v{t1}")
    A(f"v_bfe_u32 v{t3}, v1, 1, 3")
    A(f"v_lshlrev_b32 v{V_Q}, 1, v{t2}")
    A(f"v_xor_b32 v{t3}, v{t3}, v{V_Q}")
    A(f"v_lshl_add_u32 v{t1}, v{t3}, 5, v{t1}")
    A(f"v_and_b32 v{t3}, 1, v1")
    A(f"v_lshl_add_u32 v{t1}, v{t3}, 4, v{t1}")
    A(f"s_mul_i32 s{T1}, s{S_J}, 3")
    A(f"s_lshr_b32 s{T1}, s{T1}, 1")
    A(f"s_lshl_b32 s{T1}, s{T1}, 7")
    A(f"v_add_u32 v{V_Q}, s{T1}, v{t1}")
    A(f"s_lshl_b32 s{T1}, s{S_RT}, 3")
    A(f"v_add_u32 v{t1}, s{T1}, v{t0}")
    A(f"v_mul_u32_u24 v{t1}, 3584, v{t1}")
    A(f"v_lshl_add_u32 v{t1}, v{t3}, 4, v{t1}")
    A(f"v_bfe_u32 v{t3}, v1, 1, 2")
    A(f"v_bfe_u32 v{V_F}, v1, 4, 1")
    A(f"v_lshlrev_b32 v{V_F}, 1, v{V_F}")
    A(f"v_add_u32 v{V_F}, s{T0}, v{V_F}")
    A(f"v_xor_b32 v{t3}, v{t3}, v{V_F}")
    A(f"v_lshl_add_u32 v{t1}, v{t3}, 5, v{t1}")
    A(f"s_lshl_b32 s{T1}, s{S_J}, 8")
    A(f"v_add_u32 v{V_F}, s{T1}, v{t1}")
    A("s_waitcnt lgkmcnt(0)")
    mk_srd(SRD_X, 72, 2048 * 896)
    mk_srd(SRD_QKV, 74, 448 * 2688)
    A(f"s_cmp_ge_u32 s{S_W}, 4")
    A(f"s_cselect_b32 s{SRD_GU}, s82, s80")
    A(f"s_cselect_b32 s{SRD_GU+1}, s83, s81")
    A(f"s_mov_b32 s{SRD_GU+2}, {448*3584}")
    A(f"s_mov_b32 s{SRD_GU+3}, 0x00020000")

def issue_half(it, e):
    slot = (it % NSLOT) * SLOT
    if it < 21:
        c, k = divmod(it, 3)
        if k == 0:
            A(f"s_add_u32 m0, s{S_MX}, {slot + 1024*e}")
            A(f"s_movk_i32 s{T6}, {c*128}")
            return A.vm(f"buffer_load_dwordx4 v{V_X0+e}, {srd(SRD_X)}, s{T6} offen lds")
        b = 2 * c + k - 1
        if e == 0:
            A(f"s_add_u32 m0, s{S_MA}, {slot}")
            A(f"s_mov_b32 s{T6}, {b*32*2688}")
            return A.vm(f"buffer_load_dwordx4 v{V_Q}, {srd(SRD_QKV)}, s{T6} offen lds")
        A(f"s_add_u32 m0, s{S_MA}, {slot+8192}")
        A(f"s_mov_b32 s{T6}, {b*32*3584}")
        return A.vm(f"buffer_load_dwordx4 v{V_F}, {srd(SRD_GU)}, s{T6} offen lds")
    v = it - 21
    A(f"s_add_u32 m0, s{S_MV}, {slot + 4096*e}")
    A(f"s_mov_b32 s{T6}, {(v*64+32*e)*3584+128}")
    return A.vm(f"buffer_load_dwordx4 v{V_F}, {srd(SRD_GU)}, s{T6} offen lds")

def phaseA_readbases(cg):
    hf, g16, r, c4 = V_T, V_T + 1, V_T + 2, V_T + 3
    u0, u1 = V_T + 4, V_T + 5
    A(f"v_lshrrev_b32 v{hf}, 5, v1")
    A(f"v_bfe_u32 v{g16}, v1, 4, 1")
    A(f"v_bfe_u32 v{r}, v1, 2, 2")
    A(f"v_and_b32 v{c4}, 3, v1")
    A(f"v_and_b32 v{u0}, 31, v1")
    A(f"s_lshl_b32 s{T1}, s{S_RT}, 5")
    A(f"v_add_u32 v{u0}, s{T1}, v{u0}")
    A(f"v_lshlrev_b32 v{u0}, 7, v{u0}")
    A(f"v_bfe_u32 v{u1}, v1, 1, 3")
    A(f"v_xor_b32 v{u1}, v{u1}, v{hf}")
    A(f"v_lshl_add_u32 v{V_XB}, v{u1}, 4, v{u0}")
    A(f"v_lshl_add_u32 v{u0}, v{hf}, 3, v{r}")
    A(f"v_and_b32 v{u1}, 2, v{r}")
    A(f"v_add_u32 v{u1}, v{u1}, v{g16}")
    A(f"v_lshlrev_b32 v{u1}, 5, v{u1}")
    A(f"v_lshl_add_u32 v{u1}, v{c4}, 3, v{u1}")
    A(f"v_lshl_add_u32 v{u1}, v{u0}, 7, v{u1}")
    A(f"v_lshl_add_u32 v{V_TV}, v{g16}, 13, v{u1}")
    if cg == 1:
        A(f"v_lshl_add_u32 v{V_TB}, v{g16}, 12, v{u1}")
        A(f"v_add_u32 v{V_TB}, 8192, v{V_TB}")
    else:
        A(f"v_lshlrev_b32 v{u0}, 8, v{u0}")
        A(f"v_lshl_add_u32 v{u0}, v{c4}, 3, v{u0}")
        A(f"v_lshlrev_b32 v{u1}, 1, v{r}")
        A(f"v_xor_b32 v{u1}, v{u1}, v{g16}")
        A(f"v_lshl_add_u32 v{u0}, v{u1}, 5, v{u0}")
        A(f"s_and_b32 s{T1}, s{S_J}, 1")
        for t in range(3):
            A(f"s_add_u32 s{T2}, s{T1}, {t}")
            A(f"s_lshl_b32 s{T2}, s{T2}, 6")
            A(f"v_xor_b32 v{V_TB+t}, s{T2}, v{u0}")
    A(f"v_mov_b32 v{V_T+4}, {f32(GK0)}")
    A(f"s_mul_i32 s{S_HB}, s{S_RTG}, {H_RT}")
    A(f"s_lshl_b32 s{T1}, s{S_J}, 13")
    A(f"s_add_u32 s{S_HB}, s{S_HB}, s{T1}")
    A(f"s_add_u32 s{S_HB}, s{S_HB}, {WS_H}")

STORES = []

def gelu_tile(acc, fs_add, tmp):
    F = []
    e = lambda s: F.append(lambda s=s: A(s))
    for i in range(8): e(f"v_mul_f32 v{tmp+i}, v{acc+i}, v{acc+i}")
    for i in range(8): e(f"v_fmamk_f32 v{tmp+i}, v{tmp+i}, {f32(GK1)}, v{V_T+4}")
    for i in range(8): e(f"v_mul_f32 v{tmp+i}, v{tmp+i}, v{acc+i}")
    for i in range(8):
        e(f"v_exp_f32 v{tmp+i}, v{tmp+i}")
        e(f"v_mul_f32 v{acc+i}, v{acc+i}, v{acc+8+i}")
    for i in range(8): e(f"v_add_f32 v{tmp+i}, 1.0, v{tmp+i}")
    for i in range(8): e(f"v_rcp_f32 v{tmp+i}, v{tmp+i}")
    for i in range(8): e(f"v_mul_f32 v{acc+i}, v{acc+i}, v{tmp+i}")
    for i in range(4): e(f"v_cvt_pk_bf16_f32 v{acc+8+i}, v{acc+2*i}, v{acc+2*i+1}")
    def st():
        A(f"s_add_u32 s{T7}, s{S_HB}, {fs_add*1024}")
        STORES.append(A.vm(f"buffer_store_dwordx4 {vr(acc+8,4)}, v{V_L16}, {srd(SRD_WS)}, s{T7} offen sc1"))
    F.append(st)
    return F

def qk_tile(acc, t):
    A(f"s_mul_i32 s{T3}, s{S_J}, 3")
    A(f"s_add_u32 s{T3}, s{T3}, {t}")
    sk = newlabel("noscale")
    A(f"s_mov_b32 s{T4}, {f32(QSCALE)}")
    A("s_nop 7")
    A(f"s_cmp_ge_u32 s{T3}, 14")
    A(f"s_cbranch_scc1 {sk}")
    for i in range(16): A(f"v_mul_f32 v{acc+i}, s{T4}, v{acc+i}")
    A.label(sk)
    for i in range(8): A(f"v_cvt_pk_bf16_f32 v{acc+i}, v{acc+2*i}, v{acc+2*i+1}")
    A(f"s_lshl_b32 s{T3}, s{T3}, 11")
    A(f"s_mul_i32 s{T4}, s{S_RTG}, {QK_RT}")
    A(f"s_add_u32 s{T3}, s{T3}, s{T4}")
    for a, b in ((0, 2), (1, 3), (4, 6), (5, 7)):
        A(f"v_permlane32_swap_b32 v{acc+a}, v{acc+b}")
    STORES.append(A.vm(f"buffer_store_dwordx4 {vr(acc,4)}, v{V_L16}, {srd(SRD_WS)}, s{T3} offen sc1"))
    STORES.append(A.vm(f"buffer_store_dwordx4 {vr(acc+4,4)}, v{V_L16}, {srd(SRD_WS)}, s{T3} offen offset:1024 sc1"))

def v_tile(acc, t, tmp):
    A(f"s_mul_i32 s{T3}, s{S_J}, 96")
    A(f"s_add_u32 s{T3}, s{T3}, {(t-28)*32 & 0xffffffff}")
    A(f"v_and_b32 v{tmp}, 31, v1")
    A(f"v_add_u32 v{tmp}, s{T3}, v{tmp}")
    A(f"v_mul_u32_u24 v{tmp+1}, 2341, v{tmp}")
    A(f"v_lshrrev_b32 v{tmp+1}, 16, v{tmp+1}")
    A(f"v_mul_u32_u24 v{tmp+2}, 28, v{tmp+1}")
    A(f"v_sub_u32 v{tmp}, v{tmp}, v{tmp+2}")
    A(f"v_lshlrev_b32 v{tmp}, 4, v{tmp}")
    A(f"v_lshl_add_u32 v{tmp}, v{tmp+1}, 17, v{tmp}")
    A(f"v_and_b32 v{tmp+1}, 32, v1")
    A(f"v_lshl_add_u32 v{tmp}, v{tmp+1}, 4, v{tmp}")
    A(f"s_lshl_b32 s{T3}, s{S_RTG}, 11")
    A(f"s_add_u32 s{T3}, s{T3}, {WS_VT}")
    for i in range(8): A(f"v_cvt_pk_bf16_f32 v{acc+i}, v{acc+2*i}, v{acc+2*i+1}")
    STORES.append(A.vm(f"buffer_store_dwordx4 {vr(acc,4)}, v{tmp}, {srd(SRD_WS)}, s{T3} offen sc1"))
    STORES.append(A.vm(f"buffer_store_dwordx4 {vr(acc+4,4)}, v{tmp}, {srd(SRD_WS)}, s{T3} offen offset:1024 sc1"))

STEPS = []
for _b in range(14):
    for _ks in range(2): STEPS.append((_b, _ks == 0, 1, _ks, 2 * _b + _ks))
for _v in range(7):
    for _ks in range(4): STEPS.append((14 + _v, _ks == 0, 2, _ks, 4 * _v + _ks))
def items_of(ch):
    if ch < 14:
        return [3 * (ch // 2), 3 * (ch // 2) + 1] if ch % 2 == 0 else [3 * (ch // 2) + 2]
    return [21 + ch - 14]
CONSUMED = {it: ch for ch in range(21) for it in items_of(ch)}
def avail(it): return -1 if it < NSLOT else CONSUMED[it - NSLOT] + 1

BARR = {ch: items_of(ch)[-1] for ch in range(14)}
for _x in OPT["vbar"].split(","):
    _c, _i = _x.split(":"); BARR[int(_c)] = int(_i)
assert max(BARR.values()) == 27

def cnt_init(second):
    sk = newlabel("cinit")
    A(f"s_cmp_lg_u32 s{S_W}, 0")
    A(f"s_cbranch_scc1 {sk}")
    A(f"v_mov_b32 v{V_T+2}, {LDS_CNT}")
    A(f"v_mov_b32 v{V_T}, 0")
    A(f"v_mov_b32 v{V_T+1}, {second}")
    A(f"ds_write_b64 v{V_T+2}, {vr(V_T,2)}")
    A.label(sk)

def cnt_add(off, va, vb):
    A(f"v_mov_b32 v{va}, {LDS_CNT + off}")
    A(f"v_mov_b32 v{vb}, 1")
    A("s_waitcnt lgkmcnt(0)")
    A.lg_all()
    A("s_mov_b64 exec, 1")
    A(f"ds_add_u32 v{va}, v{vb}")
    A("s_mov_b64 exec, -1")

def cnt_wait(off, target, va, vb):
    L = newlabel("cnt"); D = newlabel("cntd")
    A(f"v_mov_b32 v{va}, {LDS_CNT + off}")
    A(f"s_mov_b32 s{S_CNT}, 0x100000")
    A.label(L)
    A(f"ds_read_b32 v{vb}, v{va}")
    A("s_waitcnt lgkmcnt(0)")
    A(f"v_readfirstlane_b32 s{T0}, v{vb}")
    A(f"s_cmp_ge_u32 s{T0}, {target}")
    A(f"s_cbranch_scc1 {D}")
    A(f"s_sub_u32 s{S_CNT}, s{S_CNT}, 1")
    A(f"s_cmp_lg_u32 s{S_CNT}, 0")
    A(f"s_cbranch_scc1 {L}")
    A.label(D)

class PA:
    def __init__(self):
        self.tok = {}; self.dq = 0; self.chunk = -1; self.fill = deque(); self.tagtok = None; self.hooks = {}; self.landed = -1; self.rtok = {}; self.xtok = {}
    def dma(self, n=1):
        for _ in range(n):
            it, e = divmod(self.dq, 2)
            if it >= 28 or avail(it) > self.chunk: return
            t = 0 if ("nodma" in OPT["exp"] and it >= 5) else issue_half(it, e)
            if e == 1: self.tok[it] = t
            self.dq += 1
    def drain(self, n):
        for _ in range(n):
            if not self.fill: break
            self.fill.popleft()()

def fbase(i, p): return RG + (16 if p == 1 else 8) * (i & 1)

def pa_mfma_list(st, cg, vflags, i):
    ch, first, p, ks, gk = STEPS[i]
    fb = fbase(i, p)
    x = vr(XF + 4 * gk, 4)
    n = (3 if cg == 0 else 4) if p == 1 else 2
    out = []
    for t in range(n):
        def m(t=t):
            acc = (ACC1 if p == 1 else ACC2) + 16 * t
            c = "0" if gk == 0 else vr(acc, 16)
            w = vr(fb + 4 * t, 4)
            A.lg_wait(max(st.rtok.get((i, t), 0), st.xtok.get(gk, 0) if p == 1 else 0))
            if "nomfma" in OPT["exp"]:
                pass
            elif p == 1 and cg == 0 and vflags[t]:
                A(f"v_mfma_f32_32x32x16_bf16 {vr(acc,16)}, {x}, {w}, {c}")
            else:
                A(f"v_mfma_f32_32x32x16_bf16 {vr(acc,16)}, {w}, {x}, {c}")
        out.append(m)
    return out

def pa_gap(st, p):
    st.dma(1)
    if p == 2: st.drain(OPT["fill"])

def pa_mfmas(st, cg, vflags, i):
    for m in pa_mfma_list(st, cg, vflags, i):
        m(); pa_gap(st, STEPS[i][2])

def pa_run(st, cg, vflags, i0, i1):
    n1 = 3 if cg == 0 else 4
    for i in range(i0, i1):
        ch, first, p, ks, gk = STEPS[i]
        bar = first and ch in BARR
        Ms = pa_mfma_list(st, cg, vflags, i - 1) if i > 0 else []
        pp = STEPS[i - 1][2] if i > 0 else 1
        fb = fbase(i, p)
        n = n1 if p == 1 else 2
        pitch = 256 if (p == 1 and cg == 0) else 128
        def R(t):
            for a in range(2):
                if "noread" in OPT["exp"]: continue
                st.rtok[(i, t)] = A.lg(f"ds_read_b64_tr_b16 {vr(fb + 4*t + 2*a, 2)}, v{V_VA+t} offset:{(16*ks + 4*a) * pitch}")
        def X(kk):
            c = gk // 4
            xslot = ((3 * c) % NSLOT) * SLOT
            A(f"v_xor_b32 v{V_XA}, {xslot | (kk << 5)}, v{V_XB}")
            st.xtok[4 * c + kk] = A.lg(f"ds_read_b128 {vr(XF + 4*(4*c+kk), 4)}, v{V_XA}")
        Rs = [lambda t=t: R(t) for t in range(n)]
        if p == 1 and ch % 2 == 0:
            if ks == 0: Rs = [lambda: X(0)] + Rs + [lambda: X(1)]
            else: Rs = Rs + [lambda: X(2), lambda: X(3)]
        h = 0
        if bar:
            h = min(len(Ms), OPT["barm"] if len(Ms) > 2 else 1)
            for m in Ms[:h]:
                m(); pa_gap(st, pp)
        if first:
            its = items_of(ch)
            if bar:
                need = BARR[ch]
                while need not in st.tok:
                    before = st.dq
                    st.dma(1)
                    assert st.dq != before, "item needed before its slot is free"
                A.vm_wait(st.tok[need], "lgkmcnt(0)")
                A.lg_all()
                A("s_barrier")
                st.chunk = ch
                st.landed = need
            assert st.landed >= its[-1]
            SP = {0: 2, 1: 3, 3: 4, 6: 5, 9: 6, 12: 7, 14: 8, 18: 9}
            if ch in SP: stamp2(SP[ch])
            wslot = (its[-1] % NSLOT) * SLOT
            if p == 1:
                for t in range(n1):
                    if cg == 0: A(f"v_add_u32 v{V_VA+t}, {wslot}, v{V_TB+t}")
                    else: A(f"v_xor_b32 v{V_VA+t}, {wslot | (t << 5)}, v{V_TB}")
            else:
                for t in range(2):
                    A(f"v_xor_b32 v{V_VA+t}, {wslot | ((2*cg + t) << 5)}, v{V_TV}")
        rest = Ms[h:]
        if bar:
            k = max(len(rest), 1)
            per = -(-len(Rs) // k)
            for j in range(k):
                for r in Rs[j * per:(j + 1) * per]: r()
                if j == 0 and first and ch in st.hooks: st.hooks[ch]()
                if j < len(rest):
                    rest[j](); pa_gap(st, pp)
            if i == 0: st.dma(2)
        else:
            if first and ch in st.hooks: st.hooks[ch]()
            per = -(-len(Rs) // len(rest))
            for j, m in enumerate(rest):
                m()
                for r in Rs[j * per:(j + 1) * per]: r()
                pa_gap(st, pp)
        if ("after", i) in st.hooks: st.hooks[("after", i)]()

def tag_hooks(st):
    def issue():
        A(f"v_mov_b32 v{V_T+2}, 0")
        st.tagtok = A.vm(f"buffer_load_dwordx2 {vr(V_T,2)}, v{V_T+2}, {srd(SRD_DBG)}, 0 offen sc1")
    def check():
        A.vm_wait(st.tagtok)
        A(f"v_readfirstlane_b32 s{S_TAG}, v{V_T}")
        A(f"v_readfirstlane_b32 s{S_TAG+1}, v{V_T+1}")
        ok = newlabel("tagok")
        A(f"s_cmp_lg_u32 s{S_TAG+1}, 0")
        A(f"s_cbranch_scc1 {ok}")
        get_tag_spin(V_T)
        A.label(ok)
    return issue, check

def hflag_off(dst, cg):
    A(f"s_lshl_b32 s{dst}, s{S_RTG}, 4")
    A(f"s_add_u32 s{dst}, s{dst}, s{S_J}")
    A(f"s_lshl_b32 s{dst}, s{dst}, 7")
    A(f"s_add_u32 s{dst}, s{dst}, {WS_FH + 8*cg}")

def roleA_pass1(st0, vm0, vflags):
    global STORES
    STORES = []
    st = copy.deepcopy(st0)
    A.vm_issued = vm0
    A.lg_issued = 0; A.lg_done = 0
    issue, check = tag_hooks(st)
    st.hooks = {10: issue, 13: check, 14: lambda: cnt_init(0)}
    pa_run(st, 0, vflags, 0, 29)
    stamp(1)
    for t in range(3):
        acc = ACC1 + 16 * t
        if vflags[t]: v_tile(acc, t, TMP8)
        else: qk_tile(acc, t)
    return st

def roleA_pass2(st):
    assert st.dq == 56, st.dq
    issue, check = tag_hooks(st)
    qstore = STORES[-1]
    e = lambda s: st.fill.append(lambda s=s: A(s))
    def hq():
        A.vm_wait(qstore)
        A(f"s_lshl_b32 s{T3}, s{S_J}, 6")
        A(f"s_add_u32 s{T3}, s{T3}, s{S_RTG}")
        A(f"s_lshl_b32 s{T3}, s{T3}, 3")
        A(f"s_add_u32 s{T3}, s{T3}, {WS_FQ}")
        flag_store(T3, V_T)
    ptok = []
    def h20():
        ptok.append(A.vm(f"buffer_load_dwordx2 {vr(V_T,2)}, v2, {srd(SRD_WS)}, 0 offen sc1"))
        ptok.append(A.vm(f"buffer_load_dwordx2 {vr(V_T+2,2)}, v3, {srd(SRD_WS)}, 0 offen sc1"))
    def vbinit():
        for i in range(32): e(f"v_mov_b32 v{VB+i}, v4")
    assert 14 < OPT["qflag"] < 20
    st.hooks = {OPT["qflag"]: hq, 20: h20, ("after", 52): vbinit}
    st.fill.append(attn_setup)
    for i in range(64): e(f"v_mov_b32 v{OA+i}, 0")
    pa_run(st, 0, None, 29, 56)
    cnt_add(4, V_VA, V_VA + 1)
    pa_mfmas(st, 0, None, 55)
    st.drain(10 ** 6)
    stamp(2)
    if "stopA" in OPT["exp"]:
        prof_dump(2); A("s_endpgm")
    A.vm_wait(ptok[-1])
    ok = newlabel("flok")
    A(f"v_cmp_ne_u64 vcc, s[{S_TAG}:{S_TAG+1}], {vr(V_T,2)}")
    A(f"v_cmp_ne_u64 s[{T2}:{T3}], s[{S_TAG}:{S_TAG+1}], {vr(V_T+2,2)}")
    A(f"s_or_b64 s[{T2}:{T3}], s[{T2}:{T3}], vcc")
    A(f"s_cbranch_scc0 {ok}")
    poll(2, V_T, sleep=1)
    poll(3, V_T, sleep=1)
    A.label(ok)
    stamp(3)
    attn_loads()
    for t in range(2):
        for f in gelu_tile(ACC2 + 16 * t, 4 + t, TMP8): f()
    hflag_off(S_HF, 0)

def roleG_phaseA(st0, vm0):
    global STORES
    STORES = []
    st = copy.deepcopy(st0)
    A.vm_issued = vm0
    A.lg_issued = 0; A.lg_done = 0
    phaseA_readbases(1)
    issue, check = tag_hooks(st)
    def epi1():
        stamp(1)
        for t in range(4): st.fill.extend(gelu_tile(ACC1 + 16 * t, t, TMP8))
    hooks = {10: issue, 13: check, ("after", 28): epi1}
    if OPT["gprio"]: hooks[17] = lambda: A(f"s_setprio {OPT['gprio']}")
    st.hooks = hooks
    pa_run(st, 1, None, 0, 56)
    cnt_add(4, V_VA, V_VA + 1)
    pa_mfmas(st, 1, None, 55)
    stamp(2)
    st.drain(10 ** 6)
    for t in range(2):
        for f in gelu_tile(ACC2 + 16 * t, 6 + t, TMP8): f()
    if OPT["gprio"]: A("s_setprio 0")
    if "stopA" in OPT["exp"]:
        prof_dump(2); A("s_endpgm")
    cnt_wait(4, 8, V_VA, V_VA + 1)
    phaseC_prefetch(OPT["cpre"])
    hflag_off(T3, 1)
    A.vm_wait(STORES[-1])
    flag_store(T3, V_T)
    stamp(3)
    for s in range(OPT["cpre"], RING_N): cW(s)

def gate_path():
    A(f"s_lshr_b32 s{T2}, s{S_XCD}, 1")
    A(f"s_lshl_b32 s{T2}, s{T2}, 2")
    A(f"s_sub_u32 s{T4}, s{S_SLOT}, 28")
    A(f"s_add_u32 s{S_RB}, s{T4}, s{T2}")
    A("s_waitcnt lgkmcnt(0)")
    mk_srd(SRD_X, 72, 2048 * 896)
    prologue2()
    A(f"s_cmp_ge_u32 s{S_W}, 4")
    A("s_cbranch_scc1 L_touch")
    publish_tag()
    cnt_init(8)
    A(f"s_and_b32 s{T0}, s{S_XCD}, 1")
    A(f"s_cmp_lg_u32 s{T0}, 0")
    A("s_cbranch_scc1 L_gate_skip")
    A("v_and_b32 v2, 31, v1")
    A(f"s_lshl_b32 s{T0}, s{S_RTG}, 5")
    A(f"v_add_u32 v2, s{T0}, v2")
    A("v_lshrrev_b32 v4, 5, v1")
    A("v_lshlrev_b32 v4, 4, v4")
    A("v_mul_u32_u24 v3, 896, v2")
    A("v_add_u32 v3, v3, v4")
    for i in range(16): A(f"v_mov_b32 v{136+i}, 0")
    A(f"s_mov_b32 s{T0}, 0")
    A.label("L_gate_loop")
    for k in range(4):
        A(f"buffer_load_dwordx4 {vr(24+4*k,4)}, v3, {srd(SRD_X)}, s{T0} offen offset:{k*32}")
        A(f"buffer_load_dwordx4 {vr(80+4*k,4)}, v4, {srd(SRD_GW)}, s{T0} offen offset:{k*32}")
    A("s_waitcnt vmcnt(0)")
    for k in range(4):
        A(f"v_mfma_f32_32x32x16_bf16 {vr(136,16)}, {vr(80+4*k,4)}, {vr(24+4*k,4)}, {vr(136,16)}")
    A(f"s_add_u32 s{T0}, s{T0}, 128")
    A(f"s_cmp_lt_u32 s{T0}, 896")
    A("s_cbranch_scc1 L_gate_loop")
    A(f"v_mul_f32 v5, {f32(-LOG2E)}, v136")
    A("v_exp_f32 v5, v5")
    A("v_add_f32 v5, 1.0, v5")
    A("v_rcp_f32 v5, v5")
    A("v_lshlrev_b32 v2, 2, v2")
    A(f"s_mov_b32 s{T0}, {WS_G}")
    A("s_mov_b32 exec_hi, 0")
    A(f"buffer_store_dword v5, v2, {srd(SRD_WS)}, s{T0} offen sc1")
    A("s_mov_b32 exec_hi, -1")
    get_tag_spin(V_T)
    A(f"s_lshl_b32 s{T3}, s{S_RTG}, 11")
    A(f"s_add_u32 s{T3}, s{T3}, {WS_FH + 14*128}")
    flag_store(T3, V_T)
    A("s_branch L_gate_attn")
    A.label("L_gate_skip")
    get_tag_spin(V_T)
    A.label("L_gate_attn")
    if "stopA" in OPT["exp"]: A("s_endpgm")
    attn_setup()
    for i in range(32): A(f"v_mov_b32 v{VB+i}, v4")
    for i in range(64): A(f"v_mov_b32 v{OA+i}, 0")
    A("s_waitcnt lgkmcnt(0)")
    A("s_barrier")
    poll(2, V_T, sleep=8)
    poll(3, V_T)
    stamp(3)
    attn_loads()
    A(f"s_mov_b32 s{S_HF}, 0")
    A("s_branch L_attn")

def global_touch():
    A(f"s_mul_i32 s{T0}, s{S_XCD}, 28")
    A(f"s_add_u32 s{T0}, s{T0}, s{S_SLOT}")
    A(f"s_lshl_b32 s{T0}, s{T0}, 13")
    A(f"v_lshlrev_b32 v{V_T}, 7, v1")
    dn = newlabel("gt"); l1 = newlabel("gt"); l2 = newlabel("gt")
    A(f"s_cmp_eq_u32 s{S_RT}, 2")
    A(f"s_cbranch_scc1 {l2}")
    A(f"s_cmp_eq_u32 s{S_W}, 1")
    A(f"s_cbranch_scc1 {l1}")
    A(f"s_cmp_eq_u32 s{S_W}, 0")
    A(f"s_cselect_b32 s{T0}, s{T0}, 0x10000000")
    A.vm(f"buffer_load_dword v251, v{V_T}, {srd(SRD_X)}, s{T0} offen")
    A(f"s_branch {dn}")
    A.label(l1)
    A(f"buffer_load_dword v251, v{V_T}, {srd(SRD_QKV)}, s{T0} offen")
    A(f"s_branch {dn}")
    A.label(l2)
    A(f"buffer_load_dword v251, v{V_T}, {srd(SRD_GU)}, s{T0} offen")
    A.label(dn)

def touch_path():
    A.label("L_touch")
    if not OPT["touch"]:
        A("s_endpgm"); return
    TW = T5
    A(f"s_sub_u32 s{T0}, s{S_SLOT}, 28")
    A(f"s_lshl_b32 s{T0}, s{T0}, 3")
    A(f"s_add_u32 s{T0}, s{T0}, s{S_XCD}")
    A(f"s_lshl_b32 s{T0}, s{T0}, 2")
    A(f"s_add_u32 s{TW}, s{T0}, s{S_RT}")
    tab = [(0, SRD_X, 2048 * 896, 896, 128), (32, 74, 448 * 2688, 128, 64 * 2688), (53, 80, 448 * 3584, 128, 64 * 3584),
           (81, 82, 448 * 3584, 128, 64 * 3584), (109, 76, 448 * 896, 128, 19 * 8192)]
    R = SRD_QKV
    for k, (f, p, nb, ls, rs) in enumerate(tab):
        if k == 0:
            A(f"s_mov_b32 s{R}, s{p}"); A(f"s_mov_b32 s{R+1}, s{p+1}"); A(f"s_mov_b32 s{R+2}, {nb}")
            A(f"s_mov_b32 s{T1}, {ls}"); A(f"s_mov_b32 s{T2}, {rs}"); A(f"s_mov_b32 s{T3}, {f}")
        else:
            A(f"s_cmp_ge_u32 s{TW}, {f}")
            A(f"s_cselect_b32 s{R}, s{p}, s{R}"); A(f"s_cselect_b32 s{R+1}, s{p+1}, s{R+1}"); A(f"s_cselect_b32 s{R+2}, {nb}, s{R+2}")
            A(f"s_cselect_b32 s{T1}, {ls}, s{T1}"); A(f"s_cselect_b32 s{T2}, {rs}, s{T2}"); A(f"s_cselect_b32 s{T3}, {f}, s{T3}")
    A(f"s_mov_b32 s{R+3}, 0x00020000")
    A(f"s_sub_u32 s{T3}, s{TW}, s{T3}")
    A(f"s_lshl_b32 s{T3}, s{T3}, 6")
    A(f"v_add_u32 v2, s{T3}, v1")
    A(f"v_mul_lo_u32 v2, v2, s{T1}")
    A(f"s_mov_b32 s{T4}, 0")
    for r in range(7):
        A(f"buffer_load_dword v{24+r}, v2, {srd(R)}, s{T4} offen")
        A(f"s_add_u32 s{T4}, s{T4}, s{T2}")
    A(f"s_lshl_b32 s{T3}, s{TW}, 6")
    A(f"v_add_u32 v2, s{T3}, v1")
    A("v_lshlrev_b32 v2, 7, v2")
    A(f"buffer_load_dword v32, v2, {srd(SRD_WD)}, 0 offen")
    A(f"s_mov_b32 s{T4}, {8192*128}")
    A(f"buffer_load_dword v33, v2, {srd(SRD_WD)}, s{T4} offen")
    A("v_and_b32 v2, 15, v1")
    A("v_lshlrev_b32 v2, 20, v2")
    A(f"buffer_load_dword v34, v2, {srd(SRD_WS)}, 0 offen")
    A(f"buffer_load_dword v35, v2, {srd(SRD_OUT)}, 0 offen")
    A("s_waitcnt vmcnt(0)")
    A("s_endpgm")

def div3(dst, src):
    A(f"s_mul_i32 s{dst}, s{src}, 43")
    A(f"s_lshr_b32 s{dst}, s{dst}, 7")

def attn_setup():
    h = S_HEAD
    A(f"s_mul_i32 s{S_C0}, s{h}, 7")
    A(f"s_lshr_b32 s{S_C0}, s{S_C0}, 1")
    A(f"s_lshr_b32 s{T0}, s{S_C0}, 2")
    A(f"s_add_u32 s{T1}, s{S_C0}, 3")
    A(f"s_lshr_b32 s{T1}, s{T1}, 2")
    div3(T6, T0)
    div3(T2, T1)
    A(f"s_lshl_b32 s{T2}, s{T2}, 8")
    A(f"s_or_b32 s{T6}, s{T6}, s{T2}")
    A(f"s_add_u32 s{T0}, s{T0}, 14")
    A(f"s_add_u32 s{T1}, s{T1}, 14")
    div3(S_KVJ, T0)
    div3(T2, T1)
    A(f"s_lshl_b32 s{T2}, s{T2}, 8")
    A(f"s_or_b32 s{S_KVJ}, s{S_KVJ}, s{T2}")
    A(f"s_mul_i32 s{T0}, s{h}, 28")
    A(f"s_add_u32 s{T1}, s{T0}, 27")
    A(f"s_lshr_b32 s{T0}, s{T0}, 5")
    A(f"s_lshr_b32 s{T1}, s{T1}, 5")
    A(f"s_add_u32 s{T0}, s{T0}, 28")
    A(f"s_add_u32 s{T1}, s{T1}, 28")
    div3(T2, T0)
    A(f"s_lshl_b32 s{T2}, s{T2}, 16")
    A(f"s_or_b32 s{S_KVJ}, s{S_KVJ}, s{T2}")
    div3(T2, T1)
    A(f"s_lshl_b32 s{T2}, s{T2}, 24")
    A(f"s_or_b32 s{S_KVJ}, s{S_KVJ}, s{T2}")
    A("v_lshrrev_b32 v2, 4, v1")
    A("v_lshlrev_b32 v2, 3, v2")
    A(f"v_lshrrev_b32 v2, v2, s{S_KVJ}")
    A("v_and_b32 v2, 0xff, v2")
    A("v_lshlrev_b32 v2, 6, v2")
    A("v_and_b32 v3, 15, v1")
    A(f"s_lshl_b32 s{T0}, s{S_W}, 4")
    A(f"v_add3_u32 v2, v2, v3, s{T0}")
    A("v_lshlrev_b32 v2, 3, v2")
    A(f"v_add_u32 v2, {WS_FQ}, v2")
    A("v_bfe_u32 v3, v1, 2, 1")
    A("v_lshlrev_b32 v3, 3, v3")
    A(f"v_lshrrev_b32 v3, v3, s{T6}")
    A("v_and_b32 v3, 0xff, v3")
    A("v_lshlrev_b32 v3, 6, v3")
    A("v_and_b32 v4, 3, v1")
    A(f"s_lshl_b32 s{T0}, s{S_QB}, 2")
    A(f"v_add3_u32 v3, v3, v4, s{T0}")
    A("v_lshlrev_b32 v3, 3, v3")
    A(f"v_add_u32 v3, {WS_FQ}, v3")
    A(f"s_add_u32 s{S_QRT}, s{T0}, s{S_W}")
    A(f"s_lshl_b32 s{T1}, s{S_QRT}, 11")
    A(f"s_add_u32 s{T1}, s{T1}, {WS_FH + 14*128}")
    A(f"v_mov_b32 v4, s{T1}")
    A("v_and_b32 v5, 8, v1")
    A("v_cmp_ne_u32 vcc, 0, v5")
    A("v_cndmask_b32 v3, v3, v4, vcc")
    A("v_and_b32 v5, 31, v1")
    A("v_cmp_eq_u32 vcc, 28, v5")
    A("v_mov_b32 v4, 0x3f803f80")
    A("v_cndmask_b32 v4, 0, v4, vcc")
    A("v_lshlrev_b32 v5, 2, v5")
    A(f"s_mov_b32 s{S_VMASK}, 0x0fffffff")
    A(f"s_mov_b32 s{S_VMASK+1}, 0x0fffffff")
    A(f"s_lshl_b32 s{T1}, s{S_C0}, 9")
    A(f"s_mul_i32 s{S_KOFF}, s{S_W}, {16*QK_RT}")
    A(f"s_add_u32 s{S_KOFF}, s{S_KOFF}, s{T1}")
    A(f"s_add_u32 s{S_KOFF}, s{S_KOFF}, {56*512}")
    A(f"s_lshl_b32 s{S_VOFF}, s{h}, 17")
    A(f"s_lshl_b32 s{T2}, s{S_W}, 15")
    A(f"s_add_u32 s{S_VOFF}, s{S_VOFF}, s{T2}")
    A(f"s_add_u32 s{S_VOFF}, s{S_VOFF}, {WS_VT}")

def loadK(buf):
    for ks in range(2):
        A(f"buffer_load_dwordx4 {vr(KB+8*buf+4*ks,4)}, v{V_L16}, {srd(SRD_WS)}, s{S_KOFF} offen offset:{1024*ks} sc1")
    A(f"s_add_u32 s{S_KOFF}, s{S_KOFF}, {QK_RT}")
def loadV(buf):
    A(f"s_mov_b64 exec, s[{S_VMASK}:{S_VMASK+1}]")
    for ks in range(2):
        A(f"buffer_load_dwordx4 {vr(VB+8*buf+4*ks,4)}, v{V_L16}, {srd(SRD_WS)}, s{S_VOFF} offen offset:{1024*ks} sc1")
    A("s_mov_b64 exec, -1")
    A(f"s_add_u32 s{S_VOFF}, s{S_VOFF}, 2048")

def attn_loads():
    A(f"s_mul_i32 s{T0}, s{S_QB}, {4*QK_RT}")
    A(f"s_lshl_b32 s{T1}, s{S_C0}, 9")
    A(f"s_add_u32 s{T0}, s{T0}, s{T1}")
    for qt in range(4):
        A(f"s_add_u32 s{T2}, s{T0}, {qt*QK_RT}")
        for ks in range(2):
            A(f"buffer_load_dwordx4 {vr(QF+8*qt+4*ks,4)}, v{V_L16}, {srd(SRD_WS)}, s{T2} offen offset:{1024*ks} sc1")
    A(f"s_lshl_b32 s{T2}, s{S_QRT}, 7")
    A(f"s_add_u32 s{T2}, s{T2}, {WS_G}")
    A(f"buffer_load_dword v{V_G}, v5, {srd(SRD_WS)}, s{T2} offen sc1")
    loadK(0); loadV(0); loadK(1); loadV(1); loadK(2); loadV(2); loadK(3)

def attention():
    h = S_HEAD
    A.label("L_attn")
    if OPT["prio"]: A(f"s_setprio {OPT['prio']}")
    for i in range(4): A(f"v_mov_b32 v{PB+4+i}, 0")
    A(f"v_mov_b32 v6, {LDS_CNT + 4}")
    A("s_waitcnt vmcnt(12)")
    stamp(4)
    ev = newlabel("qeven"); dn = newlabel("qdone")
    A(f"s_and_b32 s{T0}, s{h}, 1")
    A(f"s_cmp_eq_u32 s{T0}, 0")
    A(f"s_cbranch_scc1 {ev}")
    A("s_mov_b32 exec_hi, 0")
    for qt in range(4):
        A(f"v_mov_b32 v{QF+8*qt}, 0"); A(f"v_mov_b32 v{QF+8*qt+1}, 0")
    A(f"s_branch {dn}")
    A.label(ev)
    A("s_mov_b32 exec_lo, 0")
    for qt in range(4):
        A(f"v_mov_b32 v{QF+8*qt+6}, 0"); A(f"v_mov_b32 v{QF+8*qt+7}, 0")
    A.label(dn)
    A("s_mov_b64 exec, -1")
    A("s_nop 1")
    def qk(buf, qt, sb, ks):
        c = "0" if ks == 0 else vr(SB + 16 * sb, 16)
        A(f"v_mfma_f32_32x32x16_bf16 {vr(SB+16*sb,16)}, {vr(KB+8*buf+4*ks,4)}, {vr(QF+8*qt+4*ks,4)}, {c}")
    def pv(buf, qt, ks):
        A(f"v_mfma_f32_32x32x16_bf16 {vr(OA+16*qt,16)}, {vr(VB+8*buf+4*ks,4)}, {vr(PB+4*ks,4)}, {vr(OA+16*qt,16)}")
    qk(0, 0, 0, 0); qk(0, 0, 0, 1)
    A(f"s_mov_b32 s{S_IT}, 0")
    A("s_nop 7")
    A("s_nop 3")
    A.label("L_attn_loop")
    for tt in range(4):
        for qt in range(4):
            u = 4 * tt + qt
            s = SB + 16 * (u & 1)
            nb, nq = (tt, qt + 1) if qt < 3 else ((tt + 1) & 3, 0)
            pb_, pq = (tt, qt - 1) if qt > 0 else ((tt - 1) & 3, 3)
            E = lambda i: A(f"v_exp_f32 v{s+i}, v{s+i}")
            C = lambda i: A(f"v_cvt_pk_bf16_f32 v{PB+i}, v{s+2*i}, v{s+2*i+1}")
            if qt == 3:
                A("s_waitcnt vmcnt(10)")
            qk(nb, nq, (u + 1) & 1, 0)
            if qt == 3:
                if tt == 0:
                    A(f"s_cmp_eq_u32 s{S_IT}, 3")
                    A(f"s_cselect_b32 s{S_KOFF}, {WS_SIZE}, s{S_KOFF}")
                    A(f"s_cselect_b32 s{S_VOFF}, {WS_SIZE}, s{S_VOFF}")
                if tt == 2:
                    A("ds_read_b32 v7, v6")
                if tt == 1:
                    sk = newlabel("hf")
                    A(f"s_cmp_eq_u32 s{S_HF}, 0")
                    A(f"s_cbranch_scc1 {sk}")
                    A("s_waitcnt vmcnt(6)")
                    flag_store(S_HF, V_T)
                    A(f"s_mov_b32 s{S_HF}, 0")
                    A.label(sk)
                loadK(tt)
            for i in range(0, 4): E(i)
            qk(nb, nq, (u + 1) & 1, 1)
            for i in range(4, 8): E(i)
            C(0); C(1)
            pv(pb_, pq, 1)
            if qt == 0: loadV((tt - 1) & 3)
            E(8); C(2); E(9); C(3); E(10); E(11)
            if qt == 0: A("s_waitcnt vmcnt(12)")
            pv(tt, qt, 0)
            E(12); E(13); C(4); E(14); E(15); C(5); C(6); C(7)
    A(f"s_add_u32 s{S_IT}, s{S_IT}, 1")
    A(f"s_cmp_lt_u32 s{S_IT}, 4")
    A("s_cbranch_scc1 L_attn_loop")
    pv(3, 3, 1)
    stamp(5)
    okc = newlabel("ringok")
    A("s_waitcnt lgkmcnt(0)")
    A(f"v_readfirstlane_b32 s{T0}, v7")
    A(f"s_cmp_ge_u32 s{T0}, 8")
    A(f"s_cbranch_scc1 {okc}")
    cnt_wait(4, 8, 6, 7)
    A.label(okc)
    for d in range(4):
        sk = newlabel("ow")
        A(f"s_cmp_eq_u32 s{S_W}, {d}")
        A(f"s_cbranch_scc1 {sk}")
        A(f"s_sub_u32 s{T0}, s{S_W}, {d+1}")
        A(f"s_and_b32 s{T0}, s{T0}, 3")
        A(f"s_lshl_b32 s{T0}, s{T0}, 12")
        A(f"s_add_u32 s{T0}, s{T0}, {LDS_AR + d*12288}")
        A(f"v_add_u32 v2, s{T0}, v{V_L16}")
        for q in range(4):
            A(f"ds_write_b128 v2, {vr(OA+16*d+4*q,4)} offset:{1024*q}")
        A.label(sk)
    for d in range(4):
        sk = newlabel("om")
        A(f"s_cmp_lg_u32 s{S_W}, {d}")
        A(f"s_cbranch_scc1 {sk}")
        for i in range(16): A(f"v_mov_b32 v{SB+i}, v{OA+16*d+i}")
        A.label(sk)
    cnt_add(0, 3, 4)
    cnt_wait(0, 4, 3, 4)
    A(f"s_mul_i32 s{T0}, s{S_W}, 12288")
    A(f"s_add_u32 s{T0}, s{T0}, {LDS_AR}")
    A(f"v_add_u32 v2, s{T0}, v{V_L16}")
    for k in range(12):
        A(f"ds_read_b128 {vr(OA+4*k,4)}, v2 offset:{1024*k}")
    for p in range(3):
        A(f"s_waitcnt lgkmcnt({8-4*p})")
        for i in range(16): A(f"v_add_f32 v{SB+i}, v{SB+i}, v{OA+16*p+i}")
    A(f"v_mov_b32 v2, v{SB+12}")
    A(f"v_mov_b32 v3, v{SB+12}")
    A("v_permlane32_swap_b32 v2, v3")
    A(f"s_mov_b32 s{T0}, {f32(2.0**-64)}")
    A(f"s_mov_b32 s{T1}, {f32(2.0**64)}")
    A(f"v_cmp_le_f32 vcc, s{T0}, v3")
    A(f"v_cmp_ge_f32 s[{T2}:{T3}], s{T1}, v3")
    A(f"s_and_b64 s[{T2}:{T3}], s[{T2}:{T3}], vcc")
    A(f"s_cmp_eq_u64 s[{T2}:{T3}], -1")
    if OPT["force_slow"]:
        A("s_branch L_slow")
    else:
        A("s_cbranch_scc0 L_slow")
    A.label("L_ofin")
    A("v_rcp_f32 v3, v3")
    A(f"v_mul_f32 v3, v3, v{V_G}")
    for i in range(16): A(f"v_mul_f32 v{SB+i}, v{SB+i}, v3")
    for i in range(8): A(f"v_cvt_pk_bf16_f32 v{PB+i}, v{SB+2*i}, v{SB+2*i+1}")
    A("s_mov_b32 exec_lo, 0")
    A(f"v_mov_b32 v{PB+6}, 0")
    A(f"v_mov_b32 v{PB+7}, 0")
    A("s_mov_b64 exec, -1")
    A(f"s_lshl_b32 s{T0}, s{S_QRT}, 4")
    A(f"s_add_u32 s{T0}, s{T0}, s{h}")
    A(f"s_lshl_b32 s{T1}, s{T0}, 11")
    A(f"s_add_u32 s{T1}, s{T1}, {WS_O}")
    A(f"buffer_store_dwordx4 {vr(PB,4)}, v{V_L16}, {srd(SRD_WS)}, s{T1} offen sc1")
    A(f"buffer_store_dwordx4 {vr(PB+4,4)}, v{V_L16}, {srd(SRD_WS)}, s{T1} offen offset:1024 sc1")
    A(f"s_lshl_b32 s{T3}, s{T0}, 7")
    A(f"s_add_u32 s{T3}, s{T3}, {WS_FO}")
    A("s_waitcnt vmcnt(0)")
    flag_store(T3, V_T)
    stamp(6)
    prof_dump(2)
    A("s_endpgm")

def attention_slow():
    h = S_HEAD
    A.label("L_slow")
    A("v_lshrrev_b32 v2, 4, v1")
    A("v_lshlrev_b32 v2, 3, v2")
    A(f"v_lshrrev_b32 v2, v2, s{S_KVJ}")
    A("v_and_b32 v2, 0xff, v2")
    A("v_lshlrev_b32 v2, 6, v2")
    A("v_and_b32 v3, 15, v1")
    A("v_add_u32 v2, v2, v3")
    A("v_lshlrev_b32 v2, 3, v2")
    A(f"v_add_u32 v2, {WS_FQ}, v2")
    for qq in range(4):
        poll(2, V_T)
        if qq < 3: A("v_add_u32 v2, 128, v2")
    SQ = OA
    for d in range(4):
        sk = newlabel("sq")
        A(f"s_cmp_lg_u32 s{S_W}, {d}")
        A(f"s_cbranch_scc1 {sk}")
        for i in range(8): A(f"v_mov_b32 v{SQ+i}, v{QF+8*d+i}")
        A.label(sk)
    SS = OA + 16
    for i in range(16): A(f"v_mov_b32 v{SB+i}, 0")
    A(f"v_mov_b32 v4, {f32(-3.0e38)}")
    A(f"s_lshl_b32 s{S_KOFF}, s{S_C0}, 9")
    A(f"s_add_u32 s{S_KOFF}, s{S_KOFF}, {56*512}")
    A(f"s_lshl_b32 s{S_VOFF}, s{h}, 17")
    A(f"s_add_u32 s{S_VOFF}, s{S_VOFF}, {WS_VT}")
    A(f"s_mov_b32 s{S_IT}, 0")
    A.label("L_slow_loop")
    loadK(0); loadV(0)
    A("s_waitcnt vmcnt(0)")
    A(f"v_mfma_f32_32x32x16_bf16 {vr(SS,16)}, {vr(KB,4)}, {vr(SQ,4)}, 0")
    A(f"v_mfma_f32_32x32x16_bf16 {vr(SS,16)}, {vr(KB+4,4)}, {vr(SQ+4,4)}, {vr(SS,16)}")
    A(f"v_max3_f32 v5, v{SS}, v{SS+1}, v4")
    for i in range(1, 8): A(f"v_max3_f32 v5, v{SS+2*i}, v{SS+2*i+1}, v5")
    A("v_mov_b32 v6, v5")
    A("v_permlane32_swap_b32 v5, v6")
    A("v_max_f32 v5, v5, v6")
    A("v_sub_f32 v6, v4, v5")
    A("v_exp_f32 v6, v6")
    A("v_mov_b32 v4, v5")
    for i in range(16): A(f"v_mul_f32 v{SB+i}, v{SB+i}, v6")
    for i in range(16): A(f"v_sub_f32 v{SS+i}, v{SS+i}, v5")
    for i in range(16): A(f"v_exp_f32 v{SS+i}, v{SS+i}")
    for i in range(8): A(f"v_cvt_pk_bf16_f32 v{PB+i}, v{SS+2*i}, v{SS+2*i+1}")
    A(f"v_mfma_f32_32x32x16_bf16 {vr(SB,16)}, {vr(VB,4)}, {vr(PB,4)}, {vr(SB,16)}")
    A(f"v_mfma_f32_32x32x16_bf16 {vr(SB,16)}, {vr(VB+4,4)}, {vr(PB+4,4)}, {vr(SB,16)}")
    A("s_nop 7")
    A("s_nop 3")
    A(f"s_add_u32 s{S_IT}, s{S_IT}, 1")
    A(f"s_cmp_lt_u32 s{S_IT}, 64")
    A("s_cbranch_scc1 L_slow_loop")
    A(f"v_mov_b32 v2, v{SB+12}")
    A(f"v_mov_b32 v3, v{SB+12}")
    A("v_permlane32_swap_b32 v2, v3")
    A("s_branch L_ofin")

V_CW = 2
V_CT = 3
S_RING, S_WDB, S_WOB = 46, 47, 48
CTOK = {}

def cW(s):
    slot = (s % RING_N) * 2048
    for e in range(2):
        A(f"s_add_u32 m0, s{S_RING}, {slot + 1024*e}")
        if s < 28:
            A(f"s_add_u32 s{T6}, s{S_WDB}, {(16*s + 8*e) * 896}")
            t = A.vm(f"buffer_load_dwordx4 v{V_CW}, {srd(SRD_WD)}, s{T6} offen lds")
        else:
            hh, ks = divmod(s - 28, 2)
            A(f"s_add_u32 s{T6}, s{S_WOB}, {(28*hh + 16*ks + 8*e) * 896}")
            t = A.vm(f"buffer_load_dwordx4 v{V_CW}, {srd(SRD_WO)}, s{T6} offen lds")
    CTOK[("W", s)] = t

def phaseC_prefetch(n):
    t0, t1 = V_VA, V_VA + 1
    A(f"s_mul_i32 s{S_RING}, s{S_RT}, {RING_B}")
    A(f"s_mul_i32 s{S_WDB}, s{S_RT}, {448*896}")
    A(f"s_mul_i32 s{S_WOB}, s{S_RT}, {112*896}")
    A(f"v_lshrrev_b32 v{t0}, 3, v1")
    A(f"v_mul_u32_u24 v{t0}, 896, v{t0}")
    A(f"v_bfe_u32 v{t1}, v1, 1, 2")
    A(f"v_bfe_u32 v{V_CW}, v1, 4, 1")
    A(f"v_lshlrev_b32 v{V_CW}, 1, v{V_CW}")
    A(f"v_xor_b32 v{t1}, v{t1}, v{V_CW}")
    A(f"v_lshl_add_u32 v{t0}, v{t1}, 5, v{t0}")
    A(f"v_and_b32 v{t1}, 1, v1")
    A(f"v_lshl_add_u32 v{t0}, v{t1}, 4, v{t0}")
    A(f"s_lshl_b32 s{T1}, s{S_CT}, 7")
    A(f"v_add_u32 v{V_CW}, s{T1}, v{t0}")
    for s in range(n): cW(s)

CACC = 24
CWF = 88
CAF = 104

def phaseC():
    wq = S_RT
    A("v_lshrrev_b32 v5, 5, v1")
    A("v_bfe_u32 v6, v1, 2, 2")
    A("v_lshl_add_u32 v5, v5, 2, v6")
    A("v_lshlrev_b32 v5, 7, v5")
    A("v_and_b32 v6, 2, v6")
    A("v_bfe_u32 v7, v1, 4, 1")
    A("v_xor_b32 v6, v6, v7")
    A("v_lshl_add_u32 v5, v6, 5, v5")
    A("v_and_b32 v6, 3, v1")
    A("v_lshl_add_u32 v5, v6, 3, v5")
    A("v_xor_b32 v6, 64, v5")
    A(f"v_add_u32 v{V_CT}, s{S_RING}, v5")
    A(f"v_add_u32 v{V_CT+1}, s{S_RING}, v6")
    A(f"s_mul_i32 s{T0}, s{wq}, 7")
    A(f"s_lshr_b32 s{T0}, s{T0}, 1")
    A("v_bfe_u32 v5, v1, 2, 2")
    A(f"v_add_u32 v5, s{T0}, v5")
    A("v_and_b32 v6, 16, v1")
    A("v_cmp_ne_u32 vcc, 0, v6")
    A("v_lshlrev_b32 v5, 7, v5")
    A("v_bfe_u32 v6, v1, 1, 1")
    A("v_lshl_add_u32 v5, v6, 3, v5")
    A(f"v_mov_b32 v6, {14*128}")
    A("v_cndmask_b32 v5, v5, v6, vcc")
    A("v_and_b32 v6, 1, v1")
    A(f"s_lshl_b32 s{T1}, s{S_RB64}, 1")
    A(f"v_add_u32 v6, s{T1}, v6")
    A("v_lshl_add_u32 v5, v6, 11, v5")
    A(f"v_add_u32 v5, {WS_FH}, v5")
    A("v_bfe_u32 v7, v1, 1, 2")
    A(f"s_lshl_b32 s{T0}, s{wq}, 2")
    A(f"v_add_u32 v7, s{T0}, v7")
    A("v_lshlrev_b32 v7, 7, v7")
    A("v_lshl_add_u32 v7, v6, 11, v7")
    A(f"v_add_u32 v7, {WS_FO}, v7")
    S_H0, S_H1, S_O0 = S_KOFF, S_VOFF, S_IT
    A(f"s_mul_i32 s{S_H0}, s{S_RB64}, {2*H_RT}")
    A(f"s_mul_i32 s{T0}, s{wq}, {28*1024}")
    A(f"s_add_u32 s{S_H0}, s{S_H0}, s{T0}")
    A(f"s_add_u32 s{S_H0}, s{S_H0}, {WS_H}")
    A(f"s_add_u32 s{S_H1}, s{S_H0}, {H_RT}")
    A(f"s_lshl_b32 s{S_O0}, s{S_RB64}, 16")
    A(f"s_lshl_b32 s{T0}, s{wq}, 13")
    A(f"s_add_u32 s{S_O0}, s{S_O0}, s{T0}")
    A(f"s_add_u32 s{S_O0}, s{S_O0}, {WS_O}")
    A("v_and_b32 v8, 31, v1")
    A("v_lshlrev_b32 v8, 2, v8")
    A(f"s_lshl_b32 s{T0}, s{S_RB64}, 8")
    A(f"s_add_u32 s{T0}, s{T0}, {WS_G}")
    poll(5, V_T)
    stamp(4)
    A.vm_issued = 0
    for k in list(CTOK): CTOK[k] = 0
    def af(s, rt2): return CAF + 8 * (s % RING_N) + 4 * rt2
    def cA(s):
        for rt2 in range(2):
            if s < 28:
                base = S_H0 if rt2 == 0 else S_H1
                hi, lo = divmod(s, 4)
                if hi:
                    A(f"s_add_u32 s{T7}, s{base}, {hi*4096}")
                    so = T7
                else: so = base
                t = A.vm(f"buffer_load_dwordx4 {vr(af(s,rt2),4)}, v{V_L16}, {srd(SRD_WS)}, s{so} offen offset:{lo*1024} sc1")
            else:
                hi, lo = divmod(s - 28, 4)
                A(f"s_add_u32 s{T7}, s{S_O0}, {rt2*O_RT + hi*4096}")
                t = A.vm(f"buffer_load_dwordx4 {vr(af(s,rt2),4)}, v{V_L16}, {srd(SRD_WS)}, s{T7} offen offset:{lo*1024} sc1")
        CTOK[("A", s)] = t
    A.vm(f"buffer_load_dword v9, v8, {srd(SRD_WS)}, s{T0} offen sc1")
    A.vm(f"buffer_load_dword v10, v8, {srd(SRD_WS)}, s{T0} offen offset:128 sc1")
    for s in range(RING_N): cA(s)
    def reads(s):
        fb = CWF + 8 * (s & 1)
        for t2 in range(2):
            for a in range(2):
                A(f"ds_read_b64_tr_b16 {vr(fb+4*t2+2*a,2)}, v{V_CT+t2} offset:{(s % RING_N)*2048 + a*1024}")
    def mf(s):
        fb = CWF + 8 * (s & 1)
        for rt2 in range(2):
            for t2 in range(2):
                acc = CACC + 16 * (2 * rt2 + t2)
                c = "0" if s == 0 else vr(acc, 16)
                A(f"v_mfma_f32_32x32x16_bf16 {vr(acc,16)}, {vr(fb+4*t2,4)}, {vr(af(s,rt2),4)}, {c}")
    def run(s0, s1):
        A.vm_wait(CTOK[("W", s0)])
        reads(s0)
        for s in range(s0, s1):
            if s + 1 < s1:
                A.vm_wait(max(CTOK[("W", s + 1)], CTOK[("A", s)]))
                reads(s + 1)
                A("s_waitcnt lgkmcnt(4)")
            else:
                A.vm_wait(CTOK[("A", s)], "lgkmcnt(0)")
            if OPT["cprio"]: A(f"s_setprio {OPT['cprio']}")
            mf(s)
            if OPT["cprio"]: A("s_setprio 0")
            n = s + RING_N
            if n < 36 and ("W", n) not in CTOK: cW(n)
            if n < 28: cA(n)
    run(0, 28)
    stamp(5)
    A("v_sub_f32 v9, 1.0, v9")
    A("v_sub_f32 v10, 1.0, v10")
    for rt2 in range(2):
        for i in range(32): A(f"v_mul_f32 v{CACC+32*rt2+i}, v{CACC+32*rt2+i}, v{9+rt2}")
    poll(7, V_T, sleep=1)
    stamp(6)
    A.vm_issued = 0
    for k in list(CTOK): CTOK[k] = 0
    assert RING_N >= 8
    for s in range(28, 36): cA(s)
    run(28, 36)
    A("v_and_b32 v5, 31, v1")
    A("v_lshrrev_b32 v6, 5, v1")
    A("v_and_b32 v7, 7, v1")
    A("v_xor_b32 v6, v6, v7")
    A("v_lshlrev_b32 v5, 8, v5")
    A("v_lshl_add_u32 v5, v6, 4, v5")
    A(f"v_add_u32 v5, s{S_RING}, v5")
    for G2 in range(4):
        A(f"v_xor_b32 v{8+G2}, {G2 << 5}, v5")
    for rt2 in range(2):
        for t2 in range(2):
            for q in range(4):
                A(f"ds_write_b128 v{8+q}, {vr(CACC+16*(2*rt2+t2)+4*q,4)} offset:{rt2*8192 + t2*128}")
    A("s_waitcnt lgkmcnt(0)")
    A("s_barrier")
    A("v_lshrrev_b32 v5, 3, v1")
    A("v_and_b32 v6, 7, v1")
    A("v_lshlrev_b32 v7, 1, v6")
    A("v_xor_b32 v7, v7, v5")
    A(f"s_lshl_b32 s{T0}, s{wq}, 4")
    A(f"v_add_u32 v8, s{T0}, v5")
    A("v_lshlrev_b32 v9, 8, v8")
    A("v_lshl_add_u32 v9, v7, 4, v9")
    A("v_xor_b32 v10, 16, v9")
    A(f"v_add_u32 v11, {2*RING_B}, v9")
    A(f"v_add_u32 v12, {2*RING_B}, v10")
    R0 = CACC
    for p in range(4):
        for e in range(2):
            for z in range(2):
                ar = (9 if p < 2 else 11) + z
                A(f"ds_read_b128 {vr(R0+16*p+8*e+4*z,4)}, v{ar} offset:{(p & 1)*RING_B + e*2048}")
    A(f"s_lshl_b32 s{T0}, s{S_RB64}, 6")
    A(f"v_add_u32 v8, s{T0}, v8")
    A("v_mul_u32_u24 v8, 896, v8")
    A("v_lshl_add_u32 v8, v6, 4, v8")
    A(f"s_lshl_b32 s{T0}, s{S_CT}, 7")
    A("s_waitcnt lgkmcnt(8)")
    for i in range(16): A(f"v_add_f32 v{R0+i}, v{R0+i}, v{R0+16+i}")
    A("s_waitcnt lgkmcnt(0)")
    for i in range(16): A(f"v_add_f32 v{R0+32+i}, v{R0+32+i}, v{R0+48+i}")
    for i in range(16): A(f"v_add_f32 v{R0+i}, v{R0+i}, v{R0+32+i}")
    for i in range(8): A(f"v_cvt_pk_bf16_f32 v{R0+16+i}, v{R0+2*i}, v{R0+2*i+1}")
    A(f"buffer_store_dwordx4 {vr(R0+16,4)}, v8, {srd(SRD_OUT)}, s{T0} offen")
    A(f"s_add_u32 s{T0}, s{T0}, {8*896}")
    A(f"buffer_store_dwordx4 {vr(R0+20,4)}, v8, {srd(SRD_OUT)}, s{T0} offen")
    stamp(7)
    prof_dump(2)
    A("s_endpgm")

def main():
    prologue()
    A(f"s_cmp_ge_u32 s{S_SLOT}, 28")
    A("s_cbranch_scc1 L_gate")
    phaseA_setup()
    st0 = PA()
    st0.dma(2 * OPT["pre1"])
    if OPT["gtouch"]: global_touch()
    A("s_barrier")
    st0.dma(2 * (OPT["pre2"] - OPT["pre1"]))
    prologue2()
    stamp2(1)
    vm0 = A.vm_issued
    A(f"s_cmp_ge_u32 s{S_W}, 4")
    A("s_cbranch_scc1 L_A_g")
    phaseA_readbases(0)
    A(f"s_cmp_ge_u32 s{S_J}, 10")
    A("s_cbranch_scc1 L_A_vvv")
    A(f"s_cmp_eq_u32 s{S_J}, 9")
    A("s_cbranch_scc1 L_A_kvv")
    s1 = roleA_pass1(st0, vm0, [False, False, False]); e1 = (A.vm_issued, s1.dq, dict(s1.tok), s1.tagtok, list(STORES), A.lg_issued, A.lg_done, dict(s1.rtok))
    A.label("L_A_p2")
    roleA_pass2(s1)
    attention()
    A.label("L_A_g")
    roleG_phaseA(st0, vm0)
    phaseC()
    for lab, fl in (("L_A_vvv", [True, True, True]), ("L_A_kvv", [False, True, True])):
        A.label(lab)
        s2 = roleA_pass1(st0, vm0, fl)
        assert (A.vm_issued, s2.dq, dict(s2.tok), s2.tagtok, list(STORES), A.lg_issued, A.lg_done, dict(s2.rtok)) == e1
        A("s_branch L_A_p2")
    A.label("L_gate")
    gate_path()
    touch_path()
    attention_slow()
    A.label("L_end")
    body = A.finalize()
    hdr = open(f"cdna_kernels/{NAME}.s.ref").read().split("; Override launch")[0]
    text = hdr + f"""; @launch grid=(256,1,1) block=(512,1,1) lds={LDS_BYTES}
.amdgcn_target "amdgcn-amd-amdhsa--gfx950"
.text
.globl {NAME}_kernel
.p2align 8
.type {NAME}_kernel,@function
{NAME}_kernel:
{body}    s_endpgm
L_codeend:
.section .rodata,"a"
.p2align 6
.amdhsa_kernel {NAME}_kernel
  .amdhsa_next_free_vgpr 256
  .amdhsa_next_free_sgpr 102
  .amdhsa_accum_offset 256
  .amdhsa_group_segment_fixed_size 0
  .amdhsa_kernarg_size 88
  .amdhsa_user_sgpr_count 2
  .amdhsa_user_sgpr_kernarg_segment_ptr 1
  .amdhsa_system_sgpr_workgroup_id_x 1
.end_amdhsa_kernel
"""
    open(OUT, "w").write(text)
    print("wrote", OUT, len(text), "bytes,", len(A.ins), "instructions")

main()
```

```python
import math, struct, sys, os, copy
from collections import deque
sys.path.insert(0, os.path.dirname(os.path.abspath(__file__)))
from asmlib import Asm

NAME = "gated_mix__mha_block__geglu_ffn__prompt"
OPT = dict(hold=15, holdn=64, tmap=1, tfirst=0, vlay=1, fullf=1, profile=0, rt=0, sp2=0, barm=1, fill=6, force_slow=0, exp="", codepf=1, qflag=36, qpoll=54, gpch=18, yld=0, prio=2, gprio=3, cprio=0, cpre=3, gtouch=1, pre1=2, pre2=5, ring=13, vbar="14:21,15:22,16:23,17:27", lead=4, touch=1)
for a in sys.argv[1:]:
    if "=" in a:
        k, v = a.split("=", 1)
        OPT[k] = int(v) if v.lstrip("-").isdigit() else v
OUT = OPT.get("out", f"cdna_kernels/{NAME}.s")

def f32(x): return "0x%08x" % struct.unpack("<I", struct.pack("<f", x))[0]

WS_QK = 0x000000
QK_RT = 112 * 512
WS_VT = 0x400000
VT_KT = 4 * 7168
WS_H = 0x600000
H_RT = 112 * 1024
WS_O = 0xD00000
O_RT = 32 * 1024
WS_G = 0xF00000
WS_FQ = 0xF10000
WS_FH = 0xF20000
WS_FO = 0xF40000
WS_PROF = 0xF80000
WS_SIZE = 0x1000000

LOG2E = 1.4426950408889634
QSCALE = LOG2E / math.sqrt(28.0)
GK0 = -2.0 * math.sqrt(2.0 / math.pi) * LOG2E
GK1 = GK0 * 0.044715

S_W = 3
SRD_X, SRD_QKV, SRD_GU, SRD_WD, SRD_WO, SRD_WS, SRD_OUT, SRD_DBG, SRD_GW = 4, 8, 12, 16, 20, 24, 28, 32, 36
S_XCD, S_SLOT, S_RB, S_J, S_RT, S_RTG = 40, 41, 42, 43, 44, 45
S_MA, S_MX, S_MV = 46, 47, 48
S_HB = 49
T0, T1, T2, T3, T4, T5, T6, T7 = 50, 51, 52, 53, 54, 55, 56, 57
S_CNT = 58
S_HF = 59
S_TAG = 60
S_HEAD, S_QB, S_RB64, S_CT = 62, 63, 64, 65
S_VMASK = 66
S_KOFF, S_VOFF, S_IT, S_C0 = 68, 69, 70, 71
S_PROF = 72
S_PC = 96
S_KVJ, S_QRT = 98, 99
S_OK = 46
S_QOFF = 48
S_OOFF = 47
def srd(n): return f"s[{n}:{n+3}]"
def vr(a, n): return f"v[{a}:{a+n-1}]"

SLOT = 16384
NSLOT = 10
RING_N = OPT["ring"]
RING_B = 13 * 2048
LDS_AR = 4 * RING_B
LDS_CNT = LDS_AR + 49152
LDS_BYTES = 163840

A = Asm()
_lbl = [0]
def newlabel(p):
    _lbl[0] += 1
    return f"L_{p}_{_lbl[0]}"

CLK = "s_memrealtime" if OPT["rt"] else "s_memtime"
def stamp2(k):
    if OPT["profile"] == 2:
        A(f"{CLK} s[{S_PROF+2*k}:{S_PROF+2*k+1}]")

def stamp(k):
    if OPT["profile"] == 2 and k > 0: return
    if OPT["profile"]:
        A(f"{CLK} s[{S_PROF+2*k}:{S_PROF+2*k+1}]")
        if k == 0: A(f"s_memrealtime s[{S_PROF+20}:{S_PROF+21}]")

def prof_dump(vtmp):
    if not OPT["profile"]: return
    A("s_waitcnt vmcnt(0)")
    A(f"s_memrealtime s[{S_PROF+22}:{S_PROF+23}]")
    A("s_waitcnt lgkmcnt(0)")
    A(f"s_lshl_b32 s{T0}, s2, 3")
    A(f"s_add_u32 s{T0}, s{T0}, s{S_W}")
    A(f"s_lshl_b32 s{T0}, s{T0}, 6")
    A(f"s_add_u32 s{T0}, s{T0}, {WS_PROF}")
    A(f"v_mov_b32 v{vtmp}, s{T0}")
    A("s_mov_b64 exec, 1")
    for k in range(12):
        A(f"v_mov_b32 v{vtmp+1}, s{S_PROF+2*k}")
        A(f"buffer_store_dword v{vtmp+1}, v{vtmp}, {srd(SRD_WS)}, 0 offen offset:{4*k}")
    A(f"v_mov_b32 v{vtmp+1}, s100")
    A(f"buffer_store_dword v{vtmp+1}, v{vtmp}, {srd(SRD_WS)}, 0 offen offset:48")
    A("s_mov_b64 exec, -1")

def poll(vaddr, vtmp, sleep=2):
    L = newlabel("poll"); D = newlabel("polld")
    A(f"s_mov_b32 s{S_CNT}, 0x4000")
    A.label(L)
    A(f"buffer_load_dwordx2 {vr(vtmp,2)}, v{vaddr}, {srd(SRD_WS)}, 0 offen sc1")
    A("s_waitcnt vmcnt(0)")
    A(f"v_cmp_ne_u64 vcc, s[{S_TAG}:{S_TAG+1}], {vr(vtmp,2)}")
    A(f"s_cbranch_vccz {D}")
    A(f"s_sleep {sleep}")
    A(f"s_sub_u32 s{S_CNT}, s{S_CNT}, 1")
    A(f"s_cmp_lg_u32 s{S_CNT}, 0")
    A(f"s_cbranch_scc1 {L}")
    A.label(D)

def get_tag_spin(vtmp):
    L = newlabel("tag"); D = newlabel("tagd")
    A(f"s_mov_b32 s{S_CNT}, 0x4000")
    A(f"v_mov_b32 v{vtmp+2}, 0")
    A.label(L)
    A(f"buffer_load_dwordx2 {vr(vtmp,2)}, v{vtmp+2}, {srd(SRD_DBG)}, 0 offen sc1")
    A("s_waitcnt vmcnt(0)")
    A(f"v_readfirstlane_b32 s{S_TAG}, v{vtmp}")
    A(f"v_readfirstlane_b32 s{S_TAG+1}, v{vtmp+1}")
    A(f"s_cmp_lg_u32 s{S_TAG+1}, 0")
    A(f"s_cbranch_scc1 {D}")
    A("s_sleep 4")
    A(f"s_sub_u32 s{S_CNT}, s{S_CNT}, 1")
    A(f"s_cmp_lg_u32 s{S_CNT}, 0")
    A(f"s_cbranch_scc1 {L}")
    A.label(D)

def flag_store(soff_reg, vtmp):
    A(f"v_mov_b32 v{vtmp}, s{S_TAG}")
    A(f"v_mov_b32 v{vtmp+1}, s{S_TAG+1}")
    A(f"v_mov_b32 v{vtmp+2}, 0")
    A("s_mov_b64 exec, 1")
    t = A.vm(f"buffer_store_dwordx2 {vr(vtmp,2)}, v{vtmp+2}, {srd(SRD_WS)}, s{soff_reg} offen sc1")
    A("s_mov_b64 exec, -1")
    return t

V_X0, V_X1, V_Q, V_F, V_XB = 2, 3, 4, 5, 6
V_TB = 7
V_TV = 10
V_VA = 11
V_XA = 15
V_L16 = 16
V_G = 17
V_T = 18
XF = 24
ACC1 = 136
FS1 = (240, 200, 224)
FS2 = (216, 200, 208)
ACC2 = 224
TMP8 = 24
TMPV = 184
VB = 24
QF = 56
KB = 88
PB = 120
PL = 128
OA = 136
SB = 200

def mk_srd(n, p, size):
    A(f"s_mov_b32 s{n}, s{p}")
    A(f"s_mov_b32 s{n+1}, s{p+1}")
    A(f"s_mov_b32 s{n+2}, {size}")
    A(f"s_mov_b32 s{n+3}, 0x00020000")

def prologue():
    if OPT["profile"]: A("s_memrealtime s[100:101]")
    A("s_cmp_ge_u32 s2, 256")
    A("s_cbranch_scc1 L_end")
    A("s_load_dwordx16 s[72:87], s[0:1], 0")
    A("s_load_dwordx4 s[88:91], s[0:1], 64")
    A("s_load_dwordx2 s[92:93], s[0:1], 80")
    A(f"s_lshr_b32 s{S_SLOT}, s2, 3")
    if OPT["codepf"]:
        A(f"s_getpc_b64 s[{S_PC}:{S_PC+1}]")
        A.label("L_pc")
        A(f"s_lshl_b32 s{T0}, s{S_SLOT}, 13")
        A("v_lshlrev_b32 v2, 4, v0")
        A(f"v_add_u32 v2, s{T0}, v2")
        A("v_and_b32 v2, 0xffff, v2")
        A("v_min_u32 v2, L_codeend-L_pc-16, v2")
        A.vm(f"global_load_dwordx4 v[252:255], v2, s[{S_PC}:{S_PC+1}]")
    A("v_lshrrev_b32 v1, 6, v0")
    A(f"v_readfirstlane_b32 s{S_W}, v1")
    A("v_and_b32 v1, 63, v0")
    A(f"s_and_b32 s{S_XCD}, s2, 7")
    A(f"s_and_b32 s{S_RT}, s{S_W}, 3")
    A(f"s_mul_i32 s{T0}, s{S_SLOT}, 37")
    A(f"s_lshr_b32 s{T0}, s{T0}, 8")
    A(f"s_mul_i32 s{T1}, s{T0}, 7")
    A(f"s_sub_u32 s{S_CT}, s{S_SLOT}, s{T1}")
    A(f"s_lshr_b32 s{T2}, s{S_XCD}, 1")
    A(f"s_lshl_b32 s{T2}, s{T2}, 2")
    A(f"s_add_u32 s{S_RB}, s{T2}, s{T0}")
    A(f"s_and_b32 s{T3}, s{S_XCD}, 1")
    A(f"s_mul_i32 s{T3}, s{T3}, 7")
    A(f"s_add_u32 s{S_J}, s{T3}, s{S_CT}")
    A(f"s_lshl_b32 s{S_RB64}, s{S_XCD}, 2")
    A(f"s_add_u32 s{S_RB64}, s{S_RB64}, s{T0}")

def prologue2():
    A(f"s_lshr_b32 s{T4}, s{S_SLOT}, 4")
    A(f"s_lshl_b32 s{S_HEAD}, s{S_XCD}, 1")
    A(f"s_add_u32 s{S_HEAD}, s{S_HEAD}, s{T4}")
    A(f"s_and_b32 s{S_QB}, s{S_SLOT}, 15")
    A(f"s_lshl_b32 s{S_RTG}, s{S_RB}, 2")
    A(f"s_add_u32 s{S_RTG}, s{S_RTG}, s{S_RT}")
    mk_srd(SRD_WO, 76, 448 * 896)
    mk_srd(SRD_WD, 84, 1792 * 896)
    mk_srd(SRD_GW, 86, 896)
    mk_srd(SRD_OUT, 88, 2048 * 896)
    mk_srd(SRD_DBG, 90, 256)
    if OPT.get("wsoff"):
        A(f"s_add_u32 s92, s92, {OPT['wsoff'] << 20}")
        A("s_addc_u32 s93, s93, 0")
    mk_srd(SRD_WS, 92, WS_SIZE)
    A(f"v_lshlrev_b32 v{V_L16}, 4, v1")
    stamp(0)

def publish_tag():
    sk = newlabel("notag")
    A(f"s_xor_b32 s{T0}, s2, 224")
    A(f"s_or_b32 s{T0}, s{T0}, s{S_W}")
    A(f"s_cmp_lg_u32 s{T0}, 0")
    A(f"s_cbranch_scc1 {sk}")
    A(f"s_memrealtime s[{S_TAG}:{S_TAG+1}]")
    A("s_waitcnt lgkmcnt(0)")
    A(f"s_or_b32 s{S_TAG+1}, s{S_TAG+1}, 0x80000000")
    A(f"v_mov_b32 v2, s{S_TAG}")
    A(f"v_mov_b32 v3, s{S_TAG+1}")
    A("v_mov_b32 v4, 0")
    A("s_mov_b64 exec, 1")
    A(f"buffer_store_dwordx2 v[2:3], v4, {srd(SRD_DBG)}, 0 offen sc1")
    A("s_mov_b64 exec, -1")
    A.label(sk)

def phaseA_setup():
    w = S_W
    A(f"s_lshl_b32 s{S_MA}, s{w}, 10")
    A(f"s_lshl_b32 s{S_MX}, s{w}, 11")
    A(f"s_lshr_b32 s{T0}, s{w}, 2")
    A(f"s_lshl_b32 s{S_MV}, s{T0}, 13")
    A(f"s_lshl_b32 s{T1}, s{S_RT}, 10")
    A(f"s_add_u32 s{S_MV}, s{S_MV}, s{T1}")
    t0, t1, t2, t3 = V_T, V_T + 1, V_T + 2, V_T + 3
    A(f"s_lshl_b32 s{T1}, s{S_RB}, 7")
    A(f"s_lshl_b32 s{T2}, s{w}, 4")
    A(f"s_add_u32 s{T1}, s{T1}, s{T2}")
    A(f"v_lshrrev_b32 v{t0}, 3, v1")
    A(f"v_add_u32 v{t1}, s{T1}, v{t0}")
    A(f"v_mul_u32_u24 v{t1}, 896, v{t1}")
    A(f"v_lshrrev_b32 v{t2}, 4, v1")
    A(f"v_and_b32 v{t3}, 7, v1")
    A(f"v_xor_b32 v{t3}, v{t3}, v{t2}")
    A(f"v_lshl_add_u32 v{V_X0}, v{t3}, 4, v{t1}")
    A(f"v_xor_b32 v{t3}, 4, v{t3}")
    A(f"v_lshl_add_u32 v{V_X1}, v{t3}, 4, v{t1}")
    A(f"v_add_u32 v{V_X1}, {8*896}, v{V_X1}")
    A(f"s_lshl_b32 s{T1}, s{w}, 2")
    A(f"v_add_u32 v{t1}, s{T1}, v{t2}")
    A(f"v_mul_u32_u24 v{t1}, 2688, v{t1}")
    A(f"v_bfe_u32 v{t3}, v1, 1, 3")
    A(f"v_lshlrev_b32 v{V_Q}, 1, v{t2}")
    A(f"v_xor_b32 v{t3}, v{t3}, v{V_Q}")
    A(f"v_lshl_add_u32 v{t1}, v{t3}, 5, v{t1}")
    A(f"v_and_b32 v{t3}, 1, v1")
    A(f"v_lshl_add_u32 v{t1}, v{t3}, 4, v{t1}")
    A(f"s_mul_i32 s{T1}, s{S_J}, 3")
    A(f"s_lshr_b32 s{T1}, s{T1}, 1")
    A(f"s_lshl_b32 s{T1}, s{T1}, 7")
    A(f"v_add_u32 v{V_Q}, s{T1}, v{t1}")
    A(f"s_lshl_b32 s{T1}, s{S_RT}, 3")
    A(f"v_add_u32 v{t1}, s{T1}, v{t0}")
    A(f"v_mul_u32_u24 v{t1}, 3584, v{t1}")
    A(f"v_lshl_add_u32 v{t1}, v{t3}, 4, v{t1}")
    A(f"v_bfe_u32 v{t3}, v1, 1, 2")
    A(f"v_bfe_u32 v{V_F}, v1, 4, 1")
    A(f"v_lshlrev_b32 v{V_F}, 1, v{V_F}")
    A(f"v_add_u32 v{V_F}, s{T0}, v{V_F}")
    A(f"v_xor_b32 v{t3}, v{t3}, v{V_F}")
    A(f"v_lshl_add_u32 v{t1}, v{t3}, 5, v{t1}")
    A(f"s_lshl_b32 s{T1}, s{S_J}, 8")
    A(f"v_add_u32 v{V_F}, s{T1}, v{t1}")
    A("s_waitcnt lgkmcnt(0)")
    mk_srd(SRD_X, 72, 2048 * 896)
    mk_srd(SRD_QKV, 74, 448 * 2688)
    A(f"s_cmp_ge_u32 s{S_W}, 4")
    A(f"s_cselect_b32 s{SRD_GU}, s82, s80")
    A(f"s_cselect_b32 s{SRD_GU+1}, s83, s81")
    A(f"s_mov_b32 s{SRD_GU+2}, {448*3584}")
    A(f"s_mov_b32 s{SRD_GU+3}, 0x00020000")

def issue_half(it, e):
    slot = (it % NSLOT) * SLOT
    if it < 21:
        c, k = divmod(it, 3)
        if k == 0:
            A(f"s_add_u32 m0, s{S_MX}, {slot + 1024*e}")
            A(f"s_movk_i32 s{T6}, {c*128}")
            return A.vm(f"buffer_load_dwordx4 v{V_X0+e}, {srd(SRD_X)}, s{T6} offen lds")
        b = 2 * c + k - 1
        if e == 0:
            A(f"s_add_u32 m0, s{S_MA}, {slot}")
            A(f"s_mov_b32 s{T6}, {b*32*2688}")
            return A.vm(f"buffer_load_dwordx4 v{V_Q}, {srd(SRD_QKV)}, s{T6} offen lds")
        A(f"s_add_u32 m0, s{S_MA}, {slot+8192}")
        A(f"s_mov_b32 s{T6}, {b*32*3584}")
        return A.vm(f"buffer_load_dwordx4 v{V_F}, {srd(SRD_GU)}, s{T6} offen lds")
    v = it - 21
    A(f"s_add_u32 m0, s{S_MV}, {slot + 4096*e}")
    A(f"s_mov_b32 s{T6}, {(v*64+32*e)*3584+128}")
    return A.vm(f"buffer_load_dwordx4 v{V_F}, {srd(SRD_GU)}, s{T6} offen lds")

def phaseA_readbases(cg):
    hf, g16, r, c4 = V_T, V_T + 1, V_T + 2, V_T + 3
    u0, u1 = V_T + 4, V_T + 5
    A(f"v_lshrrev_b32 v{hf}, 5, v1")
    A(f"v_bfe_u32 v{g16}, v1, 4, 1")
    A(f"v_bfe_u32 v{r}, v1, 2, 2")
    A(f"v_and_b32 v{c4}, 3, v1")
    A(f"v_and_b32 v{u0}, 31, v1")
    A(f"s_lshl_b32 s{T1}, s{S_RT}, 5")
    A(f"v_add_u32 v{u0}, s{T1}, v{u0}")
    A(f"v_lshlrev_b32 v{u0}, 7, v{u0}")
    A(f"v_bfe_u32 v{u1}, v1, 1, 3")
    A(f"v_xor_b32 v{u1}, v{u1}, v{hf}")
    A(f"v_lshl_add_u32 v{V_XB}, v{u1}, 4, v{u0}")
    A(f"v_lshl_add_u32 v{u0}, v{hf}, 3, v{r}")
    A(f"v_and_b32 v{u1}, 2, v{r}")
    A(f"v_add_u32 v{u1}, v{u1}, v{g16}")
    A(f"v_lshlrev_b32 v{u1}, 5, v{u1}")
    A(f"v_lshl_add_u32 v{u1}, v{c4}, 3, v{u1}")
    A(f"v_lshl_add_u32 v{u1}, v{u0}, 7, v{u1}")
    A(f"v_lshl_add_u32 v{V_TV}, v{g16}, 13, v{u1}")
    if cg == 1:
        A(f"v_lshl_add_u32 v{V_TB}, v{g16}, 12, v{u1}")
        A(f"v_add_u32 v{V_TB}, 8192, v{V_TB}")
    else:
        A(f"v_lshlrev_b32 v{u0}, 8, v{u0}")
        A(f"v_lshl_add_u32 v{u0}, v{c4}, 3, v{u0}")
        A(f"v_lshlrev_b32 v{u1}, 1, v{r}")
        A(f"v_xor_b32 v{u1}, v{u1}, v{g16}")
        A(f"v_lshl_add_u32 v{u0}, v{u1}, 5, v{u0}")
        A(f"s_and_b32 s{T1}, s{S_J}, 1")
        for t in range(3):
            A(f"s_add_u32 s{T2}, s{T1}, {t}")
            A(f"s_lshl_b32 s{T2}, s{T2}, 6")
            A(f"v_xor_b32 v{V_TB+t}, s{T2}, v{u0}")
    A(f"v_mov_b32 v{V_T+4}, {f32(GK0)}")
    A(f"s_mul_i32 s{S_HB}, s{S_RTG}, {H_RT}")
    A(f"s_lshl_b32 s{T1}, s{S_J}, 13")
    A(f"s_add_u32 s{S_HB}, s{S_HB}, s{T1}")
    A(f"s_add_u32 s{S_HB}, s{S_HB}, {WS_H}")

STORES = []

def gelu_tile(acc, fs_add, tmp):
    F = []
    e = lambda s: F.append(lambda s=s: A(s))
    for i in range(8): e(f"v_mul_f32 v{tmp+i}, v{acc+i}, v{acc+i}")
    for i in range(8): e(f"v_fmamk_f32 v{tmp+i}, v{tmp+i}, {f32(GK1)}, v{V_T+4}")
    for i in range(8): e(f"v_mul_f32 v{tmp+i}, v{tmp+i}, v{acc+i}")
    for i in range(8):
        e(f"v_exp_f32 v{tmp+i}, v{tmp+i}")
        e(f"v_mul_f32 v{acc+i}, v{acc+i}, v{acc+8+i}")
    for i in range(8): e(f"v_add_f32 v{tmp+i}, 1.0, v{tmp+i}")
    for i in range(8): e(f"v_rcp_f32 v{tmp+i}, v{tmp+i}")
    for i in range(8): e(f"v_mul_f32 v{acc+i}, v{acc+i}, v{tmp+i}")
    for i in range(4): e(f"v_cvt_pk_bf16_f32 v{acc+8+i}, v{acc+2*i}, v{acc+2*i+1}")
    def st():
        A(f"s_add_u32 s{T7}, s{S_HB}, {fs_add*1024}")
        STORES.append(A.vm(f"buffer_store_dwordx4 {vr(acc+8,4)}, v{V_L16}, {srd(SRD_WS)}, s{T7} offen sc1"))
    F.append(st)
    return F

def qk_tile(acc, t):
    A(f"s_mul_i32 s{T3}, s{S_J}, 3")
    A(f"s_add_u32 s{T3}, s{T3}, {t}")
    sk = newlabel("noscale")
    A(f"s_mov_b32 s{T4}, {f32(QSCALE)}")
    A("s_nop 7")
    A(f"s_cmp_ge_u32 s{T3}, 14")
    A(f"s_cbranch_scc1 {sk}")
    for i in range(16): A(f"v_mul_f32 v{acc+i}, s{T4}, v{acc+i}")
    A.label(sk)
    for i in range(8): A(f"v_cvt_pk_bf16_f32 v{acc+i}, v{acc+2*i}, v{acc+2*i+1}")
    A(f"s_lshl_b32 s{T3}, s{T3}, 11")
    A(f"s_mul_i32 s{T4}, s{S_RTG}, {QK_RT}")
    A(f"s_add_u32 s{T3}, s{T3}, s{T4}")
    for a, b in ((0, 2), (1, 3), (4, 6), (5, 7)):
        A(f"v_permlane32_swap_b32 v{acc+a}, v{acc+b}")
    STORES.append(A.vm(f"buffer_store_dwordx4 {vr(acc,4)}, v{V_L16}, {srd(SRD_WS)}, s{T3} offen sc1"))
    STORES.append(A.vm(f"buffer_store_dwordx4 {vr(acc+4,4)}, v{V_L16}, {srd(SRD_WS)}, s{T3} offen offset:1024 sc1"))

def v_lane(dst):
    A(f"v_lshrrev_b32 v{dst}, 5, v1")
    A(f"v_mul_u32_u24 v{dst}, {7168 - 512}, v{dst}")
    A(f"v_add_u32 v{dst}, v{dst}, v{V_L16}")

def v_tile(acc, t, tmp):
    v_lane(tmp)
    A(f"s_mul_i32 s{T3}, s{S_J}, 1536")
    A(f"s_mul_i32 s{T4}, s{S_RTG}, {VT_KT}")
    A(f"s_add_u32 s{T3}, s{T3}, s{T4}")
    A(f"s_add_u32 s{T3}, s{T3}, {WS_VT + (t-28)*512}")
    A(f"s_add_u32 s{T4}, s{T3}, {2*7168}")
    for i in range(8): A(f"v_cvt_pk_bf16_f32 v{acc+i}, v{acc+2*i}, v{acc+2*i+1}")
    STORES.append(A.vm(f"buffer_store_dwordx4 {vr(acc,4)}, v{tmp}, {srd(SRD_WS)}, s{T3} offen sc1"))
    STORES.append(A.vm(f"buffer_store_dwordx4 {vr(acc+4,4)}, v{tmp}, {srd(SRD_WS)}, s{T4} offen sc1"))

STEPS = []
for _b in range(14):
    for _ks in range(2): STEPS.append((_b, _ks == 0, 1, _ks, 2 * _b + _ks))
for _v in range(7):
    for _ks in range(4): STEPS.append((14 + _v, _ks == 0, 2, _ks, 4 * _v + _ks))
def items_of(ch):
    if ch < 14:
        return [3 * (ch // 2), 3 * (ch // 2) + 1] if ch % 2 == 0 else [3 * (ch // 2) + 2]
    return [21 + ch - 14]
CONSUMED = {it: ch for ch in range(21) for it in items_of(ch)}
def avail(it):
    free = -1 if it < NSLOT else CONSUMED[it - NSLOT] + 1
    return max(free, min(CONSUMED[it] - OPT["lead"], 14))

BARR = {ch: items_of(ch)[-1] for ch in range(14)}
for _x in OPT["vbar"].split(","):
    _c, _i = _x.split(":"); BARR[int(_c)] = int(_i)
assert max(BARR.values()) == 27

def cnt_init(second):
    sk = newlabel("cinit")
    A(f"s_cmp_lg_u32 s{S_W}, 0")
    A(f"s_cbranch_scc1 {sk}")
    A(f"v_lshlrev_b32 v{V_T}, 2, v1")
    A(f"v_add_u32 v{V_T}, {LDS_CNT}, v{V_T}")
    A(f"v_cmp_eq_u32 vcc, 1, v1")
    A(f"v_cndmask_b32 v{V_T+1}, 0, {second}, vcc")
    A(f"ds_write_b32 v{V_T}, v{V_T+1}")
    A.label(sk)

def cnt_add(off, va, vb):
    A(f"v_mov_b32 v{va}, {LDS_CNT + off}")
    A(f"v_mov_b32 v{vb}, 1")
    A("s_waitcnt lgkmcnt(0)")
    A.lg_all()
    A("s_mov_b64 exec, 1")
    A(f"ds_add_u32 v{va}, v{vb}")
    A("s_mov_b64 exec, -1")

def cnt_wait(off, target, va, vb):
    L = newlabel("cnt"); D = newlabel("cntd")
    A(f"v_mov_b32 v{va}, {LDS_CNT + off}")
    A(f"s_mov_b32 s{S_CNT}, 0x100000")
    A.label(L)
    A(f"ds_read_b32 v{vb}, v{va}")
    A("s_waitcnt lgkmcnt(0)")
    A(f"v_readfirstlane_b32 s{T0}, v{vb}")
    A(f"s_cmp_ge_u32 s{T0}, {target}")
    A(f"s_cbranch_scc1 {D}")
    A(f"s_sub_u32 s{S_CNT}, s{S_CNT}, 1")
    A(f"s_cmp_lg_u32 s{S_CNT}, 0")
    A(f"s_cbranch_scc1 {L}")
    A.label(D)

class PA:
    def __init__(self):
        self.tok = {}; self.dq = 0; self.chunk = -1; self.fill = deque(); self.tagtok = None; self.hooks = {}; self.landed = -1; self.rtok = {}; self.xtok = {}; self.rate = OPT["fill"]
    def dma(self, n=1, force=False):
        for _ in range(n):
            it, e = divmod(self.dq, 2)
            if it >= 28 or (avail(it) > self.chunk and not (force and (it < NSLOT or CONSUMED[it - NSLOT] + 1 <= self.chunk))): return
            t = 0 if ("nodma" in OPT["exp"] and it >= 5) else issue_half(it, e)
            if e == 1: self.tok[it] = t
            self.dq += 1
    def drain(self, n):
        for _ in range(n):
            if not self.fill: break
            self.fill.popleft()()

def fbase(i, p): return (FS1 if p == 1 else FS2)[i % 3]

def pa_mfma_list(st, cg, vflags, i):
    ch, first, p, ks, gk = STEPS[i]
    fb = fbase(i, p)
    x = vr(XF + 4 * gk, 4)
    n = (3 if cg == 0 else 4) if p == 1 else 2
    out = []
    for t in range(n):
        def m(t=t):
            acc = (ACC1 if p == 1 else ACC2) + 16 * t
            c = "0" if gk == 0 else vr(acc, 16)
            w = vr(fb + 4 * t, 4)
            A.lg_wait(max(st.rtok.get((i, t), 0), st.xtok.get(gk, 0) if p == 1 else 0))
            if "nomfma" in OPT["exp"]:
                pass
            elif p == 1 and cg == 0 and vflags[t]:
                A(f"v_mfma_f32_32x32x16_bf16 {vr(acc,16)}, {x}, {w}, {c}")
            else:
                A(f"v_mfma_f32_32x32x16_bf16 {vr(acc,16)}, {w}, {x}, {c}")
        out.append(m)
    return out

def pa_gap(st, p):
    st.dma(1)
    if p == 2: st.drain(st.rate)

def pa_mfmas(st, cg, vflags, i):
    for m in pa_mfma_list(st, cg, vflags, i):
        m(); pa_gap(st, STEPS[i][2])

def pa_run(st, cg, vflags, i0, i1):
    n1 = 3 if cg == 0 else 4
    for i in range(i0, i1):
        Ms = pa_mfma_list(st, cg, vflags, i - 2) if i >= 2 else []
        pp = STEPS[i - 2][2] if i >= 2 else 1
        Rs = []
        if i < len(STEPS):
            ch, first, p, ks, gk = STEPS[i]
            bar = first and ch in BARR
            fb = fbase(i, p)
            n = n1 if p == 1 else 2
            pitch = 256 if (p == 1 and cg == 0) else 128
            def R(t):
                for a in range(2):
                    if "noread" in OPT["exp"]: continue
                    st.rtok[(i, t)] = A.lg(f"ds_read_b64_tr_b16 {vr(fb + 4*t + 2*a, 2)}, v{V_VA+t} offset:{(16*ks + 4*a) * pitch}")
            def X(kk):
                c = gk // 4
                xslot = ((3 * c) % NSLOT) * SLOT
                A(f"v_xor_b32 v{V_XA}, {xslot | (kk << 5)}, v{V_XB}")
                st.xtok[4 * c + kk] = A.lg(f"ds_read_b128 {vr(XF + 4*(4*c+kk), 4)}, v{V_XA}")
            Rs = [lambda t=t: R(t) for t in range(n)]
            if p == 1 and ch % 2 == 0:
                if ks == 0: Rs = [lambda: X(0)] + Rs + [lambda: X(1)]
                else: Rs = [lambda: X(2), lambda: X(3)] + Rs
            h = 0
            if bar:
                h = min(len(Ms), OPT["barm"])
                for m in Ms[:h]:
                    m(); pa_gap(st, pp)
                Ms = Ms[h:]
            if first:
                its = items_of(ch)
                if bar:
                    need = BARR[ch]
                    while need not in st.tok:
                        before = st.dq
                        st.dma(1, force=True)
                        assert st.dq != before, "item needed before its slot is free"
                    A.vm_wait(st.tok[need], "lgkmcnt(0)")
                    A.lg_all()
                    A("s_barrier")
                    st.chunk = ch
                    st.landed = need
                assert st.landed >= its[-1]
                SP = {0: 2, 1: 3, 3: 4, 6: 5, 9: 6, 12: 7, 14: 8, 18: 9} if not OPT["sp2"] else {13: 2, 14: 3, 15: 4, 16: 5, 17: 6, 18: 7, 19: 8, 20: 9}
                if ch in SP: stamp2(SP[ch])
                wslot = (its[-1] % NSLOT) * SLOT
                if p == 1:
                    for t in range(n1):
                        if cg == 0: A(f"v_add_u32 v{V_VA+t}, {wslot}, v{V_TB+t}")
                        else: A(f"v_xor_b32 v{V_VA+t}, {wslot | (t << 5)}, v{V_TB}")
                else:
                    for t in range(2):
                        A(f"v_xor_b32 v{V_VA+t}, {wslot | ((2*cg + t) << 5)}, v{V_TV}")
                if ch in st.hooks: st.hooks[ch]()
        if ("before", i) in st.hooks: st.hooks[("before", i)]()
        k = max(len(Ms), 1)
        per = -(-len(Rs) // k)
        for j in range(k):
            if j < len(Ms): Ms[j]()
            for r in Rs[j * per:(j + 1) * per]: r()
            if j < len(Ms): pa_gap(st, pp)
        if i < 2: st.dma(2)
        if ("after", i) in st.hooks: st.hooks[("after", i)]()

def tag_hooks(st):
    def issue():
        A(f"v_mov_b32 v{V_T+2}, 0")
        st.tagtok = A.vm(f"buffer_load_dwordx2 {vr(V_T,2)}, v{V_T+2}, {srd(SRD_DBG)}, 0 offen sc1")
    def check():
        A.vm_wait(st.tagtok)
        A(f"v_readfirstlane_b32 s{S_TAG}, v{V_T}")
        A(f"v_readfirstlane_b32 s{S_TAG+1}, v{V_T+1}")
        ok = newlabel("tagok")
        A(f"s_cmp_lg_u32 s{S_TAG+1}, 0")
        A(f"s_cbranch_scc1 {ok}")
        get_tag_spin(V_T)
        A.label(ok)
    return issue, check

def hflag_off(dst, cg):
    A(f"s_lshl_b32 s{dst}, s{S_RTG}, 4")
    A(f"s_add_u32 s{dst}, s{dst}, s{S_J}")
    A(f"s_lshl_b32 s{dst}, s{dst}, 7")
    A(f"s_add_u32 s{dst}, s{dst}, {WS_FH + 8*cg}")

def roleA_pass1(st0, vm0, vflags):
    global STORES
    STORES = []
    st = copy.deepcopy(st0)
    A.vm_issued = vm0
    A.lg_issued = 0; A.lg_done = 0
    issue, check = tag_hooks(st)
    st.hooks = {10: issue, 13: check, 14: lambda: cnt_init(0)}
    pa_run(st, 0, vflags, 0, 30)
    stamp(1)
    for t in range(3):
        acc = ACC1 + 16 * t
        if vflags[t]: v_tile(acc, t, TMPV)
        else: qk_tile(acc, t)
    return st

def interleave(a, b, every):
    out = []; b = list(b)
    for k, f in enumerate(a):
        out.append(f)
        if b and (k + 1) % every == 0: out.append(b.pop(0))
    return out, b

def o_arm_stores(tmp):
    for i in range(4): A(f"v_mov_b32 v{tmp+i}, -1")
    for ks in range(2):
        t = A.vm(f"buffer_store_dwordx4 {vr(tmp,4)}, v{V_L16}, {srd(SRD_WS)}, s{S_OOFF} offen offset:{1024*ks} sc1")
    return t

def o_arm_flag():
    A(f"s_sub_u32 s{T3}, s{S_OOFF}, {WS_O}")
    A(f"s_lshr_b32 s{T3}, s{T3}, 4")
    A(f"s_add_u32 s{T3}, s{T3}, {WS_FO}")
    flag_store(T3, V_T)

def poll2_issue():
    A.vm(f"buffer_load_dwordx2 {vr(V_T,2)}, v2, {srd(SRD_WS)}, 0 offen sc1")
    return A.vm(f"buffer_load_dwordx2 {vr(V_T+2,2)}, v3, {srd(SRD_WS)}, 0 offen sc1")

def poll2_test():
    A(f"v_cmp_ne_u64 vcc, s[{S_TAG}:{S_TAG+1}], {vr(V_T,2)}")
    A(f"v_cmp_ne_u64 s[{T2}:{T3}], s[{S_TAG}:{S_TAG+1}], {vr(V_T+2,2)}")
    A(f"s_or_b64 s[{T2}:{T3}], s[{T2}:{T3}], vcc")

def roleA_pass2(st):
    qstore = STORES[-1]
    e = lambda s: st.fill.append(lambda s=s: A(s))
    def hq():
        if "noqwait" not in OPT["exp"]: A.vm_wait(qstore)
        A(f"s_lshl_b32 s{T3}, s{S_J}, 6")
        A(f"s_add_u32 s{T3}, s{T3}, s{S_RTG}")
        A(f"s_lshl_b32 s{T3}, s{T3}, 3")
        A(f"s_add_u32 s{T3}, s{T3}, {WS_FQ}")
        flag_store(T3, V_T)
        stamp(7)
    ptok = []; atok = []
    def setup():
        assert st.dq == 56, st.dq
        st.fill.append(attn_setup)
        st.fill.append(lambda: atok.append(o_arm_stores(VB)))
        for i in range(32): e(f"v_mov_b32 v{VB+i}, v4")
    def hpoll():
        assert not st.fill
        A.vm_wait(atok[0])
        o_arm_flag()
        ptok.append(poll2_issue())
    st.hooks = {("before", OPT["qflag"]): hq, ("after", 39): setup, ("before", OPT["qpoll"]): hpoll,
                ("before", 57): lambda: cnt_add(4, V_VA, V_VA + 1)}
    for i in range(64):
        if "noafill" not in OPT["exp"]: e(f"v_mov_b32 v{OA+i}, 0")
    pa_run(st, 0, None, 30, 58)
    st.drain(10 ** 6)
    stamp(2)
    if "stopA" in OPT["exp"]:
        prof_dump(2); A("s_endpgm")
    hflag_off(S_HF, 0)
    A.vm_wait(ptok[-1])
    poll2_test()
    A("s_cbranch_scc1 L_attn_miss")
    stamp(3)
    g = gelu_tile(ACC2, 4, 200) + gelu_tile(ACC2 + 16, 5, 200)
    g2, left = interleave(g[:-1], attn_load_list(), 6)
    for f in g2 + left + g[-1:]: f()
    A("s_branch L_attn")
    A.label("L_attn_miss")
    A("s_nop 2")
    for f in gelu_tile(ACC2, 4, 200): f()
    poll2_issue()
    for f in gelu_tile(ACC2 + 16, 5, 200): f()
    stamp(8)
    A("s_waitcnt vmcnt(1)")
    poll2_test()
    A("s_cbranch_scc0 L_attn_go")
    A.label("L_attn_late")
    A(f"s_mov_b32 s{S_CNT}, 0x4000")
    A.label("L_attn_spin")
    poll2_issue()
    A("s_waitcnt vmcnt(0)")
    poll2_test()
    A("s_cbranch_scc0 L_attn_go")
    A(f"s_sub_u32 s{S_CNT}, s{S_CNT}, 1")
    A(f"s_cmp_lg_u32 s{S_CNT}, 0")
    A("s_cbranch_scc1 L_attn_spin")
    A.label("L_attn_go")
    A("s_nop 0")
    stamp(9)
    for f in attn_load_list(): f()

def roleG_phaseA(st0, vm0):
    global STORES
    STORES = []
    st = copy.deepcopy(st0)
    A.vm_issued = vm0
    A.lg_issued = 0; A.lg_done = 0
    phaseA_readbases(1)
    issue, check = tag_hooks(st)
    def epi1():
        stamp(1)
        if "nogelu" in OPT["exp"]: return
        for t in range(4): st.fill.extend(gelu_tile(ACC1 + 16 * t, t, TMP8))
    hooks = {10: issue, 13: check, ("after", 31): epi1, ("before", 57): lambda: cnt_add(4, V_VA, V_VA + 1)}
    if OPT["gprio"]: hooks[OPT["gpch"]] = lambda: A(f"s_setprio {OPT['gprio']}")
    st.hooks = hooks
    pa_run(st, 1, None, 0, 58)
    stamp(2)
    st.drain(10 ** 6)
    for t in range(2):
        for f in gelu_tile(ACC2 + 16 * t, 6 + t, TMP8): f()
    if OPT["gprio"]: A("s_setprio 0")
    if "stopA" in OPT["exp"]:
        prof_dump(2); A("s_endpgm")
    cnt_wait(4, 8, V_VA, V_VA + 1)
    phaseC_prefetch(OPT["cpre"])
    hflag_off(T3, 1)
    A.vm_wait(STORES[-1])
    flag_store(T3, V_T)
    stamp(3)
    for s in range(OPT["cpre"], RING_N): cW(s)

def gate_path():
    A(f"s_lshr_b32 s{T2}, s{S_XCD}, 1")
    A(f"s_lshl_b32 s{T2}, s{T2}, 2")
    A(f"s_sub_u32 s{T4}, s{S_SLOT}, 28")
    A(f"s_add_u32 s{S_RB}, s{T4}, s{T2}")
    A("s_waitcnt lgkmcnt(0)")
    mk_srd(SRD_X, 72, 2048 * 896)
    prologue2()
    A(f"s_cmp_ge_u32 s{S_W}, 4")
    A("s_cbranch_scc1 L_touch")
    publish_tag()
    cnt_init(8)
    A(f"s_and_b32 s{T0}, s{S_XCD}, 1")
    A(f"s_cmp_lg_u32 s{T0}, 0")
    A("s_cbranch_scc1 L_gate_skip")
    A("v_and_b32 v2, 31, v1")
    A(f"s_lshl_b32 s{T0}, s{S_RTG}, 5")
    A(f"v_add_u32 v2, s{T0}, v2")
    A("v_lshrrev_b32 v4, 5, v1")
    A("v_lshlrev_b32 v4, 4, v4")
    A("v_mul_u32_u24 v3, 896, v2")
    A("v_add_u32 v3, v3, v4")
    for i in range(16): A(f"v_mov_b32 v{136+i}, 0")
    A(f"s_mov_b32 s{T0}, 0")
    A.label("L_gate_loop")
    for k in range(4):
        A(f"buffer_load_dwordx4 {vr(24+4*k,4)}, v3, {srd(SRD_X)}, s{T0} offen offset:{k*32}")
        A(f"buffer_load_dwordx4 {vr(80+4*k,4)}, v4, {srd(SRD_GW)}, s{T0} offen offset:{k*32}")
    A("s_waitcnt vmcnt(0)")
    for k in range(4):
        A(f"v_mfma_f32_32x32x16_bf16 {vr(136,16)}, {vr(80+4*k,4)}, {vr(24+4*k,4)}, {vr(136,16)}")
    A(f"s_add_u32 s{T0}, s{T0}, 128")
    A(f"s_cmp_lt_u32 s{T0}, 896")
    A("s_cbranch_scc1 L_gate_loop")
    A(f"v_mul_f32 v5, {f32(-LOG2E)}, v136")
    A("v_exp_f32 v5, v5")
    A("v_add_f32 v5, 1.0, v5")
    A("v_rcp_f32 v5, v5")
    A("v_lshlrev_b32 v2, 2, v2")
    A(f"s_mov_b32 s{T0}, {WS_G}")
    A("s_mov_b32 exec_hi, 0")
    A(f"buffer_store_dword v5, v2, {srd(SRD_WS)}, s{T0} offen sc1")
    A("s_mov_b32 exec_hi, -1")
    get_tag_spin(V_T)
    A(f"s_lshl_b32 s{T3}, s{S_RTG}, 11")
    A(f"s_add_u32 s{T3}, s{T3}, {WS_FH + 14*128}")
    flag_store(T3, V_T)
    A.label("L_gate_skip")
    if "stopA" in OPT["exp"]: A("s_endpgm")
    attn_setup()
    for i in range(32): A(f"v_mov_b32 v{VB+i}, v4")
    for i in range(64): A(f"v_mov_b32 v{OA+i}, 0")
    o_arm_stores(SB)
    A("s_waitcnt vmcnt(0) lgkmcnt(0)")
    A("s_barrier")
    get_tag_spin(V_T)
    o_arm_flag()
    poll(2, V_T, sleep=8)
    stamp(3)
    A(f"s_mov_b32 s{S_HF}, 0")
    A("s_branch L_attn_late")

def global_touch():
    if OPT["tmap"]:
        A(f"s_mul_i32 s{T1}, s{S_RB}, 14")
        A(f"s_add_u32 s{T1}, s{T1}, s{S_J}")
        A(f"s_cmp_eq_u32 s{S_W}, 0")
        A(f"s_cselect_b32 s{T0}, s{T1}, s2")
    else:
        A(f"s_mul_i32 s{T0}, s{S_XCD}, 28")
        A(f"s_add_u32 s{T0}, s{T0}, s{S_SLOT}")
    A(f"s_lshl_b32 s{T0}, s{T0}, 13")
    A(f"v_lshlrev_b32 v{V_T}, 7, v1")
    dn = newlabel("gt"); l1 = newlabel("gt"); l2 = newlabel("gt")
    A(f"s_cmp_eq_u32 s{S_RT}, 2")
    A(f"s_cbranch_scc1 {l2}")
    A(f"s_cmp_eq_u32 s{S_W}, 1")
    A(f"s_cbranch_scc1 {l1}")
    A(f"s_cmp_eq_u32 s{S_W}, 0")
    A(f"s_cselect_b32 s{T0}, s{T0}, 0x10000000")
    A.vm(f"buffer_load_dword v{V_G}, v{V_T}, {srd(SRD_X)}, s{T0} offen")
    A(f"s_branch {dn}")
    A.label(l1)
    A(f"buffer_load_dword v{V_G}, v{V_T}, {srd(SRD_QKV)}, s{T0} offen")
    A(f"s_branch {dn}")
    A.label(l2)
    A(f"buffer_load_dword v{V_G}, v{V_T}, {srd(SRD_GU)}, s{T0} offen")
    A.label(dn)

def touch_path():
    A.label("L_touch")
    if not OPT["touch"]:
        A("s_endpgm"); return
    TW = T5
    A(f"s_sub_u32 s{T0}, s{S_SLOT}, 28")
    A(f"s_lshl_b32 s{T0}, s{T0}, 3")
    A(f"s_add_u32 s{T0}, s{T0}, s{S_XCD}")
    A(f"s_lshl_b32 s{T0}, s{T0}, 2")
    A(f"s_add_u32 s{TW}, s{T0}, s{S_RT}")
    tab = [(0, SRD_X, 2048 * 896, 896, 128), (32, 74, 448 * 2688, 128, 64 * 2688), (53, 80, 448 * 3584, 128, 64 * 3584),
           (81, 82, 448 * 3584, 128, 64 * 3584), (109, 76, 448 * 896, 128, 19 * 8192)]
    R = SRD_QKV
    for k, (f, p, nb, ls, rs) in enumerate(tab):
        if k == 0:
            A(f"s_mov_b32 s{R}, s{p}"); A(f"s_mov_b32 s{R+1}, s{p+1}"); A(f"s_mov_b32 s{R+2}, {nb}")
            A(f"s_mov_b32 s{T1}, {ls}"); A(f"s_mov_b32 s{T2}, {rs}"); A(f"s_mov_b32 s{T3}, {f}")
        else:
            A(f"s_cmp_ge_u32 s{TW}, {f}")
            A(f"s_cselect_b32 s{R}, s{p}, s{R}"); A(f"s_cselect_b32 s{R+1}, s{p+1}, s{R+1}"); A(f"s_cselect_b32 s{R+2}, {nb}, s{R+2}")
            A(f"s_cselect_b32 s{T1}, {ls}, s{T1}"); A(f"s_cselect_b32 s{T2}, {rs}, s{T2}"); A(f"s_cselect_b32 s{T3}, {f}, s{T3}")
    A(f"s_mov_b32 s{R+3}, 0x00020000")
    A(f"s_sub_u32 s{T3}, s{TW}, s{T3}")
    A(f"s_lshl_b32 s{T3}, s{T3}, 6")
    A(f"v_add_u32 v2, s{T3}, v1")
    A(f"v_mul_lo_u32 v2, v2, s{T1}")
    A(f"s_mov_b32 s{T4}, 0")
    for r in range(7):
        A(f"buffer_load_dword v{24+r}, v2, {srd(R)}, s{T4} offen")
        A(f"s_add_u32 s{T4}, s{T4}, s{T2}")
    A(f"s_lshl_b32 s{T3}, s{TW}, 6")
    A(f"v_add_u32 v2, s{T3}, v1")
    A("v_lshlrev_b32 v2, 7, v2")
    A(f"buffer_load_dword v32, v2, {srd(SRD_WD)}, 0 offen")
    A(f"s_mov_b32 s{T4}, {8192*128}")
    A(f"buffer_load_dword v33, v2, {srd(SRD_WD)}, s{T4} offen")
    A("v_and_b32 v2, 15, v1")
    A("v_lshlrev_b32 v2, 20, v2")
    A(f"buffer_load_dword v34, v2, {srd(SRD_WS)}, 0 offen")
    A(f"buffer_load_dword v35, v2, {srd(SRD_OUT)}, 0 offen")
    A("s_waitcnt vmcnt(0)")
    A("s_endpgm")

def div3(dst, src):
    A(f"s_mul_i32 s{dst}, s{src}, 43")
    A(f"s_lshr_b32 s{dst}, s{dst}, 7")

def attn_setup():
    h = S_HEAD
    A(f"s_mul_i32 s{S_C0}, s{h}, 7")
    A(f"s_lshr_b32 s{S_C0}, s{S_C0}, 1")
    A(f"s_lshr_b32 s{T0}, s{S_C0}, 2")
    A(f"s_add_u32 s{T1}, s{S_C0}, 3")
    A(f"s_lshr_b32 s{T1}, s{T1}, 2")
    div3(T6, T0)
    div3(T2, T1)
    A(f"s_lshl_b32 s{T2}, s{T2}, 8")
    A(f"s_or_b32 s{T6}, s{T6}, s{T2}")
    A(f"s_add_u32 s{T0}, s{T0}, 14")
    A(f"s_add_u32 s{T1}, s{T1}, 14")
    div3(S_KVJ, T0)
    div3(T2, T1)
    A(f"s_lshl_b32 s{T2}, s{T2}, 8")
    A(f"s_or_b32 s{S_KVJ}, s{S_KVJ}, s{T2}")
    A(f"s_mul_i32 s{T0}, s{h}, 28")
    A(f"s_add_u32 s{T1}, s{T0}, 27")
    A(f"s_lshr_b32 s{T0}, s{T0}, 5")
    A(f"s_lshr_b32 s{T1}, s{T1}, 5")
    A(f"s_add_u32 s{T0}, s{T0}, 28")
    A(f"s_add_u32 s{T1}, s{T1}, 28")
    div3(T2, T0)
    A(f"s_lshl_b32 s{T2}, s{T2}, 16")
    A(f"s_or_b32 s{S_KVJ}, s{S_KVJ}, s{T2}")
    div3(T2, T1)
    A(f"s_lshl_b32 s{T2}, s{T2}, 24")
    A(f"s_or_b32 s{S_KVJ}, s{S_KVJ}, s{T2}")
    A("v_lshrrev_b32 v2, 4, v1")
    A("v_lshlrev_b32 v2, 3, v2")
    A(f"v_lshrrev_b32 v2, v2, s{S_KVJ}")
    A("v_and_b32 v2, 0xff, v2")
    A("v_lshlrev_b32 v2, 6, v2")
    A("v_and_b32 v3, 15, v1")
    A(f"s_lshl_b32 s{T0}, s{S_W}, 4")
    A(f"v_add3_u32 v2, v2, v3, s{T0}")
    A("v_lshlrev_b32 v2, 3, v2")
    A(f"v_add_u32 v2, {WS_FQ}, v2")
    A("v_bfe_u32 v3, v1, 2, 1")
    A("v_lshlrev_b32 v3, 3, v3")
    A(f"v_lshrrev_b32 v3, v3, s{T6}")
    A("v_and_b32 v3, 0xff, v3")
    A("v_lshlrev_b32 v3, 6, v3")
    A("v_and_b32 v4, 3, v1")
    A(f"s_lshl_b32 s{T0}, s{S_QB}, 2")
    A(f"v_add3_u32 v3, v3, v4, s{T0}")
    A("v_lshlrev_b32 v3, 3, v3")
    A(f"v_add_u32 v3, {WS_FQ}, v3")
    A(f"s_add_u32 s{S_QRT}, s{T0}, s{S_W}")
    A(f"s_lshl_b32 s{T1}, s{S_QRT}, 11")
    A(f"s_add_u32 s{T1}, s{T1}, {WS_FH + 14*128}")
    A(f"v_mov_b32 v4, s{T1}")
    A("v_and_b32 v5, 8, v1")
    A("v_cmp_ne_u32 vcc, 0, v5")
    A("v_cndmask_b32 v3, v3, v4, vcc")
    A("v_and_b32 v5, 31, v1")
    A("v_cmp_eq_u32 vcc, 28, v5")
    A("v_mov_b32 v4, 0x3f803f80")
    A("v_cndmask_b32 v4, 0, v4, vcc")
    A("v_lshlrev_b32 v5, 2, v5")
    A(f"s_mov_b32 s{S_VMASK}, 0x0fffffff")
    A(f"s_mov_b32 s{S_VMASK+1}, 0x0fffffff")
    A(f"s_lshl_b32 s{T1}, s{S_C0}, 9")
    A(f"s_mul_i32 s{S_KOFF}, s{S_W}, {16*QK_RT}")
    A(f"s_add_u32 s{S_KOFF}, s{S_KOFF}, s{T1}")
    A(f"s_add_u32 s{S_KOFF}, s{S_KOFF}, {56*512}")
    A(f"s_mul_i32 s{S_VOFF}, s{h}, 448")
    A(f"s_mul_i32 s{T2}, s{S_W}, {16*VT_KT}")
    A(f"s_add_u32 s{S_VOFF}, s{S_VOFF}, s{T2}")
    A(f"s_add_u32 s{S_VOFF}, s{S_VOFF}, {WS_VT}")
    v_lane(8)
    A(f"v_add_u32 v9, {2*7168}, v8")
    A(f"s_mul_i32 s{S_QOFF}, s{S_QB}, {4*QK_RT}")
    A(f"s_add_u32 s{S_QOFF}, s{S_QOFF}, s{T1}")
    A(f"s_lshl_b32 s{T0}, s{S_QRT}, 4")
    A(f"s_add_u32 s{T0}, s{T0}, s{h}")
    A(f"s_lshl_b32 s{S_OOFF}, s{T0}, 11")
    A(f"s_add_u32 s{S_OOFF}, s{S_OOFF}, {WS_O}")

def loadK1(buf, ks):
    A(f"buffer_load_dwordx4 {vr(KB+8*buf+4*ks,4)}, v{V_L16}, {srd(SRD_WS)}, s{S_KOFF} offen offset:{1024*ks} sc1")
    if ks == 1: A(f"s_add_u32 s{S_KOFF}, s{S_KOFF}, {QK_RT}")
def loadK(buf):
    loadK1(buf, 0); loadK1(buf, 1)
def loadV(buf):
    A(f"s_mov_b64 exec, s[{S_VMASK}:{S_VMASK+1}]")
    for ks in range(2):
        A(f"buffer_load_dwordx4 {vr(VB+8*buf+4*ks,4)}, v{8+ks}, {srd(SRD_WS)}, s{S_VOFF} offen sc1")
    A("s_mov_b64 exec, -1")
    A(f"s_add_u32 s{S_VOFF}, s{S_VOFF}, {VT_KT}")

def attn_load_list():
    L = []
    for qt in range(4):
        for ks in range(2):
            def q(qt=qt, ks=ks):
                A(f"s_add_u32 s{T2}, s{S_QOFF}, {qt*QK_RT}")
                A(f"buffer_load_dwordx4 {vr(QF+8*qt+4*ks,4)}, v{V_L16}, {srd(SRD_WS)}, s{T2} offen offset:{1024*ks} sc1")
            L.append(q)
    def gl():
        A(f"s_lshl_b32 s{T2}, s{S_QRT}, 7")
        A(f"s_add_u32 s{T2}, s{T2}, {WS_G}")
        A(f"buffer_load_dword v{V_G}, v5, {srd(SRD_WS)}, s{T2} offen sc1")
    L.append(gl)
    for b in range(4):
        L.append(lambda b=b: loadK1(b, 0)); L.append(lambda b=b: loadK1(b, 1))
        if b < 3: L.append(lambda b=b: loadV(b))
    return L

def attention():
    h = S_HEAD
    A.label("L_attn")
    if OPT["prio"]: A(f"s_setprio {OPT['prio']}")
    for i in range(4): A(f"v_mov_b32 v{PB+4+i}, 0")
    A(f"v_mov_b32 v6, {LDS_CNT + 4}")
    A("v_cmp_eq_u32 vcc, 0, v1")
    A("v_cndmask_b32 v10, 0, 1, vcc")
    A("s_waitcnt vmcnt(12)")
    stamp(4)
    ev = newlabel("qeven"); dn = newlabel("qdone")
    A(f"s_and_b32 s{T0}, s{h}, 1")
    A(f"s_cmp_eq_u32 s{T0}, 0")
    A(f"s_cbranch_scc1 {ev}")
    A("s_mov_b32 exec_hi, 0")
    for qt in range(4):
        A(f"v_mov_b32 v{QF+8*qt}, 0"); A(f"v_mov_b32 v{QF+8*qt+1}, 0")
    A(f"s_branch {dn}")
    A.label(ev)
    A("s_mov_b32 exec_lo, 0")
    for qt in range(4):
        A(f"v_mov_b32 v{QF+8*qt+6}, 0"); A(f"v_mov_b32 v{QF+8*qt+7}, 0")
    A.label(dn)
    A("s_mov_b64 exec, -1")
    A("s_nop 1")
    def qk(buf, qt, sb, ks):
        c = "0" if ks == 0 else vr(SB + 16 * sb, 16)
        A(f"v_mfma_f32_32x32x16_bf16 {vr(SB+16*sb,16)}, {vr(KB+8*buf+4*ks,4)}, {vr(QF+8*qt+4*ks,4)}, {c}")
    def pv(buf, qt, ks):
        A(f"v_mfma_f32_32x32x16_bf16 {vr(OA+16*qt,16)}, {vr(VB+8*buf+4*ks,4)}, {vr(PB+4*ks,4)}, {vr(OA+16*qt,16)}")
    qk(0, 0, 0, 0); qk(0, 0, 0, 1)
    A(f"s_mov_b32 s{S_IT}, 0")
    A("s_nop 7")
    A("s_nop 3")
    A.label("L_attn_loop")
    for tt in range(4):
        for qt in range(4):
            u = 4 * tt + qt
            s = SB + 16 * (u & 1)
            nb, nq = (tt, qt + 1) if qt < 3 else ((tt + 1) & 3, 0)
            pb_, pq = (tt, qt - 1) if qt > 0 else ((tt - 1) & 3, 3)
            E = lambda i: A(f"v_exp_f32 v{s+i}, v{s+i}")
            C = lambda i: A(f"v_cvt_pk_bf16_f32 v{PB+i}, v{s+2*i}, v{s+2*i+1}")
            def Y1():
                if qt == 3:
                    if tt == 0:
                        A(f"s_cmp_eq_u32 s{S_IT}, 3")
                        A(f"s_cselect_b32 s{S_KOFF}, {WS_SIZE}, s{S_KOFF}")
                        A(f"s_cselect_b32 s{S_VOFF}, {WS_SIZE}, s{S_VOFF}")
                    if tt == 2:
                        A("ds_read_b32 v7, v6")
                    if OPT["hold"] < 28: A("ds_add_u32 v6, v10 offset:4")
                    loadK(tt)
                elif qt == 0 and tt == 1:
                    sk = newlabel("hf")
                    A(f"s_cmp_eq_u32 s{S_HF}, 0")
                    A(f"s_cbranch_scc1 {sk}")
                    A("s_waitcnt vmcnt(4)")
                    flag_store(S_HF, V_T)
                    A(f"s_mov_b32 s{S_HF}, 0")
                    A.label(sk)
                elif OPT["yld"]: A(f"s_nop {OPT['yld']}")
            def Y2():
                if qt == 0: loadV((tt - 1) & 3)
                elif OPT["yld"]: A(f"s_nop {OPT['yld']}")
            if qt == 3:
                A("s_waitcnt vmcnt(10)")
            qk(nb, nq, (u + 1) & 1, 0)
            E(0); E(1); E(2)
            qk(nb, nq, (u + 1) & 1, 1)
            E(3); E(4); E(5)
            Y1()
            E(6); E(7); C(0); C(1); C(2); C(3)
            pv(pb_, pq, 1)
            E(8); E(9); E(10)
            if qt == 0: A("s_waitcnt vmcnt(10)")
            pv(tt, qt, 0)
            E(11); E(12); E(13)
            Y2()
            E(14); E(15); C(4); C(5); C(6); C(7)
    A(f"s_add_u32 s{S_IT}, s{S_IT}, 1")
    A(f"s_cmp_lt_u32 s{S_IT}, 4")
    A("s_cbranch_scc1 L_attn_loop")
    pv(3, 3, 1)
    stamp(5)
    okc = newlabel("ringok")
    A("s_waitcnt lgkmcnt(0)")
    A(f"v_readfirstlane_b32 s{T0}, v7")
    A(f"s_cmp_ge_u32 s{T0}, 8")
    A(f"s_cbranch_scc1 {okc}")
    cnt_wait(4, 8, 6, 7)
    A.label(okc)
    for d in range(4):
        sk = newlabel("ow")
        A(f"s_cmp_eq_u32 s{S_W}, {d}")
        A(f"s_cbranch_scc1 {sk}")
        A(f"s_sub_u32 s{T0}, s{S_W}, {d+1}")
        A(f"s_and_b32 s{T0}, s{T0}, 3")
        A(f"s_lshl_b32 s{T0}, s{T0}, 12")
        A(f"s_add_u32 s{T0}, s{T0}, {LDS_AR + d*12288}")
        A(f"v_add_u32 v2, s{T0}, v{V_L16}")
        for q in range(4):
            A(f"ds_write_b128 v2, {vr(OA+16*d+4*q,4)} offset:{1024*q}")
        A.label(sk)
    for d in range(4):
        sk = newlabel("om")
        A(f"s_cmp_lg_u32 s{S_W}, {d}")
        A(f"s_cbranch_scc1 {sk}")
        for i in range(16): A(f"v_mov_b32 v{SB+i}, v{OA+16*d+i}")
        A.label(sk)
    cnt_add(0, 3, 4)
    cnt_wait(0, 4, 3, 4)
    A(f"s_mul_i32 s{T0}, s{S_W}, 12288")
    A(f"s_add_u32 s{T0}, s{T0}, {LDS_AR}")
    A(f"v_add_u32 v2, s{T0}, v{V_L16}")
    for k in range(12):
        A(f"ds_read_b128 {vr(OA+4*k,4)}, v2 offset:{1024*k}")
    for p in range(3):
        A(f"s_waitcnt lgkmcnt({8-4*p})")
        for i in range(16): A(f"v_add_f32 v{SB+i}, v{SB+i}, v{OA+16*p+i}")
    A(f"v_mov_b32 v2, v{SB+12}")
    A(f"v_mov_b32 v3, v{SB+12}")
    A("v_permlane32_swap_b32 v2, v3")
    A(f"s_mov_b32 s{T0}, {f32(2.0**-64)}")
    A(f"s_mov_b32 s{T1}, {f32(2.0**64)}")
    A(f"v_cmp_le_f32 vcc, s{T0}, v3")
    A(f"v_cmp_ge_f32 s[{T2}:{T3}], s{T1}, v3")
    A(f"s_and_b64 s[{T2}:{T3}], s[{T2}:{T3}], vcc")
    A(f"s_cmp_eq_u64 s[{T2}:{T3}], -1")
    if OPT["force_slow"]:
        A("s_branch L_slow")
    else:
        A("s_cbranch_scc0 L_slow")
    A.label("L_ofin")
    A("v_rcp_f32 v3, v3")
    A(f"v_mul_f32 v3, v3, v{V_G}")
    for i in range(16): A(f"v_mul_f32 v{SB+i}, v{SB+i}, v3")
    for i in range(8): A(f"v_cvt_pk_bf16_f32 v{PB+i}, v{SB+2*i}, v{SB+2*i+1}")
    A("s_mov_b32 exec_lo, 0")
    A(f"v_mov_b32 v{PB+6}, 0")
    A(f"v_mov_b32 v{PB+7}, 0")
    A("s_mov_b64 exec, -1")
    for i in range(8): A(f"v_min_u32 v{PB+i}, -2, v{PB+i}")
    A(f"buffer_store_dwordx4 {vr(PB,4)}, v{V_L16}, {srd(SRD_WS)}, s{S_OOFF} offen sc1")
    A(f"buffer_store_dwordx4 {vr(PB+4,4)}, v{V_L16}, {srd(SRD_WS)}, s{S_OOFF} offen offset:1024 sc1")
    stamp(6)
    prof_dump(2)
    A("s_endpgm")

def attention_slow():
    h = S_HEAD
    A.label("L_slow")
    A("v_lshrrev_b32 v2, 4, v1")
    A("v_lshlrev_b32 v2, 3, v2")
    A(f"v_lshrrev_b32 v2, v2, s{S_KVJ}")
    A("v_and_b32 v2, 0xff, v2")
    A("v_lshlrev_b32 v2, 6, v2")
    A("v_and_b32 v3, 15, v1")
    A("v_add_u32 v2, v2, v3")
    A("v_lshlrev_b32 v2, 3, v2")
    A(f"v_add_u32 v2, {WS_FQ}, v2")
    for qq in range(4):
        poll(2, V_T)
        if qq < 3: A("v_add_u32 v2, 128, v2")
    SQ = OA
    for d in range(4):
        sk = newlabel("sq")
        A(f"s_cmp_lg_u32 s{S_W}, {d}")
        A(f"s_cbranch_scc1 {sk}")
        for i in range(8): A(f"v_mov_b32 v{SQ+i}, v{QF+8*d+i}")
        A.label(sk)
    SS = OA + 16
    for i in range(16): A(f"v_mov_b32 v{SB+i}, 0")
    A(f"v_mov_b32 v4, {f32(-3.0e38)}")
    A(f"s_lshl_b32 s{S_KOFF}, s{S_C0}, 9")
    A(f"s_add_u32 s{S_KOFF}, s{S_KOFF}, {56*512}")
    A(f"s_mul_i32 s{S_VOFF}, s{h}, 448")
    A(f"s_add_u32 s{S_VOFF}, s{S_VOFF}, {WS_VT}")
    A(f"s_mov_b32 s{S_IT}, 0")
    A.label("L_slow_loop")
    loadK(0); loadV(0)
    A("s_waitcnt vmcnt(0)")
    A(f"v_mfma_f32_32x32x16_bf16 {vr(SS,16)}, {vr(KB,4)}, {vr(SQ,4)}, 0")
    A(f"v_mfma_f32_32x32x16_bf16 {vr(SS,16)}, {vr(KB+4,4)}, {vr(SQ+4,4)}, {vr(SS,16)}")
    A(f"v_max3_f32 v5, v{SS}, v{SS+1}, v4")
    for i in range(1, 8): A(f"v_max3_f32 v5, v{SS+2*i}, v{SS+2*i+1}, v5")
    A("v_mov_b32 v6, v5")
    A("v_permlane32_swap_b32 v5, v6")
    A("v_max_f32 v5, v5, v6")
    A("v_sub_f32 v6, v4, v5")
    A("v_exp_f32 v6, v6")
    A("v_mov_b32 v4, v5")
    for i in range(16): A(f"v_mul_f32 v{SB+i}, v{SB+i}, v6")
    for i in range(16): A(f"v_sub_f32 v{SS+i}, v{SS+i}, v5")
    for i in range(16): A(f"v_exp_f32 v{SS+i}, v{SS+i}")
    for i in range(8): A(f"v_cvt_pk_bf16_f32 v{PB+i}, v{SS+2*i}, v{SS+2*i+1}")
    A(f"v_mfma_f32_32x32x16_bf16 {vr(SB,16)}, {vr(VB,4)}, {vr(PB,4)}, {vr(SB,16)}")
    A(f"v_mfma_f32_32x32x16_bf16 {vr(SB,16)}, {vr(VB+4,4)}, {vr(PB+4,4)}, {vr(SB,16)}")
    A("s_nop 7")
    A("s_nop 3")
    A(f"s_add_u32 s{S_IT}, s{S_IT}, 1")
    A(f"s_cmp_lt_u32 s{S_IT}, 64")
    A("s_cbranch_scc1 L_slow_loop")
    A(f"v_mov_b32 v2, v{SB+12}")
    A(f"v_mov_b32 v3, v{SB+12}")
    A("v_permlane32_swap_b32 v2, v3")
    A("s_branch L_ofin")

V_CW = 2
V_CT = 3
S_RING, S_WDB, S_WOB = 46, 47, 48
CTOK = {}

def cW(s):
    slot = (s % RING_N) * 2048
    for e in range(2):
        A(f"s_add_u32 m0, s{S_RING}, {slot + 1024*e}")
        if s < 28:
            A(f"s_add_u32 s{T6}, s{S_WDB}, {(16*s + 8*e) * 896}")
            t = A.vm(f"buffer_load_dwordx4 v{V_CW}, {srd(SRD_WD)}, s{T6} offen lds")
        else:
            hh, ks = divmod(s - 28, 2)
            A(f"s_add_u32 s{T6}, s{S_WOB}, {(28*hh + 16*ks + 8*e) * 896}")
            t = A.vm(f"buffer_load_dwordx4 v{V_CW}, {srd(SRD_WO)}, s{T6} offen lds")
    CTOK[("W", s)] = t

def phaseC_prefetch(n):
    t0, t1 = V_VA, V_VA + 1
    A(f"s_mul_i32 s{S_RING}, s{S_RT}, {RING_B}")
    A(f"s_mul_i32 s{S_WDB}, s{S_RT}, {448*896}")
    A(f"s_mul_i32 s{S_WOB}, s{S_RT}, {112*896}")
    A(f"v_lshrrev_b32 v{t0}, 3, v1")
    A(f"v_mul_u32_u24 v{t0}, 896, v{t0}")
    A(f"v_bfe_u32 v{t1}, v1, 1, 2")
    A(f"v_bfe_u32 v{V_CW}, v1, 4, 1")
    A(f"v_lshlrev_b32 v{V_CW}, 1, v{V_CW}")
    A(f"v_xor_b32 v{t1}, v{t1}, v{V_CW}")
    A(f"v_lshl_add_u32 v{t0}, v{t1}, 5, v{t0}")
    A(f"v_and_b32 v{t1}, 1, v1")
    A(f"v_lshl_add_u32 v{t0}, v{t1}, 4, v{t0}")
    A(f"s_lshl_b32 s{T1}, s{S_CT}, 7")
    A(f"v_add_u32 v{V_CW}, s{T1}, v{t0}")
    for s in range(n): cW(s)

CACC = 24
CWF = 88
CAF = 104
COW = 56
COF = 184

def pair_set(which, va, vb):
    A(f"s_lshl_b32 s{T0}, s{S_RT}, 2")
    A(f"s_add_u32 s{T0}, s{T0}, {LDS_CNT + 16 + 16*which}")
    A(f"v_mov_b32 v{va}, s{T0}")
    A(f"v_mov_b32 v{vb}, 1")
    A("s_waitcnt lgkmcnt(0)")
    A(f"ds_write_b32 v{va}, v{vb}")

def pair_wait(xor, va, vb):
    L = newlabel("pw"); D = newlabel("pwd")
    A(f"v_xor_b32 v{va}, {4*xor}, v{va}")
    A(f"s_mov_b32 s{S_CNT}, 0x100000")
    A.label(L)
    A(f"ds_read_b32 v{vb}, v{va}")
    A("s_waitcnt lgkmcnt(0)")
    A(f"v_readfirstlane_b32 s{T0}, v{vb}")
    A(f"s_cmp_lg_u32 s{T0}, 0")
    A(f"s_cbranch_scc1 {D}")
    A(f"s_sub_u32 s{S_CNT}, s{S_CNT}, 1")
    A(f"s_cmp_lg_u32 s{S_CNT}, 0")
    A(f"s_cbranch_scc1 {L}")
    A.label(D)

def phaseC():
    assert RING_N == 13
    wq = S_RT
    S_H0, S_H1, S_O0, S_KH, S_ORT, S_PEND = S_KOFF, S_VOFF, S_IT, S_C0, S_KVJ, S_QRT
    A(f"s_lshr_b32 s{S_KH}, s{wq}, 1")
    A(f"s_and_b32 s{T2}, s{wq}, 1")
    A(f"s_lshl_b32 s{T1}, s{S_RB64}, 1")
    A(f"s_add_u32 s{S_ORT}, s{T1}, s{T2}")
    A("v_lshrrev_b32 v5, 5, v1")
    A("v_bfe_u32 v6, v1, 2, 2")
    A("v_lshl_add_u32 v5, v5, 2, v6")
    A("v_lshlrev_b32 v5, 7, v5")
    A("v_and_b32 v6, 2, v6")
    A("v_bfe_u32 v7, v1, 4, 1")
    A("v_xor_b32 v6, v6, v7")
    A("v_lshl_add_u32 v5, v6, 5, v5")
    A("v_and_b32 v6, 3, v1")
    A("v_lshl_add_u32 v5, v6, 3, v5")
    A(f"s_lshl_b32 s{T0}, s{S_KH}, 6")
    A(f"v_xor_b32 v5, s{T0}, v5")
    A("v_xor_b32 v6, 64, v5")
    A(f"v_add_u32 v{V_CT}, s{S_RING}, v5")
    A(f"v_add_u32 v{V_CT+1}, s{S_RING}, v6")
    A(f"s_mul_i32 s{T0}, s{S_KH}, {2*RING_B}")
    A(f"v_add_u32 v11, s{T0}, v5")
    A(f"v_add_u32 v12, s{T0}, v6")
    A(f"s_mul_i32 s{T0}, s{wq}, 7")
    A(f"s_lshr_b32 s{T0}, s{T0}, 1")
    A("v_bfe_u32 v5, v1, 2, 2")
    A(f"v_add_u32 v5, s{T0}, v5")
    A("v_and_b32 v6, 16, v1")
    A("v_cmp_ne_u32 vcc, 0, v6")
    A("v_lshlrev_b32 v5, 7, v5")
    A("v_bfe_u32 v6, v1, 1, 1")
    A("v_lshl_add_u32 v5, v6, 3, v5")
    A(f"v_mov_b32 v6, {14*128}")
    A("v_cndmask_b32 v5, v5, v6, vcc")
    A("v_and_b32 v6, 1, v1")
    A(f"v_add_u32 v6, s{T1}, v6")
    A("v_lshl_add_u32 v5, v6, 11, v5")
    A(f"v_add_u32 v5, {WS_FH}, v5")
    A(f"s_lshl_b32 s{T0}, s{S_ORT}, 4")
    A(f"s_lshl_b32 s{T3}, s{S_KH}, 3")
    A(f"s_add_u32 s{T0}, s{T0}, s{T3}")
    A(f"s_lshl_b32 s{S_O0}, s{T0}, 11")
    A(f"s_add_u32 s{S_O0}, s{S_O0}, {WS_O}")
    A("v_and_b32 v7, 7, v1")
    A(f"v_add_u32 v7, s{T0}, v7")
    A("v_lshlrev_b32 v7, 7, v7")
    A(f"v_add_u32 v7, {WS_FO}, v7")
    A("v_and_b32 v13, 15, v1")
    A("v_lshlrev_b32 v13, 10, v13")
    A(f"s_mul_i32 s{S_H0}, s{S_ORT}, {H_RT}")
    A(f"s_mul_i32 s{T0}, s{wq}, {28*1024}")
    A(f"s_add_u32 s{T0}, s{T0}, {WS_H}")
    A(f"s_add_u32 s{S_H0}, s{S_H0}, s{T0}")
    A(f"s_xor_b32 s{T3}, s{S_ORT}, 1")
    A(f"s_mul_i32 s{S_H1}, s{T3}, {H_RT}")
    A(f"s_add_u32 s{S_H1}, s{S_H1}, s{T0}")
    A("v_and_b32 v8, 31, v1")
    A("v_lshlrev_b32 v10, 2, v8")
    A(f"s_lshl_b32 s{T5}, s{S_ORT}, 7")
    A(f"s_add_u32 s{T5}, s{T5}, {WS_G}")
    poll(5, V_T)
    stamp(4)
    A.vm_issued = 0
    for k in list(CTOK): CTOK[k] = 0
    def af(s, r): return CAF + 8 * (s % RING_N) + 4 * r
    def cA(s):
        for r in range(2):
            base = S_H0 if r == 0 else S_H1
            hi, lo = divmod(s, 4)
            if hi:
                A(f"s_add_u32 s{T7}, s{base}, {hi*4096}")
                so = T7
            else: so = base
            t = A.vm(f"buffer_load_dwordx4 {vr(af(s,r),4)}, v{V_L16}, {srd(SRD_WS)}, s{so} offen offset:{lo*1024} sc1")
        CTOK[("A", s)] = t
    A.vm(f"buffer_load_dword v9, v10, {srd(SRD_WS)}, s{T5} offen sc1")
    for s in range(RING_N): cA(s)
    def reads(s):
        fb = CWF + 8 * (s & 1)
        for c in range(2):
            for a in range(2):
                A(f"ds_read_b64_tr_b16 {vr(fb+4*c+2*a,2)}, v{V_CT+c} offset:{(s % RING_N)*2048 + a*1024}")
    def mf(s):
        fb = CWF + 8 * (s & 1)
        for r in range(2):
            for c in range(2):
                acc = CACC + 16 * (2 * r + c)
                cc = "0" if s == 0 else vr(acc, 16)
                A(f"v_mfma_f32_32x32x16_bf16 {vr(acc,16)}, {vr(fb+4*c,4)}, {vr(af(s,r),4)}, {cc}")
    A.vm_wait(CTOK[("W", 0)])
    reads(0)
    for s in range(28):
        if s == OPT["hold"]:
            L = newlabel("hold"); D = newlabel("holdd")
            A(f"v_mov_b32 v{V_T}, {LDS_CNT + 8}")
            A(f"s_mov_b32 s{S_CNT}, 0x10000")
            A.label(L)
            A(f"ds_read_b32 v{V_T+1}, v{V_T}")
            A("s_waitcnt lgkmcnt(0)")
            A(f"v_readfirstlane_b32 s{T0}, v{V_T+1}")
            A(f"s_cmp_ge_u32 s{T0}, {OPT['holdn']}")
            A(f"s_cbranch_scc1 {D}")
            A("s_sleep 3")
            A(f"s_sub_u32 s{S_CNT}, s{S_CNT}, 1")
            A(f"s_cmp_lg_u32 s{S_CNT}, 0")
            A(f"s_cbranch_scc1 {L}")
            A.label(D)
            stamp(8)
        if s + 1 < 28:
            A.vm_wait(max(CTOK[("W", s + 1)], CTOK[("A", s)]))
            reads(s + 1)
            A("s_waitcnt lgkmcnt(4)")
        else:
            A.vm_wait(CTOK[("A", s)], "lgkmcnt(0)")
        if OPT["cprio"]: A(f"s_setprio {OPT['cprio']}")
        mf(s)
        if OPT["cprio"]: A("s_setprio 0")
        n = s + RING_N
        if n < 36: cW(n)
        if n < 28: cA(n)
    stamp(5)
    PIECE = [0, 1024, 2048, 3072, 20480, 21504, 22528, 23552]
    A(f"v_add_u32 v14, s{S_RING}, v{V_L16}")
    for k in range(8):
        A(f"ds_write_b128 v14, {vr(CACC+32+4*k,4)} offset:{PIECE[k]}")
    A("s_waitcnt vmcnt(0)")
    pair_set(0, 5, 6)
    pair_wait(1, 5, 6)
    A(f"s_xor_b32 s{T0}, s{wq}, 1")
    A(f"s_mul_i32 s{T0}, s{T0}, {RING_B}")
    A(f"v_add_u32 v15, s{T0}, v{V_L16}")
    for k in range(8):
        A(f"ds_read_b128 {vr(COF+4*k,4)}, v15 offset:{PIECE[k]}")
    for k in range(8):
        for ks in range(2):
            off = (k >> 2) * RING_B + ((28 + 2 * (k & 3) + ks) % RING_N) * 2048
            for c in range(2):
                for a in range(2):
                    A(f"ds_read_b64_tr_b16 {vr(COW+16*k+8*ks+4*c+2*a,2)}, v{11+c} offset:{off + a*1024}")
    A("v_sub_f32 v9, 1.0, v9")
    pair_set(1, 5, 6)
    for i in range(32): A(f"v_add_f32 v{CACC+i}, v{CACC+i}, v{COF+i}")
    for i in range(32): A(f"v_mul_f32 v{CACC+i}, v{CACC+i}, v9")
    pair_wait(1, 5, 6)
    A(f"s_lshl_b32 s{T0}, s{S_ORT}, 5")
    A(f"v_add_u32 v8, s{T0}, v8")
    A("v_mul_u32_u24 v8, 896, v8")
    A("v_lshrrev_b32 v9, 5, v1")
    A("v_lshl_add_u32 v8, v9, 4, v8")
    A(f"s_lshl_b32 s{T5}, s{S_CT}, 7")
    A(f"s_lshl_b32 s{T0}, s{S_KH}, 6")
    A(f"s_add_u32 s{T5}, s{T5}, s{T0}")
    A(f"s_xor_b32 s{T0}, s{wq}, 2")
    A(f"s_mul_i32 s{T0}, s{T0}, {RING_B}")
    A(f"v_add_u32 v15, s{T0}, v{V_L16}")
    A(f"s_lshl_b32 s{T0}, s{S_RT}, 2")
    A(f"s_add_u32 s{T0}, s{T0}, {LDS_CNT + 16 + 32}")
    A(f"v_mov_b32 v5, s{T0}")
    A("v_xor_b32 v10, 8, v5")
    A("v_mov_b32 v6, 1")
    poll(7, V_T, sleep=1)
    L = newlabel("probe"); D = newlabel("probed")
    A(f"s_mov_b32 s{S_CNT}, 0x8000")
    A.label(L)
    A(f"buffer_load_dword v{V_T}, v13, {srd(SRD_WS)}, s{S_O0} offen offset:1008 sc1")
    A("s_waitcnt vmcnt(0)")
    A(f"v_cmp_ne_u32 vcc, -1, v{V_T}")
    A(f"s_cbranch_vccnz {D}")
    A("s_sleep 1")
    A(f"s_sub_u32 s{S_CNT}, s{S_CNT}, 1")
    A(f"s_cmp_lg_u32 s{S_CNT}, 0")
    A(f"s_cbranch_scc1 {L}")
    A.label(D)
    stamp(6)
    A(f"s_setprio 3")
    A(f"s_movk_i32 s{S_PEND}, 0xff")
    S_NEXT = S_HF
    A(f"s_mov_b32 s{S_NEXT}, 0")
    A(f"s_mov_b32 s{S_CNT}, 0x4000")
    A.label("L_oround")
    for k in range(8):
        sk = newlabel("ol")
        A(f"s_bitcmp1_b32 s{S_PEND}, {k}")
        A(f"s_cbranch_scc0 {sk}")
        A(f"s_add_u32 s{T7}, s{S_O0}, {k*2048}")
        for ks in range(2):
            A(f"buffer_load_dwordx4 {vr(COF+8*k+4*ks,4)}, v{V_L16}, {srd(SRD_WS)}, s{T7} offen offset:{ks*1024} sc1")
        A.label(sk)
    A("s_waitcnt vmcnt(0)")
    for k in range(8):
        sk = newlabel("om")
        o = COF + 8 * k
        A(f"s_bitcmp1_b32 s{S_PEND}, {k}")
        A(f"s_cbranch_scc0 {sk}")
        A(f"v_max3_u32 v{V_T}, v{o}, v{o+1}, v{o+2}")
        A(f"v_max3_u32 v{V_T+1}, v{o+3}, v{o+4}, v{o+5}")
        A(f"v_max3_u32 v{V_T}, v{V_T}, v{o+6}, v{o+7}")
        A(f"v_max_u32 v{V_T}, v{V_T}, v{V_T+1}")
        A(f"v_cmp_eq_u32 vcc, -1, v{V_T}")
        A(f"s_cbranch_vccnz {sk}")
        A(f"s_bitset0_b32 s{S_PEND}, {k}")
        A.label(sk)
        sk = newlabel("oa")
        A(f"s_lshr_b32 s{T0}, s{S_PEND}, {k}")
        A(f"s_and_b32 s{T0}, s{T0}, 1")
        A(f"s_lshl_b32 s{T0}, s{T0}, 8")
        A(f"s_or_b32 s{T0}, s{T0}, s{S_NEXT}")
        A(f"s_cmp_eq_u32 s{T0}, {k}")
        A(f"s_cbranch_scc0 {sk}")
        for ks in range(2):
            for c in (1, 0):
                acc = CACC + 16 * c
                A(f"v_mfma_f32_32x32x16_bf16 {vr(acc,16)}, {vr(COW+16*k+8*ks+4*c,4)}, {vr(o+4*ks,4)}, {vr(acc,16)}")
        A(f"s_mov_b32 s{S_NEXT}, {k+1}")
        A.label(sk)
    A(f"s_cmp_eq_u32 s{S_PEND}, 0")
    A("s_cbranch_scc1 L_odone")
    A(f"s_sub_u32 s{S_CNT}, s{S_CNT}, 1")
    A(f"s_cmp_lg_u32 s{S_CNT}, 0")
    A("s_cbranch_scc1 L_oround")
    A.label("L_odone")
    A("s_nop 7")
    A("s_nop 1")
    for q in range(4):
        A(f"ds_write_b128 v14, {vr(CACC+16+4*q,4)} offset:{1024*q}")
    A("s_waitcnt lgkmcnt(0)")
    A("ds_write_b32 v5, v6")
    L = newlabel("fw"); D = newlabel("fwd")
    A(f"s_mov_b32 s{S_CNT}, 0x400000")
    A.label(L)
    A("ds_read_b32 v6, v10")
    A("s_waitcnt lgkmcnt(0)")
    A(f"v_readfirstlane_b32 s{T0}, v6")
    A(f"s_cmp_lg_u32 s{T0}, 0")
    A(f"s_cbranch_scc1 {D}")
    A(f"s_sub_u32 s{S_CNT}, s{S_CNT}, 1")
    A(f"s_cmp_lg_u32 s{S_CNT}, 0")
    A(f"s_cbranch_scc1 {L}")
    A.label(D)
    for q in range(4):
        A(f"ds_read_b128 {vr(COW+4*q,4)}, v15 offset:{1024*q}")
    for q in range(4):
        A(f"s_waitcnt lgkmcnt({3-q})")
        for i in range(4): A(f"v_add_f32 v{CACC+4*q+i}, v{CACC+4*q+i}, v{COW+4*q+i}")
        for i in range(2): A(f"v_cvt_pk_bf16_f32 v{CACC+16+2*q+i}, v{CACC+4*q+2*i}, v{CACC+4*q+2*i+1}")
    P = CACC + 16
    for a, b in ((0, 2), (1, 3), (4, 6), (5, 7)):
        A(f"v_permlane32_swap_b32 v{P+a}, v{P+b}")
    A(f"buffer_store_dwordx4 {vr(P,4)}, v8, {srd(SRD_OUT)}, s{T5} offen {OPT.get('osc','')}")
    A(f"buffer_store_dwordx4 {vr(P+4,4)}, v8, {srd(SRD_OUT)}, s{T5} offen offset:32 {OPT.get('osc','')}")
    stamp(7)
    prof_dump(2)
    A("s_endpgm")

def main():
    prologue()
    A(f"s_cmp_ge_u32 s{S_SLOT}, 28")
    A("s_cbranch_scc1 L_gate")
    phaseA_setup()
    st0 = PA()
    if OPT["tfirst"]: global_touch()
    st0.dma(2 * OPT["pre1"], force=True)
    if OPT["gtouch"] and not OPT["tfirst"]: global_touch()
    A("s_barrier")
    st0.dma(2 * (OPT["pre2"] - OPT["pre1"]), force=True)
    prologue2()
    stamp2(1)
    vm0 = A.vm_issued
    A(f"s_cmp_ge_u32 s{S_W}, 4")
    A("s_cbranch_scc1 L_A_g")
    phaseA_readbases(0)
    A(f"s_cmp_ge_u32 s{S_J}, 10")
    A("s_cbranch_scc1 L_A_vvv")
    A(f"s_cmp_eq_u32 s{S_J}, 9")
    A("s_cbranch_scc1 L_A_kvv")
    s1 = roleA_pass1(st0, vm0, [False, False, False]); e1 = (A.vm_issued, s1.dq, dict(s1.tok), s1.tagtok, list(STORES), A.lg_issued, A.lg_done, dict(s1.rtok))
    A.label("L_A_p2")
    roleA_pass2(s1)
    attention()
    A.label("L_A_g")
    roleG_phaseA(st0, vm0)
    phaseC()
    for lab, fl in (("L_A_vvv", [True, True, True]), ("L_A_kvv", [False, True, True])):
        A.label(lab)
        s2 = roleA_pass1(st0, vm0, fl)
        assert (A.vm_issued, s2.dq, dict(s2.tok), s2.tagtok, list(STORES), A.lg_issued, A.lg_done, dict(s2.rtok)) == e1
        A("s_branch L_A_p2")
    A.label("L_gate")
    gate_path()
    touch_path()
    attention_slow()
    A.label("L_end")
    body = A.finalize()
    hdr = open(f"cdna_kernels/{NAME}.s.ref").read().split("; Override launch")[0]
    text = hdr + f"""; @launch grid=(256,1,1) block=(512,1,1) lds={LDS_BYTES}
.amdgcn_target "amdgcn-amd-amdhsa--gfx950"
.text
.globl {NAME}_kernel
.p2align 8
.type {NAME}_kernel,@function
{NAME}_kernel:
{body}    s_endpgm
L_codeend:
.section .rodata,"a"
.p2align 6
.amdhsa_kernel {NAME}_kernel
  .amdhsa_next_free_vgpr 256
  .amdhsa_next_free_sgpr 102
  .amdhsa_accum_offset 256
  .amdhsa_group_segment_fixed_size 0
  .amdhsa_kernarg_size 88
  .amdhsa_user_sgpr_count 2
  .amdhsa_user_sgpr_kernarg_segment_ptr 1
  .amdhsa_system_sgpr_workgroup_id_x 1
.end_amdhsa_kernel
"""
    open(OUT, "w").write(text)
    print("wrote", OUT, len(text), "bytes,", len(A.ins), "instructions")

main()
```

```python
import math, struct, sys, os, copy
from collections import deque
sys.path.insert(0, os.path.dirname(os.path.abspath(__file__)))
from asmlib import Asm

NAME = "gated_mix__mha_block__geglu_ffn__prompt"
OPT = dict(wspre=0, itouch=0, hlate=0, hold=99, holdn=64, tmap=1, tfirst=0, vlay=1, fullf=1, profile=0, rt=0, sp2=0, barm=1, fill=6, force_slow=0, exp="", codepf=1, qflag=36, qpoll=54, gpch=18, yld=0, prio=2, gprio=3, cprio=0, cpre=3, gtouch=1, pre1=2, pre2=5, ring=13, vbar="14:21,15:22,16:27", lead=9, touch=1)
for a in sys.argv[1:]:
    if "=" in a:
        k, v = a.split("=", 1)
        OPT[k] = int(v) if v.lstrip("-").isdigit() else v
OUT = OPT.get("out", f"cdna_kernels/{NAME}.s")

def f32(x): return "0x%08x" % struct.unpack("<I", struct.pack("<f", x))[0]

WS_QK = 0x000000
QK_RT = 112 * 512
WS_VT = 0x400000
VT_KT = 4 * 7168
WS_H = 0x600000
H_RT = 112 * 1024
WS_O = 0xD00000
O_RT = 32 * 1024
WS_G = 0xF00000
WS_FQ = 0xF10000
WS_FH = 0xF20000
WS_FO = 0xF40000
WS_PROF = 0xF80000
WS_SIZE = 0x1000000

LOG2E = 1.4426950408889634
QSCALE = LOG2E / math.sqrt(28.0)
GK0 = -2.0 * math.sqrt(2.0 / math.pi) * LOG2E
GK1 = GK0 * 0.044715

S_W = 3
SRD_X, SRD_QKV, SRD_GU, SRD_WD, SRD_WO, SRD_WS, SRD_OUT, SRD_DBG, SRD_GW = 4, 8, 12, 16, 20, 24, 28, 32, 36
S_XCD, S_SLOT, S_RB, S_J, S_RT, S_RTG = 40, 41, 42, 43, 44, 45
S_MA, S_MX, S_MV = 46, 47, 48
S_HB = 49
T0, T1, T2, T3, T4, T5, T6, T7 = 50, 51, 52, 53, 54, 55, 56, 57
S_CNT = 58
S_HF = 59
S_TAG = 60
S_HEAD, S_QB, S_RB64, S_CT = 62, 63, 64, 65
S_VMASK = 66
S_KOFF, S_VOFF, S_IT, S_C0 = 68, 69, 70, 71
S_PROF = 72
S_PC = 96
S_KVJ, S_QRT = 98, 99
S_OK = 46
S_QOFF = 48
S_OOFF = 47
def srd(n): return f"s[{n}:{n+3}]"
def vr(a, n): return f"v[{a}:{a+n-1}]"

SLOT = 16384
NSLOT = 10
RING_N = OPT["ring"]
RING_B = 13 * 2048
LDS_AR = 4 * RING_B
LDS_CNT = LDS_AR + 49152
LDS_BYTES = 163840

A = Asm()
_lbl = [0]
def newlabel(p):
    _lbl[0] += 1
    return f"L_{p}_{_lbl[0]}"

CLK = "s_memrealtime" if OPT["rt"] else "s_memtime"
def stamp2(k):
    if OPT["profile"] == 2:
        A(f"{CLK} s[{S_PROF+2*k}:{S_PROF+2*k+1}]")

def stamp(k):
    if OPT["profile"] == 2 and k > 0: return
    if OPT["profile"]:
        A(f"{CLK} s[{S_PROF+2*k}:{S_PROF+2*k+1}]")
        if k == 0: A(f"s_memrealtime s[{S_PROF+20}:{S_PROF+21}]")

def prof_dump(vtmp):
    if not OPT["profile"]: return
    A("s_waitcnt vmcnt(0)")
    A(f"s_memrealtime s[{S_PROF+22}:{S_PROF+23}]")
    A("s_waitcnt lgkmcnt(0)")
    A(f"s_lshl_b32 s{T0}, s2, 3")
    A(f"s_add_u32 s{T0}, s{T0}, s{S_W}")
    A(f"s_lshl_b32 s{T0}, s{T0}, 6")
    A(f"s_add_u32 s{T0}, s{T0}, {WS_PROF}")
    A(f"v_mov_b32 v{vtmp}, s{T0}")
    A("s_mov_b64 exec, 1")
    for k in range(12):
        A(f"v_mov_b32 v{vtmp+1}, s{S_PROF+2*k}")
        A(f"buffer_store_dword v{vtmp+1}, v{vtmp}, {srd(SRD_WS)}, 0 offen offset:{4*k}")
    A(f"v_mov_b32 v{vtmp+1}, s100")
    A(f"buffer_store_dword v{vtmp+1}, v{vtmp}, {srd(SRD_WS)}, 0 offen offset:48")
    A("s_mov_b64 exec, -1")

def poll(vaddr, vtmp, sleep=2):
    L = newlabel("poll"); D = newlabel("polld")
    A(f"s_mov_b32 s{S_CNT}, 0x4000")
    A.label(L)
    A(f"buffer_load_dwordx2 {vr(vtmp,2)}, v{vaddr}, {srd(SRD_WS)}, 0 offen sc1")
    A("s_waitcnt vmcnt(0)")
    A(f"v_cmp_ne_u64 vcc, s[{S_TAG}:{S_TAG+1}], {vr(vtmp,2)}")
    A(f"s_cbranch_vccz {D}")
    A(f"s_sleep {sleep}")
    A(f"s_sub_u32 s{S_CNT}, s{S_CNT}, 1")
    A(f"s_cmp_lg_u32 s{S_CNT}, 0")
    A(f"s_cbranch_scc1 {L}")
    A.label(D)

def get_tag_spin(vtmp):
    L = newlabel("tag"); D = newlabel("tagd")
    A(f"s_mov_b32 s{S_CNT}, 0x4000")
    A(f"v_mov_b32 v{vtmp+2}, 0")
    A.label(L)
    A(f"buffer_load_dwordx2 {vr(vtmp,2)}, v{vtmp+2}, {srd(SRD_DBG)}, 0 offen sc1")
    A("s_waitcnt vmcnt(0)")
    A(f"v_readfirstlane_b32 s{S_TAG}, v{vtmp}")
    A(f"v_readfirstlane_b32 s{S_TAG+1}, v{vtmp+1}")
    A(f"s_cmp_lg_u32 s{S_TAG+1}, 0")
    A(f"s_cbranch_scc1 {D}")
    A("s_sleep 4")
    A(f"s_sub_u32 s{S_CNT}, s{S_CNT}, 1")
    A(f"s_cmp_lg_u32 s{S_CNT}, 0")
    A(f"s_cbranch_scc1 {L}")
    A.label(D)

def flag_store(soff_reg, vtmp):
    A(f"v_mov_b32 v{vtmp}, s{S_TAG}")
    A(f"v_mov_b32 v{vtmp+1}, s{S_TAG+1}")
    A(f"v_mov_b32 v{vtmp+2}, 0")
    A("s_mov_b64 exec, 1")
    t = A.vm(f"buffer_store_dwordx2 {vr(vtmp,2)}, v{vtmp+2}, {srd(SRD_WS)}, s{soff_reg} offen sc1")
    A("s_mov_b64 exec, -1")
    return t

V_X0, V_X1, V_Q, V_F, V_XB = 2, 3, 4, 5, 6
V_TB = 7
V_TV = 10
V_VA = 11
V_XA = 15
V_L16 = 16
V_G = 17
V_T = 18
XF = 24
ACC1 = 136
FS1 = (240, 200, 224)
FS2 = (216, 200, 208)
ACC2 = 224
TMP8 = 24
TMPV = 184
VB = 24
QF = 56
KB = 88
PB = 120
PL = 128
OA = 136
SB = 200

def mk_srd(n, p, size):
    A(f"s_mov_b32 s{n}, s{p}")
    A(f"s_mov_b32 s{n+1}, s{p+1}")
    A(f"s_mov_b32 s{n+2}, {size}")
    A(f"s_mov_b32 s{n+3}, 0x00020000")

def prologue():
    if OPT["profile"]: A("s_memrealtime s[100:101]")
    A("s_cmp_ge_u32 s2, 256")
    A("s_cbranch_scc1 L_end")
    A("s_load_dwordx16 s[72:87], s[0:1], 0")
    A("s_load_dwordx4 s[88:91], s[0:1], 64")
    A("s_load_dwordx2 s[92:93], s[0:1], 80")
    A(f"s_lshr_b32 s{S_SLOT}, s2, 3")
    if OPT["codepf"]:
        A(f"s_getpc_b64 s[{S_PC}:{S_PC+1}]")
        A.label("L_pc")
        A(f"s_lshl_b32 s{T0}, s{S_SLOT}, 13")
        A("v_lshlrev_b32 v2, 4, v0")
        A(f"v_add_u32 v2, s{T0}, v2")
        A("v_and_b32 v2, 0xffff, v2")
        A("v_min_u32 v2, L_codeend-L_pc-16, v2")
        A.vm(f"global_load_dwordx4 v[252:255], v2, s[{S_PC}:{S_PC+1}]")
    A("v_lshrrev_b32 v1, 6, v0")
    A(f"v_readfirstlane_b32 s{S_W}, v1")
    A("v_and_b32 v1, 63, v0")
    A(f"s_and_b32 s{S_XCD}, s2, 7")
    A(f"s_and_b32 s{S_RT}, s{S_W}, 3")
    A(f"s_mul_i32 s{T0}, s{S_SLOT}, 37")
    A(f"s_lshr_b32 s{T0}, s{T0}, 8")
    A(f"s_mul_i32 s{T1}, s{T0}, 7")
    A(f"s_sub_u32 s{S_CT}, s{S_SLOT}, s{T1}")
    A(f"s_lshr_b32 s{T2}, s{S_XCD}, 1")
    A(f"s_lshl_b32 s{T2}, s{T2}, 2")
    A(f"s_add_u32 s{S_RB}, s{T2}, s{T0}")
    A(f"s_and_b32 s{T3}, s{S_XCD}, 1")
    A(f"s_mul_i32 s{T3}, s{T3}, 7")
    A(f"s_add_u32 s{S_J}, s{T3}, s{S_CT}")
    A(f"s_lshl_b32 s{S_RB64}, s{S_XCD}, 2")
    A(f"s_add_u32 s{S_RB64}, s{S_RB64}, s{T0}")

def prologue2():
    A(f"s_lshr_b32 s{T4}, s{S_SLOT}, 4")
    A(f"s_lshl_b32 s{S_HEAD}, s{S_XCD}, 1")
    A(f"s_add_u32 s{S_HEAD}, s{S_HEAD}, s{T4}")
    A(f"s_and_b32 s{S_QB}, s{S_SLOT}, 15")
    A(f"s_lshl_b32 s{S_RTG}, s{S_RB}, 2")
    A(f"s_add_u32 s{S_RTG}, s{S_RTG}, s{S_RT}")
    mk_srd(SRD_WO, 76, 448 * 896)
    mk_srd(SRD_WD, 84, 1792 * 896)
    mk_srd(SRD_GW, 86, 896)
    mk_srd(SRD_OUT, 88, 2048 * 896)
    mk_srd(SRD_DBG, 90, 256)
    if OPT.get("wsoff"):
        A(f"s_add_u32 s92, s92, {OPT['wsoff'] << 20}")
        A("s_addc_u32 s93, s93, 0")
    mk_srd(SRD_WS, 92, WS_SIZE)
    A(f"v_lshlrev_b32 v{V_L16}, 4, v1")
    stamp(0)

def publish_tag():
    sk = newlabel("notag")
    A(f"s_xor_b32 s{T0}, s2, 224")
    A(f"s_or_b32 s{T0}, s{T0}, s{S_W}")
    A(f"s_cmp_lg_u32 s{T0}, 0")
    A(f"s_cbranch_scc1 {sk}")
    A(f"s_memrealtime s[{S_TAG}:{S_TAG+1}]")
    A("s_waitcnt lgkmcnt(0)")
    A(f"s_or_b32 s{S_TAG+1}, s{S_TAG+1}, 0x80000000")
    A(f"v_mov_b32 v2, s{S_TAG}")
    A(f"v_mov_b32 v3, s{S_TAG+1}")
    A("v_mov_b32 v4, 0")
    A("s_mov_b64 exec, 1")
    A(f"buffer_store_dwordx2 v[2:3], v4, {srd(SRD_DBG)}, 0 offen sc1")
    A("s_mov_b64 exec, -1")
    A.label(sk)

def phaseA_setup():
    w = S_W
    A(f"s_lshl_b32 s{S_MA}, s{w}, 10")
    A(f"s_lshl_b32 s{S_MX}, s{w}, 11")
    A(f"s_lshr_b32 s{T0}, s{w}, 2")
    A(f"s_lshl_b32 s{S_MV}, s{T0}, 13")
    A(f"s_lshl_b32 s{T1}, s{S_RT}, 10")
    A(f"s_add_u32 s{S_MV}, s{S_MV}, s{T1}")
    t0, t1, t2, t3 = V_T, V_T + 1, V_T + 2, V_T + 3
    A(f"s_lshl_b32 s{T1}, s{S_RB}, 7")
    A(f"s_lshl_b32 s{T2}, s{w}, 4")
    A(f"s_add_u32 s{T1}, s{T1}, s{T2}")
    A(f"v_lshrrev_b32 v{t0}, 3, v1")
    A(f"v_add_u32 v{t1}, s{T1}, v{t0}")
    A(f"v_mul_u32_u24 v{t1}, 896, v{t1}")
    A(f"v_lshrrev_b32 v{t2}, 4, v1")
    A(f"v_and_b32 v{t3}, 7, v1")
    A(f"v_xor_b32 v{t3}, v{t3}, v{t2}")
    A(f"v_lshl_add_u32 v{V_X0}, v{t3}, 4, v{t1}")
    A(f"v_xor_b32 v{t3}, 4, v{t3}")
    A(f"v_lshl_add_u32 v{V_X1}, v{t3}, 4, v{t1}")
    A(f"v_add_u32 v{V_X1}, {8*896}, v{V_X1}")
    A(f"s_lshl_b32 s{T1}, s{w}, 2")
    A(f"v_add_u32 v{t1}, s{T1}, v{t2}")
    A(f"v_mul_u32_u24 v{t1}, 2688, v{t1}")
    A(f"v_bfe_u32 v{t3}, v1, 1, 3")
    A(f"v_lshlrev_b32 v{V_Q}, 1, v{t2}")
    A(f"v_xor_b32 v{t3}, v{t3}, v{V_Q}")
    A(f"v_lshl_add_u32 v{t1}, v{t3}, 5, v{t1}")
    A(f"v_and_b32 v{t3}, 1, v1")
    A(f"v_lshl_add_u32 v{t1}, v{t3}, 4, v{t1}")
    A(f"s_mul_i32 s{T1}, s{S_J}, 3")
    A(f"s_lshr_b32 s{T1}, s{T1}, 1")
    A(f"s_lshl_b32 s{T1}, s{T1}, 7")
    A(f"v_add_u32 v{V_Q}, s{T1}, v{t1}")
    A(f"s_lshl_b32 s{T1}, s{S_RT}, 3")
    A(f"v_add_u32 v{t1}, s{T1}, v{t0}")
    A(f"v_mul_u32_u24 v{t1}, 3584, v{t1}")
    A(f"v_lshl_add_u32 v{t1}, v{t3}, 4, v{t1}")
    A(f"v_bfe_u32 v{t3}, v1, 1, 2")
    A(f"v_bfe_u32 v{V_F}, v1, 4, 1")
    A(f"v_lshlrev_b32 v{V_F}, 1, v{V_F}")
    A(f"v_add_u32 v{V_F}, s{T0}, v{V_F}")
    A(f"v_xor_b32 v{t3}, v{t3}, v{V_F}")
    A(f"v_lshl_add_u32 v{t1}, v{t3}, 5, v{t1}")
    A(f"s_lshl_b32 s{T1}, s{S_J}, 8")
    A(f"v_add_u32 v{V_F}, s{T1}, v{t1}")
    A("s_waitcnt lgkmcnt(0)")
    mk_srd(SRD_X, 72, 2048 * 896)
    mk_srd(SRD_QKV, 74, 448 * 2688)
    A(f"s_cmp_ge_u32 s{S_W}, 4")
    A(f"s_cselect_b32 s{SRD_GU}, s82, s80")
    A(f"s_cselect_b32 s{SRD_GU+1}, s83, s81")
    A(f"s_mov_b32 s{SRD_GU+2}, {448*3584}")
    A(f"s_mov_b32 s{SRD_GU+3}, 0x00020000")

def issue_half(it, e):
    slot = (it % NSLOT) * SLOT
    if it < 21:
        c, k = divmod(it, 3)
        if k == 0:
            A(f"s_add_u32 m0, s{S_MX}, {slot + 1024*e}")
            A(f"s_movk_i32 s{T6}, {c*128}")
            return A.vm(f"buffer_load_dwordx4 v{V_X0+e}, {srd(SRD_X)}, s{T6} offen lds")
        b = 2 * c + k - 1
        if e == 0:
            A(f"s_add_u32 m0, s{S_MA}, {slot}")
            A(f"s_mov_b32 s{T6}, {b*32*2688}")
            return A.vm(f"buffer_load_dwordx4 v{V_Q}, {srd(SRD_QKV)}, s{T6} offen lds")
        A(f"s_add_u32 m0, s{S_MA}, {slot+8192}")
        A(f"s_mov_b32 s{T6}, {b*32*3584}")
        return A.vm(f"buffer_load_dwordx4 v{V_F}, {srd(SRD_GU)}, s{T6} offen lds")
    v = it - 21
    A(f"s_add_u32 m0, s{S_MV}, {slot + 4096*e}")
    A(f"s_mov_b32 s{T6}, {(v*64+32*e)*3584+128}")
    return A.vm(f"buffer_load_dwordx4 v{V_F}, {srd(SRD_GU)}, s{T6} offen lds")

def phaseA_readbases(cg):
    hf, g16, r, c4 = V_T, V_T + 1, V_T + 2, V_T + 3
    u0, u1 = V_T + 4, V_T + 5
    A(f"v_lshrrev_b32 v{hf}, 5, v1")
    A(f"v_bfe_u32 v{g16}, v1, 4, 1")
    A(f"v_bfe_u32 v{r}, v1, 2, 2")
    A(f"v_and_b32 v{c4}, 3, v1")
    A(f"v_and_b32 v{u0}, 31, v1")
    A(f"s_lshl_b32 s{T1}, s{S_RT}, 5")
    A(f"v_add_u32 v{u0}, s{T1}, v{u0}")
    A(f"v_lshlrev_b32 v{u0}, 7, v{u0}")
    A(f"v_bfe_u32 v{u1}, v1, 1, 3")
    A(f"v_xor_b32 v{u1}, v{u1}, v{hf}")
    A(f"v_lshl_add_u32 v{V_XB}, v{u1}, 4, v{u0}")
    A(f"v_lshl_add_u32 v{u0}, v{hf}, 3, v{r}")
    A(f"v_and_b32 v{u1}, 2, v{r}")
    A(f"v_add_u32 v{u1}, v{u1}, v{g16}")
    A(f"v_lshlrev_b32 v{u1}, 5, v{u1}")
    A(f"v_lshl_add_u32 v{u1}, v{c4}, 3, v{u1}")
    A(f"v_lshl_add_u32 v{u1}, v{u0}, 7, v{u1}")
    A(f"v_lshl_add_u32 v{V_TV}, v{g16}, 13, v{u1}")
    if cg == 1:
        A(f"v_lshl_add_u32 v{V_TB}, v{g16}, 12, v{u1}")
        A(f"v_add_u32 v{V_TB}, 8192, v{V_TB}")
    else:
        A(f"v_lshlrev_b32 v{u0}, 8, v{u0}")
        A(f"v_lshl_add_u32 v{u0}, v{c4}, 3, v{u0}")
        A(f"v_lshlrev_b32 v{u1}, 1, v{r}")
        A(f"v_xor_b32 v{u1}, v{u1}, v{g16}")
        A(f"v_lshl_add_u32 v{u0}, v{u1}, 5, v{u0}")
        A(f"s_and_b32 s{T1}, s{S_J}, 1")
        for t in range(3):
            A(f"s_add_u32 s{T2}, s{T1}, {t}")
            A(f"s_lshl_b32 s{T2}, s{T2}, 6")
            A(f"v_xor_b32 v{V_TB+t}, s{T2}, v{u0}")
    A(f"v_mov_b32 v{V_T+4}, {f32(GK0)}")
    A(f"s_mul_i32 s{S_HB}, s{S_RTG}, {H_RT}")
    A(f"s_lshl_b32 s{T1}, s{S_J}, 13")
    A(f"s_add_u32 s{S_HB}, s{S_HB}, s{T1}")
    A(f"s_add_u32 s{S_HB}, s{S_HB}, {WS_H}")

STORES = []

def gelu_tile(acc, fs_add, tmp):
    F = []
    e = lambda s: F.append(lambda s=s: A(s))
    for i in range(8): e(f"v_mul_f32 v{tmp+i}, v{acc+i}, v{acc+i}")
    for i in range(8): e(f"v_fmamk_f32 v{tmp+i}, v{tmp+i}, {f32(GK1)}, v{V_T+4}")
    for i in range(8): e(f"v_mul_f32 v{tmp+i}, v{tmp+i}, v{acc+i}")
    for i in range(8):
        e(f"v_exp_f32 v{tmp+i}, v{tmp+i}")
        e(f"v_mul_f32 v{acc+i}, v{acc+i}, v{acc+8+i}")
    for i in range(8): e(f"v_add_f32 v{tmp+i}, 1.0, v{tmp+i}")
    for i in range(8): e(f"v_rcp_f32 v{tmp+i}, v{tmp+i}")
    for i in range(8): e(f"v_mul_f32 v{acc+i}, v{acc+i}, v{tmp+i}")
    for i in range(4): e(f"v_cvt_pk_bf16_f32 v{acc+8+i}, v{acc+2*i}, v{acc+2*i+1}")
    def st():
        A(f"s_add_u32 s{T7}, s{S_HB}, {fs_add*1024}")
        STORES.append(A.vm(f"buffer_store_dwordx4 {vr(acc+8,4)}, v{V_L16}, {srd(SRD_WS)}, s{T7} offen sc1"))
    F.append(st)
    return F

def qk_tile(acc, t):
    A(f"s_mul_i32 s{T3}, s{S_J}, 3")
    A(f"s_add_u32 s{T3}, s{T3}, {t}")
    sk = newlabel("noscale")
    A(f"s_mov_b32 s{T4}, {f32(QSCALE)}")
    A("s_nop 7")
    A(f"s_cmp_ge_u32 s{T3}, 14")
    A(f"s_cbranch_scc1 {sk}")
    for i in range(16): A(f"v_mul_f32 v{acc+i}, s{T4}, v{acc+i}")
    A.label(sk)
    for i in range(8): A(f"v_cvt_pk_bf16_f32 v{acc+i}, v{acc+2*i}, v{acc+2*i+1}")
    A(f"s_lshl_b32 s{T3}, s{T3}, 11")
    A(f"s_mul_i32 s{T4}, s{S_RTG}, {QK_RT}")
    A(f"s_add_u32 s{T3}, s{T3}, s{T4}")
    for a, b in ((0, 2), (1, 3), (4, 6), (5, 7)):
        A(f"v_permlane32_swap_b32 v{acc+a}, v{acc+b}")
    STORES.append(A.vm(f"buffer_store_dwordx4 {vr(acc,4)}, v{V_L16}, {srd(SRD_WS)}, s{T3} offen sc1"))
    STORES.append(A.vm(f"buffer_store_dwordx4 {vr(acc+4,4)}, v{V_L16}, {srd(SRD_WS)}, s{T3} offen offset:1024 sc1"))

def v_lane(dst):
    A(f"v_lshrrev_b32 v{dst}, 5, v1")
    A(f"v_mul_u32_u24 v{dst}, {7168 - 512}, v{dst}")
    A(f"v_add_u32 v{dst}, v{dst}, v{V_L16}")

def v_tile(acc, t, tmp):
    v_lane(tmp)
    A(f"s_mul_i32 s{T3}, s{S_J}, 1536")
    A(f"s_mul_i32 s{T4}, s{S_RTG}, {VT_KT}")
    A(f"s_add_u32 s{T3}, s{T3}, s{T4}")
    A(f"s_add_u32 s{T3}, s{T3}, {WS_VT + (t-28)*512}")
    A(f"s_add_u32 s{T4}, s{T3}, {2*7168}")
    for i in range(8): A(f"v_cvt_pk_bf16_f32 v{acc+i}, v{acc+2*i}, v{acc+2*i+1}")
    STORES.append(A.vm(f"buffer_store_dwordx4 {vr(acc,4)}, v{tmp}, {srd(SRD_WS)}, s{T3} offen sc1"))
    STORES.append(A.vm(f"buffer_store_dwordx4 {vr(acc+4,4)}, v{tmp}, {srd(SRD_WS)}, s{T4} offen sc1"))

STEPS = []
for _b in range(14):
    for _ks in range(2): STEPS.append((_b, _ks == 0, 1, _ks, 2 * _b + _ks))
for _v in range(7):
    for _ks in range(4): STEPS.append((14 + _v, _ks == 0, 2, _ks, 4 * _v + _ks))
def items_of(ch):
    if ch < 14:
        return [3 * (ch // 2), 3 * (ch // 2) + 1] if ch % 2 == 0 else [3 * (ch // 2) + 2]
    return [21 + ch - 14]
CONSUMED = {it: ch for ch in range(21) for it in items_of(ch)}
def avail(it):
    free = -1 if it < NSLOT else CONSUMED[it - NSLOT] + 1
    return max(free, min(CONSUMED[it] - OPT["lead"], 14))

BARR = {ch: items_of(ch)[-1] for ch in range(14)}
for _x in OPT["vbar"].split(","):
    _c, _i = _x.split(":"); BARR[int(_c)] = int(_i)
assert max(BARR.values()) == 27

def cnt_init(second):
    sk = newlabel("cinit")
    A(f"s_cmp_lg_u32 s{S_W}, 0")
    A(f"s_cbranch_scc1 {sk}")
    A(f"v_lshlrev_b32 v{V_T}, 2, v1")
    A(f"v_add_u32 v{V_T}, {LDS_CNT}, v{V_T}")
    A(f"v_cmp_eq_u32 vcc, 1, v1")
    A(f"v_cndmask_b32 v{V_T+1}, 0, {second}, vcc")
    A(f"ds_write_b32 v{V_T}, v{V_T+1}")
    A.label(sk)

def cnt_add(off, va, vb):
    A(f"v_mov_b32 v{va}, {LDS_CNT + off}")
    A(f"v_mov_b32 v{vb}, 1")
    A("s_waitcnt lgkmcnt(0)")
    A.lg_all()
    A("s_mov_b64 exec, 1")
    A(f"ds_add_u32 v{va}, v{vb}")
    A("s_mov_b64 exec, -1")

def cnt_wait(off, target, va, vb):
    L = newlabel("cnt"); D = newlabel("cntd")
    A(f"v_mov_b32 v{va}, {LDS_CNT + off}")
    A(f"s_mov_b32 s{S_CNT}, 0x100000")
    A.label(L)
    A(f"ds_read_b32 v{vb}, v{va}")
    A("s_waitcnt lgkmcnt(0)")
    A(f"v_readfirstlane_b32 s{T0}, v{vb}")
    A(f"s_cmp_ge_u32 s{T0}, {target}")
    A(f"s_cbranch_scc1 {D}")
    A(f"s_sub_u32 s{S_CNT}, s{S_CNT}, 1")
    A(f"s_cmp_lg_u32 s{S_CNT}, 0")
    A(f"s_cbranch_scc1 {L}")
    A.label(D)

class PA:
    def __init__(self):
        self.tok = {}; self.dq = 0; self.chunk = -1; self.fill = deque(); self.tagtok = None; self.hooks = {}; self.landed = -1; self.rtok = {}; self.xtok = {}; self.rate = OPT["fill"]
    def dma(self, n=1, force=False):
        for _ in range(n):
            it, e = divmod(self.dq, 2)
            if it >= 28 or (avail(it) > self.chunk and not (force and (it < NSLOT or CONSUMED[it - NSLOT] + 1 <= self.chunk))): return
            t = 0 if ("nodma" in OPT["exp"] and it >= 5) else issue_half(it, e)
            if e == 1: self.tok[it] = t
            self.dq += 1
    def drain(self, n):
        for _ in range(n):
            if not self.fill: break
            self.fill.popleft()()

def fbase(i, p): return (FS1 if p == 1 else FS2)[i % 3]

def pa_mfma_list(st, cg, vflags, i):
    ch, first, p, ks, gk = STEPS[i]
    fb = fbase(i, p)
    x = vr(XF + 4 * gk, 4)
    n = (3 if cg == 0 else 4) if p == 1 else 2
    out = []
    for t in range(n):
        def m(t=t):
            acc = (ACC1 if p == 1 else ACC2) + 16 * t
            c = "0" if gk == 0 else vr(acc, 16)
            w = vr(fb + 4 * t, 4)
            A.lg_wait(max(st.rtok.get((i, t), 0), st.xtok.get(gk, 0) if p == 1 else 0))
            if "nomfma" in OPT["exp"]:
                pass
            elif p == 1 and cg == 0 and vflags[t]:
                A(f"v_mfma_f32_32x32x16_bf16 {vr(acc,16)}, {x}, {w}, {c}")
            else:
                A(f"v_mfma_f32_32x32x16_bf16 {vr(acc,16)}, {w}, {x}, {c}")
        out.append(m)
    return out

def pa_gap(st, p):
    st.dma(1)
    if p == 2: st.drain(st.rate)

def pa_mfmas(st, cg, vflags, i):
    for m in pa_mfma_list(st, cg, vflags, i):
        m(); pa_gap(st, STEPS[i][2])

def pa_run(st, cg, vflags, i0, i1):
    n1 = 3 if cg == 0 else 4
    for i in range(i0, i1):
        Ms = pa_mfma_list(st, cg, vflags, i - 2) if i >= 2 else []
        pp = STEPS[i - 2][2] if i >= 2 else 1
        Rs = []
        if i < len(STEPS):
            ch, first, p, ks, gk = STEPS[i]
            bar = first and ch in BARR
            fb = fbase(i, p)
            n = n1 if p == 1 else 2
            pitch = 256 if (p == 1 and cg == 0) else 128
            def R(t):
                for a in range(2):
                    if "noread" in OPT["exp"]: continue
                    st.rtok[(i, t)] = A.lg(f"ds_read_b64_tr_b16 {vr(fb + 4*t + 2*a, 2)}, v{V_VA+t} offset:{(16*ks + 4*a) * pitch}")
            def X(kk):
                c = gk // 4
                xslot = ((3 * c) % NSLOT) * SLOT
                A(f"v_xor_b32 v{V_XA}, {xslot | (kk << 5)}, v{V_XB}")
                st.xtok[4 * c + kk] = A.lg(f"ds_read_b128 {vr(XF + 4*(4*c+kk), 4)}, v{V_XA}")
            Rs = [lambda t=t: R(t) for t in range(n)]
            if p == 1 and ch % 2 == 0:
                if ks == 0: Rs = [lambda: X(0)] + Rs + [lambda: X(1)]
                else: Rs = [lambda: X(2), lambda: X(3)] + Rs
            h = 0
            if bar:
                h = min(len(Ms), OPT["barm"])
                for m in Ms[:h]:
                    m(); pa_gap(st, pp)
                Ms = Ms[h:]
            if first:
                its = items_of(ch)
                if bar:
                    need = BARR[ch]
                    while need not in st.tok:
                        before = st.dq
                        st.dma(1, force=True)
                        assert st.dq != before, "item needed before its slot is free"
                    A.vm_wait(st.tok[need], "lgkmcnt(0)")
                    A.lg_all()
                    A("s_barrier")
                    st.chunk = ch
                    st.landed = need
                assert st.landed >= its[-1]
                SP = {0: 2, 1: 3, 3: 4, 6: 5, 9: 6, 12: 7, 14: 8, 18: 9} if not OPT["sp2"] else {13: 2, 14: 3, 15: 4, 16: 5, 17: 6, 18: 7, 19: 8, 20: 9}
                if ch in SP: stamp2(SP[ch])
                wslot = (its[-1] % NSLOT) * SLOT
                if p == 1:
                    for t in range(n1):
                        if cg == 0: A(f"v_add_u32 v{V_VA+t}, {wslot}, v{V_TB+t}")
                        else: A(f"v_xor_b32 v{V_VA+t}, {wslot | (t << 5)}, v{V_TB}")
                else:
                    for t in range(2):
                        A(f"v_xor_b32 v{V_VA+t}, {wslot | ((2*cg + t) << 5)}, v{V_TV}")
                if ch in st.hooks: st.hooks[ch]()
        if ("before", i) in st.hooks: st.hooks[("before", i)]()
        k = max(len(Ms), 1)
        per = -(-len(Rs) // k)
        for j in range(k):
            if j < len(Ms): Ms[j]()
            for r in Rs[j * per:(j + 1) * per]: r()
            if j < len(Ms): pa_gap(st, pp)
        if i < 2: st.dma(2)
        if ("after", i) in st.hooks: st.hooks[("after", i)]()

def tag_hooks(st):
    def issue():
        A(f"v_mov_b32 v{V_T+2}, 0")
        st.tagtok = A.vm(f"buffer_load_dwordx2 {vr(V_T,2)}, v{V_T+2}, {srd(SRD_DBG)}, 0 offen sc1")
    def check():
        A.vm_wait(st.tagtok)
        A(f"v_readfirstlane_b32 s{S_TAG}, v{V_T}")
        A(f"v_readfirstlane_b32 s{S_TAG+1}, v{V_T+1}")
        ok = newlabel("tagok")
        A(f"s_cmp_lg_u32 s{S_TAG+1}, 0")
        A(f"s_cbranch_scc1 {ok}")
        get_tag_spin(V_T)
        A.label(ok)
    return issue, check

def hflag_off(dst, cg):
    A(f"s_lshl_b32 s{dst}, s{S_RTG}, 4")
    A(f"s_add_u32 s{dst}, s{dst}, s{S_J}")
    A(f"s_lshl_b32 s{dst}, s{dst}, 7")
    A(f"s_add_u32 s{dst}, s{dst}, {WS_FH + 8*cg}")

def roleA_pass1(st0, vm0, vflags):
    global STORES
    STORES = []
    st = copy.deepcopy(st0)
    A.vm_issued = vm0
    A.lg_issued = 0; A.lg_done = 0
    issue, check = tag_hooks(st)
    st.hooks = {10: issue, 13: check, 14: lambda: cnt_init(0)}
    pa_run(st, 0, vflags, 0, 30)
    stamp(1)
    for t in range(3):
        acc = ACC1 + 16 * t
        if vflags[t]: v_tile(acc, t, TMPV)
        else: qk_tile(acc, t)
    return st

def interleave(a, b, every):
    out = []; b = list(b)
    for k, f in enumerate(a):
        out.append(f)
        if b and (k + 1) % every == 0: out.append(b.pop(0))
    return out, b

def o_arm_stores(tmp):
    for i in range(4): A(f"v_mov_b32 v{tmp+i}, -1")
    for ks in range(2):
        t = A.vm(f"buffer_store_dwordx4 {vr(tmp,4)}, v{V_L16}, {srd(SRD_WS)}, s{S_OOFF} offen offset:{1024*ks} sc1")
    return t

def o_arm_flag():
    A(f"s_sub_u32 s{T3}, s{S_OOFF}, {WS_O}")
    A(f"s_lshr_b32 s{T3}, s{T3}, 4")
    A(f"s_add_u32 s{T3}, s{T3}, {WS_FO}")
    flag_store(T3, V_T)

def poll2_issue():
    A.vm(f"buffer_load_dwordx2 {vr(V_T,2)}, v2, {srd(SRD_WS)}, 0 offen sc1")
    return A.vm(f"buffer_load_dwordx2 {vr(V_T+2,2)}, v3, {srd(SRD_WS)}, 0 offen sc1")

def poll2_test():
    A(f"v_cmp_ne_u64 vcc, s[{S_TAG}:{S_TAG+1}], {vr(V_T,2)}")
    A(f"v_cmp_ne_u64 s[{T2}:{T3}], s[{S_TAG}:{S_TAG+1}], {vr(V_T+2,2)}")
    A(f"s_or_b64 s[{T2}:{T3}], s[{T2}:{T3}], vcc")

def roleA_pass2(st):
    qstore = STORES[-1]
    e = lambda s: st.fill.append(lambda s=s: A(s))
    def hq():
        if "noqwait" not in OPT["exp"]: A.vm_wait(qstore)
        A(f"s_lshl_b32 s{T3}, s{S_J}, 6")
        A(f"s_add_u32 s{T3}, s{T3}, s{S_RTG}")
        A(f"s_lshl_b32 s{T3}, s{T3}, 3")
        A(f"s_add_u32 s{T3}, s{T3}, {WS_FQ}")
        flag_store(T3, V_T)
        stamp(7)
    ptok = []; atok = []
    def setup():
        assert st.dq == 56, st.dq
        st.fill.append(attn_setup)
        st.fill.append(lambda: atok.append(o_arm_stores(VB)))
        for i in range(32): e(f"v_mov_b32 v{VB+i}, v4")
    def hpoll():
        assert not st.fill
        A.vm_wait(atok[0])
        o_arm_flag()
        ptok.append(poll2_issue())
    st.hooks = {("before", OPT["qflag"]): hq, ("after", 39): setup, ("before", OPT["qpoll"]): hpoll,
                ("before", 57): lambda: cnt_add(4, V_VA, V_VA + 1)}
    for i in range(64):
        if "noafill" not in OPT["exp"]: e(f"v_mov_b32 v{OA+i}, 0")
    pa_run(st, 0, None, 30, 58)
    st.drain(10 ** 6)
    stamp(2)
    if "stopA" in OPT["exp"]:
        prof_dump(2); A("s_endpgm")
    hflag_off(S_HF, 0)
    A.vm_wait(ptok[-1])
    poll2_test()
    A("s_cbranch_scc1 L_attn_miss")
    stamp(3)
    g = gelu_tile(ACC2, 4, 200) + gelu_tile(ACC2 + 16, 5, 200)
    g2, left = interleave(g[:-1], attn_load_list(), 6)
    for f in g2 + left + g[-1:]: f()
    A("s_branch L_attn")
    A.label("L_attn_miss")
    A("s_nop 2")
    for f in gelu_tile(ACC2, 4, 200): f()
    poll2_issue()
    for f in gelu_tile(ACC2 + 16, 5, 200): f()
    stamp(8)
    A("s_waitcnt vmcnt(1)")
    poll2_test()
    A("s_cbranch_scc0 L_attn_go")
    A.label("L_attn_late")
    A(f"s_mov_b32 s{S_CNT}, 0x4000")
    A.label("L_attn_spin")
    poll2_issue()
    A("s_waitcnt vmcnt(0)")
    poll2_test()
    A("s_cbranch_scc0 L_attn_go")
    A(f"s_sub_u32 s{S_CNT}, s{S_CNT}, 1")
    A(f"s_cmp_lg_u32 s{S_CNT}, 0")
    A("s_cbranch_scc1 L_attn_spin")
    A.label("L_attn_go")
    A("s_nop 0")
    stamp(9)
    for f in attn_load_list(): f()

def roleG_phaseA(st0, vm0):
    global STORES
    STORES = []
    st = copy.deepcopy(st0)
    A.vm_issued = vm0
    A.lg_issued = 0; A.lg_done = 0
    phaseA_readbases(1)
    issue, check = tag_hooks(st)
    def epi1():
        stamp(1)
        if "nogelu" in OPT["exp"]: return
        late = []
        for t in range(4):
            g = gelu_tile(ACC1 + 16 * t, t, TMP8)
            if OPT["hlate"]: late.append(g.pop())
            st.fill.extend(g)
        st.fill.extend(late)
    hooks = {10: issue, 13: check, ("after", 31): epi1, ("before", 57): lambda: cnt_add(4, V_VA, V_VA + 1)}
    if OPT["gprio"]: hooks[OPT["gpch"]] = lambda: A(f"s_setprio {OPT['gprio']}")
    st.hooks = hooks
    pa_run(st, 1, None, 0, 58)
    stamp(2)
    st.drain(10 ** 6)
    for t in range(2):
        for f in gelu_tile(ACC2 + 16 * t, 6 + t, TMP8): f()
    if OPT["gprio"]: A("s_setprio 0")
    if "stopA" in OPT["exp"]:
        prof_dump(2); A("s_endpgm")
    cnt_wait(4, 8, V_VA, V_VA + 1)
    phaseC_prefetch(OPT["cpre"])
    hflag_off(T3, 1)
    A.vm_wait(STORES[-1])
    flag_store(T3, V_T)
    stamp(3)
    if "gexit" in OPT["exp"]:
        prof_dump(2); A("s_endpgm")
    for s in range(OPT["cpre"], RING_N): cW(s)

def gate_path():
    A(f"s_lshr_b32 s{T2}, s{S_XCD}, 1")
    A(f"s_lshl_b32 s{T2}, s{T2}, 2")
    A(f"s_sub_u32 s{T4}, s{S_SLOT}, 28")
    A(f"s_add_u32 s{S_RB}, s{T4}, s{T2}")
    A("s_waitcnt lgkmcnt(0)")
    mk_srd(SRD_X, 72, 2048 * 896)
    prologue2()
    A(f"s_cmp_ge_u32 s{S_W}, 4")
    A("s_cbranch_scc1 L_touch")
    publish_tag()
    cnt_init(8)
    A(f"s_and_b32 s{T0}, s{S_XCD}, 1")
    A(f"s_cmp_lg_u32 s{T0}, 0")
    A("s_cbranch_scc1 L_gate_skip")
    A("v_and_b32 v2, 31, v1")
    A(f"s_lshl_b32 s{T0}, s{S_RTG}, 5")
    A(f"v_add_u32 v2, s{T0}, v2")
    A("v_lshrrev_b32 v4, 5, v1")
    A("v_lshlrev_b32 v4, 4, v4")
    A("v_mul_u32_u24 v3, 896, v2")
    A("v_add_u32 v3, v3, v4")
    for i in range(16): A(f"v_mov_b32 v{136+i}, 0")
    A(f"s_mov_b32 s{T0}, 0")
    A.label("L_gate_loop")
    for k in range(4):
        A(f"buffer_load_dwordx4 {vr(24+4*k,4)}, v3, {srd(SRD_X)}, s{T0} offen offset:{k*32}")
        A(f"buffer_load_dwordx4 {vr(80+4*k,4)}, v4, {srd(SRD_GW)}, s{T0} offen offset:{k*32}")
    A("s_waitcnt vmcnt(0)")
    for k in range(4):
        A(f"v_mfma_f32_32x32x16_bf16 {vr(136,16)}, {vr(80+4*k,4)}, {vr(24+4*k,4)}, {vr(136,16)}")
    A(f"s_add_u32 s{T0}, s{T0}, 128")
    A(f"s_cmp_lt_u32 s{T0}, 896")
    A("s_cbranch_scc1 L_gate_loop")
    A(f"v_mul_f32 v5, {f32(-LOG2E)}, v136")
    A("v_exp_f32 v5, v5")
    A("v_add_f32 v5, 1.0, v5")
    A("v_rcp_f32 v5, v5")
    A("v_lshlrev_b32 v2, 2, v2")
    A(f"s_mov_b32 s{T0}, {WS_G}")
    A("s_mov_b32 exec_hi, 0")
    A(f"buffer_store_dword v5, v2, {srd(SRD_WS)}, s{T0} offen sc1")
    A("s_mov_b32 exec_hi, -1")
    get_tag_spin(V_T)
    A(f"s_lshl_b32 s{T3}, s{S_RTG}, 11")
    A(f"s_add_u32 s{T3}, s{T3}, {WS_FH + 14*128}")
    flag_store(T3, V_T)
    A.label("L_gate_skip")
    if "stopA" in OPT["exp"]: A("s_endpgm")
    attn_setup()
    for i in range(32): A(f"v_mov_b32 v{VB+i}, v4")
    for i in range(64): A(f"v_mov_b32 v{OA+i}, 0")
    o_arm_stores(SB)
    A("s_waitcnt vmcnt(0) lgkmcnt(0)")
    A("s_barrier")
    get_tag_spin(V_T)
    o_arm_flag()
    poll(2, V_T, sleep=8)
    stamp(3)
    A(f"s_mov_b32 s{S_HF}, 0")
    A("s_branch L_attn_late")

def global_touch():
    if OPT["tmap"]:
        A(f"s_mul_i32 s{T1}, s{S_RB}, 14")
        A(f"s_add_u32 s{T1}, s{T1}, s{S_J}")
        A(f"s_cmp_eq_u32 s{S_W}, 0")
        A(f"s_cselect_b32 s{T0}, s{T1}, s2")
    else:
        A(f"s_mul_i32 s{T0}, s{S_XCD}, 28")
        A(f"s_add_u32 s{T0}, s{T0}, s{S_SLOT}")
    A(f"s_lshl_b32 s{T0}, s{T0}, 13")
    A(f"v_lshlrev_b32 v{V_T}, 7, v1")
    dn = newlabel("gt"); l1 = newlabel("gt"); l2 = newlabel("gt")
    A(f"s_cmp_eq_u32 s{S_RT}, 2")
    A(f"s_cbranch_scc1 {l2}")
    A(f"s_cmp_eq_u32 s{S_W}, 1")
    A(f"s_cbranch_scc1 {l1}")
    A(f"s_cmp_eq_u32 s{S_W}, 0")
    A(f"s_cselect_b32 s{T0}, s{T0}, 0x10000000")
    A.vm(f"buffer_load_dword v{V_G}, v{V_T}, {srd(SRD_X)}, s{T0} offen")
    A(f"s_branch {dn}")
    A.label(l1)
    A(f"buffer_load_dword v{V_G}, v{V_T}, {srd(SRD_QKV)}, s{T0} offen")
    A(f"s_branch {dn}")
    A.label(l2)
    A(f"buffer_load_dword v{V_G}, v{V_T}, {srd(SRD_GU)}, s{T0} offen")
    A.label(dn)

def touch_path():
    A.label("L_touch")
    if not OPT["touch"]:
        A("s_endpgm"); return
    TW = T5
    A(f"s_sub_u32 s{T0}, s{S_SLOT}, 28")
    A(f"s_lshl_b32 s{T0}, s{T0}, 3")
    A(f"s_add_u32 s{T0}, s{T0}, s{S_XCD}")
    A(f"s_lshl_b32 s{T0}, s{T0}, 2")
    A(f"s_add_u32 s{TW}, s{T0}, s{S_RT}")
    tab = [(0, SRD_X, 2048 * 896, 896, 128), (32, 74, 448 * 2688, 128, 64 * 2688), (53, 80, 448 * 3584, 128, 64 * 3584),
           (81, 82, 448 * 3584, 128, 64 * 3584), (109, 76, 448 * 896, 128, 19 * 8192)]
    R = SRD_QKV
    for k, (f, p, nb, ls, rs) in enumerate(tab):
        if k == 0:
            A(f"s_mov_b32 s{R}, s{p}"); A(f"s_mov_b32 s{R+1}, s{p+1}"); A(f"s_mov_b32 s{R+2}, {nb}")
            A(f"s_mov_b32 s{T1}, {ls}"); A(f"s_mov_b32 s{T2}, {rs}"); A(f"s_mov_b32 s{T3}, {f}")
        else:
            A(f"s_cmp_ge_u32 s{TW}, {f}")
            A(f"s_cselect_b32 s{R}, s{p}, s{R}"); A(f"s_cselect_b32 s{R+1}, s{p+1}, s{R+1}"); A(f"s_cselect_b32 s{R+2}, {nb}, s{R+2}")
            A(f"s_cselect_b32 s{T1}, {ls}, s{T1}"); A(f"s_cselect_b32 s{T2}, {rs}, s{T2}"); A(f"s_cselect_b32 s{T3}, {f}, s{T3}")
    A(f"s_mov_b32 s{R+3}, 0x00020000")
    A(f"s_sub_u32 s{T3}, s{TW}, s{T3}")
    A(f"s_lshl_b32 s{T3}, s{T3}, 6")
    A(f"v_add_u32 v2, s{T3}, v1")
    A(f"v_mul_lo_u32 v2, v2, s{T1}")
    A(f"s_mov_b32 s{T4}, 0")
    for r in range(7 if OPT["itouch"] else 0):
        A(f"buffer_load_dword v{24+r}, v2, {srd(R)}, s{T4} offen")
        A(f"s_add_u32 s{T4}, s{T4}, s{T2}")
    A(f"s_lshl_b32 s{T3}, s{TW}, 6")
    A(f"v_add_u32 v2, s{T3}, v1")
    A("v_lshlrev_b32 v2, 7, v2")
    A(f"buffer_load_dword v32, v2, {srd(SRD_WD)}, 0 offen")
    A(f"s_mov_b32 s{T4}, {8192*128}")
    A(f"buffer_load_dword v33, v2, {srd(SRD_WD)}, s{T4} offen")
    for r in range(OPT["wspre"]):
        A(f"s_mov_b32 s{T4}, {r*8192*128}")
        A(f"buffer_load_dword v{40+r}, v2, {srd(SRD_WS)}, s{T4} offen")
    A("v_and_b32 v2, 15, v1")
    A("v_lshlrev_b32 v2, 20, v2")
    A(f"buffer_load_dword v34, v2, {srd(SRD_WS)}, 0 offen")
    A(f"buffer_load_dword v35, v2, {srd(SRD_OUT)}, 0 offen")
    A("s_waitcnt vmcnt(0)")
    A("s_endpgm")

def div3(dst, src):
    A(f"s_mul_i32 s{dst}, s{src}, 43")
    A(f"s_lshr_b32 s{dst}, s{dst}, 7")

def attn_setup():
    h = S_HEAD
    A(f"s_mul_i32 s{S_C0}, s{h}, 7")
    A(f"s_lshr_b32 s{S_C0}, s{S_C0}, 1")
    A(f"s_lshr_b32 s{T0}, s{S_C0}, 2")
    A(f"s_add_u32 s{T1}, s{S_C0}, 3")
    A(f"s_lshr_b32 s{T1}, s{T1}, 2")
    div3(T6, T0)
    div3(T2, T1)
    A(f"s_lshl_b32 s{T2}, s{T2}, 8")
    A(f"s_or_b32 s{T6}, s{T6}, s{T2}")
    A(f"s_add_u32 s{T0}, s{T0}, 14")
    A(f"s_add_u32 s{T1}, s{T1}, 14")
    div3(S_KVJ, T0)
    div3(T2, T1)
    A(f"s_lshl_b32 s{T2}, s{T2}, 8")
    A(f"s_or_b32 s{S_KVJ}, s{S_KVJ}, s{T2}")
    A(f"s_mul_i32 s{T0}, s{h}, 28")
    A(f"s_add_u32 s{T1}, s{T0}, 27")
    A(f"s_lshr_b32 s{T0}, s{T0}, 5")
    A(f"s_lshr_b32 s{T1}, s{T1}, 5")
    A(f"s_add_u32 s{T0}, s{T0}, 28")
    A(f"s_add_u32 s{T1}, s{T1}, 28")
    div3(T2, T0)
    A(f"s_lshl_b32 s{T2}, s{T2}, 16")
    A(f"s_or_b32 s{S_KVJ}, s{S_KVJ}, s{T2}")
    div3(T2, T1)
    A(f"s_lshl_b32 s{T2}, s{T2}, 24")
    A(f"s_or_b32 s{S_KVJ}, s{S_KVJ}, s{T2}")
    A("v_lshrrev_b32 v2, 4, v1")
    A("v_lshlrev_b32 v2, 3, v2")
    A(f"v_lshrrev_b32 v2, v2, s{S_KVJ}")
    A("v_and_b32 v2, 0xff, v2")
    A("v_lshlrev_b32 v2, 6, v2")
    A("v_and_b32 v3, 15, v1")
    A(f"s_lshl_b32 s{T0}, s{S_W}, 4")
    A(f"v_add3_u32 v2, v2, v3, s{T0}")
    A("v_lshlrev_b32 v2, 3, v2")
    A(f"v_add_u32 v2, {WS_FQ}, v2")
    A("v_bfe_u32 v3, v1, 2, 1")
    A("v_lshlrev_b32 v3, 3, v3")
    A(f"v_lshrrev_b32 v3, v3, s{T6}")
    A("v_and_b32 v3, 0xff, v3")
    A("v_lshlrev_b32 v3, 6, v3")
    A("v_and_b32 v4, 3, v1")
    A(f"s_lshl_b32 s{T0}, s{S_QB}, 2")
    A(f"v_add3_u32 v3, v3, v4, s{T0}")
    A("v_lshlrev_b32 v3, 3, v3")
    A(f"v_add_u32 v3, {WS_FQ}, v3")
    A(f"s_add_u32 s{S_QRT}, s{T0}, s{S_W}")
    A(f"s_lshl_b32 s{T1}, s{S_QRT}, 11")
    A(f"s_add_u32 s{T1}, s{T1}, {WS_FH + 14*128}")
    A(f"v_mov_b32 v4, s{T1}")
    A("v_and_b32 v5, 8, v1")
    A("v_cmp_ne_u32 vcc, 0, v5")
    A("v_cndmask_b32 v3, v3, v4, vcc")
    A("v_and_b32 v5, 31, v1")
    A("v_cmp_eq_u32 vcc, 28, v5")
    A("v_mov_b32 v4, 0x3f803f80")
    A("v_cndmask_b32 v4, 0, v4, vcc")
    A("v_lshlrev_b32 v5, 2, v5")
    A(f"s_mov_b32 s{S_VMASK}, 0x0fffffff")
    A(f"s_mov_b32 s{S_VMASK+1}, 0x0fffffff")
    A(f"s_lshl_b32 s{T1}, s{S_C0}, 9")
    A(f"s_mul_i32 s{S_KOFF}, s{S_W}, {16*QK_RT}")
    A(f"s_add_u32 s{S_KOFF}, s{S_KOFF}, s{T1}")
    A(f"s_add_u32 s{S_KOFF}, s{S_KOFF}, {56*512}")
    A(f"s_mul_i32 s{S_VOFF}, s{h}, 448")
    A(f"s_mul_i32 s{T2}, s{S_W}, {16*VT_KT}")
    A(f"s_add_u32 s{S_VOFF}, s{S_VOFF}, s{T2}")
    A(f"s_add_u32 s{S_VOFF}, s{S_VOFF}, {WS_VT}")
    v_lane(8)
    A(f"v_add_u32 v9, {2*7168}, v8")
    A(f"s_mul_i32 s{S_QOFF}, s{S_QB}, {4*QK_RT}")
    A(f"s_add_u32 s{S_QOFF}, s{S_QOFF}, s{T1}")
    A(f"s_lshl_b32 s{T0}, s{S_QRT}, 4")
    A(f"s_add_u32 s{T0}, s{T0}, s{h}")
    A(f"s_lshl_b32 s{S_OOFF}, s{T0}, 11")
    A(f"s_add_u32 s{S_OOFF}, s{S_OOFF}, {WS_O}")

def loadK1(buf, ks):
    A(f"buffer_load_dwordx4 {vr(KB+8*buf+4*ks,4)}, v{V_L16}, {srd(SRD_WS)}, s{S_KOFF} offen offset:{1024*ks} sc1")
    if ks == 1: A(f"s_add_u32 s{S_KOFF}, s{S_KOFF}, {QK_RT}")
def loadK(buf):
    loadK1(buf, 0); loadK1(buf, 1)
def loadV(buf):
    A(f"s_mov_b64 exec, s[{S_VMASK}:{S_VMASK+1}]")
    for ks in range(2):
        A(f"buffer_load_dwordx4 {vr(VB+8*buf+4*ks,4)}, v{8+ks}, {srd(SRD_WS)}, s{S_VOFF} offen sc1")
    A("s_mov_b64 exec, -1")
    A(f"s_add_u32 s{S_VOFF}, s{S_VOFF}, {VT_KT}")

def attn_load_list():
    L = []
    for qt in range(4):
        for ks in range(2):
            def q(qt=qt, ks=ks):
                A(f"s_add_u32 s{T2}, s{S_QOFF}, {qt*QK_RT}")
                A(f"buffer_load_dwordx4 {vr(QF+8*qt+4*ks,4)}, v{V_L16}, {srd(SRD_WS)}, s{T2} offen offset:{1024*ks} sc1")
            L.append(q)
    def gl():
        A(f"s_lshl_b32 s{T2}, s{S_QRT}, 7")
        A(f"s_add_u32 s{T2}, s{T2}, {WS_G}")
        A(f"buffer_load_dword v{V_G}, v5, {srd(SRD_WS)}, s{T2} offen sc1")
    L.append(gl)
    for b in range(4):
        L.append(lambda b=b: loadK1(b, 0)); L.append(lambda b=b: loadK1(b, 1))
        if b < 3: L.append(lambda b=b: loadV(b))
    return L

def attention():
    h = S_HEAD
    A.label("L_attn")
    if OPT["prio"]: A(f"s_setprio {OPT['prio']}")
    for i in range(4): A(f"v_mov_b32 v{PB+4+i}, 0")
    A(f"v_mov_b32 v6, {LDS_CNT + 4}")
    A("v_cmp_eq_u32 vcc, 0, v1")
    A("v_cndmask_b32 v10, 0, 1, vcc")
    A("s_waitcnt vmcnt(12)")
    stamp(4)
    ev = newlabel("qeven"); dn = newlabel("qdone")
    A(f"s_and_b32 s{T0}, s{h}, 1")
    A(f"s_cmp_eq_u32 s{T0}, 0")
    A(f"s_cbranch_scc1 {ev}")
    A("s_mov_b32 exec_hi, 0")
    for qt in range(4):
        A(f"v_mov_b32 v{QF+8*qt}, 0"); A(f"v_mov_b32 v{QF+8*qt+1}, 0")
    A(f"s_branch {dn}")
    A.label(ev)
    A("s_mov_b32 exec_lo, 0")
    for qt in range(4):
        A(f"v_mov_b32 v{QF+8*qt+6}, 0"); A(f"v_mov_b32 v{QF+8*qt+7}, 0")
    A.label(dn)
    A("s_mov_b64 exec, -1")
    A("s_nop 1")
    def qk(buf, qt, sb, ks):
        c = "0" if ks == 0 else vr(SB + 16 * sb, 16)
        A(f"v_mfma_f32_32x32x16_bf16 {vr(SB+16*sb,16)}, {vr(KB+8*buf+4*ks,4)}, {vr(QF+8*qt+4*ks,4)}, {c}")
    def pv(buf, qt, ks):
        A(f"v_mfma_f32_32x32x16_bf16 {vr(OA+16*qt,16)}, {vr(VB+8*buf+4*ks,4)}, {vr(PB+4*ks,4)}, {vr(OA+16*qt,16)}")
    qk(0, 0, 0, 0); qk(0, 0, 0, 1)
    A(f"s_mov_b32 s{S_IT}, 0")
    A("s_nop 7")
    A("s_nop 3")
    A.label("L_attn_loop")
    for tt in range(4):
        for qt in range(4):
            u = 4 * tt + qt
            s = SB + 16 * (u & 1)
            nb, nq = (tt, qt + 1) if qt < 3 else ((tt + 1) & 3, 0)
            pb_, pq = (tt, qt - 1) if qt > 0 else ((tt - 1) & 3, 3)
            E = lambda i: A(f"v_exp_f32 v{s+i}, v{s+i}")
            C = lambda i: A(f"v_cvt_pk_bf16_f32 v{PB+i}, v{s+2*i}, v{s+2*i+1}")
            def Y1():
                if qt == 3:
                    if tt == 0:
                        A(f"s_cmp_eq_u32 s{S_IT}, 3")
                        A(f"s_cselect_b32 s{S_KOFF}, {WS_SIZE}, s{S_KOFF}")
                        A(f"s_cselect_b32 s{S_VOFF}, {WS_SIZE}, s{S_VOFF}")
                    if tt == 2:
                        A("ds_read_b32 v7, v6")
                    if OPT["hold"] < 28: A("ds_add_u32 v6, v10 offset:4")
                    loadK(tt)
                elif qt == 0 and tt == 1:
                    sk = newlabel("hf")
                    A(f"s_cmp_eq_u32 s{S_HF}, 0")
                    A(f"s_cbranch_scc1 {sk}")
                    A("s_waitcnt vmcnt(4)")
                    flag_store(S_HF, V_T)
                    A(f"s_mov_b32 s{S_HF}, 0")
                    A.label(sk)
                elif OPT["yld"]: A(f"s_nop {OPT['yld']}")
            def Y2():
                if qt == 0: loadV((tt - 1) & 3)
                elif OPT["yld"]: A(f"s_nop {OPT['yld']}")
            if qt == 3:
                A("s_waitcnt vmcnt(10)")
            qk(nb, nq, (u + 1) & 1, 0)
            E(0); E(1); E(2)
            qk(nb, nq, (u + 1) & 1, 1)
            E(3); E(4); E(5)
            Y1()
            E(6); E(7); C(0); C(1); C(2); C(3)
            pv(pb_, pq, 1)
            E(8); E(9); E(10)
            if qt == 0: A("s_waitcnt vmcnt(10)")
            pv(tt, qt, 0)
            E(11); E(12); E(13)
            Y2()
            E(14); E(15); C(4); C(5); C(6); C(7)
    A(f"s_add_u32 s{S_IT}, s{S_IT}, 1")
    A(f"s_cmp_lt_u32 s{S_IT}, 4")
    A("s_cbranch_scc1 L_attn_loop")
    pv(3, 3, 1)
    stamp(5)
    okc = newlabel("ringok")
    A("s_waitcnt lgkmcnt(0)")
    A(f"v_readfirstlane_b32 s{T0}, v7")
    A(f"s_cmp_ge_u32 s{T0}, 8")
    A(f"s_cbranch_scc1 {okc}")
    cnt_wait(4, 8, 6, 7)
    A.label(okc)
    for d in range(4):
        sk = newlabel("ow")
        A(f"s_cmp_eq_u32 s{S_W}, {d}")
        A(f"s_cbranch_scc1 {sk}")
        A(f"s_sub_u32 s{T0}, s{S_W}, {d+1}")
        A(f"s_and_b32 s{T0}, s{T0}, 3")
        A(f"s_lshl_b32 s{T0}, s{T0}, 12")
        A(f"s_add_u32 s{T0}, s{T0}, {LDS_AR + d*12288}")
        A(f"v_add_u32 v2, s{T0}, v{V_L16}")
        for q in range(4):
            A(f"ds_write_b128 v2, {vr(OA+16*d+4*q,4)} offset:{1024*q}")
        A.label(sk)
    for d in range(4):
        sk = newlabel("om")
        A(f"s_cmp_lg_u32 s{S_W}, {d}")
        A(f"s_cbranch_scc1 {sk}")
        for i in range(16): A(f"v_mov_b32 v{SB+i}, v{OA+16*d+i}")
        A.label(sk)
    cnt_add(0, 3, 4)
    cnt_wait(0, 4, 3, 4)
    A(f"s_mul_i32 s{T0}, s{S_W}, 12288")
    A(f"s_add_u32 s{T0}, s{T0}, {LDS_AR}")
    A(f"v_add_u32 v2, s{T0}, v{V_L16}")
    for k in range(12):
        A(f"ds_read_b128 {vr(OA+4*k,4)}, v2 offset:{1024*k}")
    for p in range(3):
        A(f"s_waitcnt lgkmcnt({8-4*p})")
        for i in range(16): A(f"v_add_f32 v{SB+i}, v{SB+i}, v{OA+16*p+i}")
    A(f"v_mov_b32 v2, v{SB+12}")
    A(f"v_mov_b32 v3, v{SB+12}")
    A("v_permlane32_swap_b32 v2, v3")
    A(f"s_mov_b32 s{T0}, {f32(2.0**-64)}")
    A(f"s_mov_b32 s{T1}, {f32(2.0**64)}")
    A(f"v_cmp_le_f32 vcc, s{T0}, v3")
    A(f"v_cmp_ge_f32 s[{T2}:{T3}], s{T1}, v3")
    A(f"s_and_b64 s[{T2}:{T3}], s[{T2}:{T3}], vcc")
    A(f"s_cmp_eq_u64 s[{T2}:{T3}], -1")
    if OPT["force_slow"]:
        A("s_branch L_slow")
    else:
        A("s_cbranch_scc0 L_slow")
    A.label("L_ofin")
    A("v_rcp_f32 v3, v3")
    A(f"v_mul_f32 v3, v3, v{V_G}")
    for i in range(16): A(f"v_mul_f32 v{SB+i}, v{SB+i}, v3")
    for i in range(8): A(f"v_cvt_pk_bf16_f32 v{PB+i}, v{SB+2*i}, v{SB+2*i+1}")
    A("s_mov_b32 exec_lo, 0")
    A(f"v_mov_b32 v{PB+6}, 0")
    A(f"v_mov_b32 v{PB+7}, 0")
    A("s_mov_b64 exec, -1")
    for i in range(8): A(f"v_min_u32 v{PB+i}, -2, v{PB+i}")
    A(f"buffer_store_dwordx4 {vr(PB,4)}, v{V_L16}, {srd(SRD_WS)}, s{S_OOFF} offen sc1")
    A(f"buffer_store_dwordx4 {vr(PB+4,4)}, v{V_L16}, {srd(SRD_WS)}, s{S_OOFF} offen offset:1024 sc1")
    stamp(6)
    prof_dump(2)
    A("s_endpgm")

def attention_slow():
    h = S_HEAD
    A.label("L_slow")
    A("v_lshrrev_b32 v2, 4, v1")
    A("v_lshlrev_b32 v2, 3, v2")
    A(f"v_lshrrev_b32 v2, v2, s{S_KVJ}")
    A("v_and_b32 v2, 0xff, v2")
    A("v_lshlrev_b32 v2, 6, v2")
    A("v_and_b32 v3, 15, v1")
    A("v_add_u32 v2, v2, v3")
    A("v_lshlrev_b32 v2, 3, v2")
    A(f"v_add_u32 v2, {WS_FQ}, v2")
    for qq in range(4):
        poll(2, V_T)
        if qq < 3: A("v_add_u32 v2, 128, v2")
    SQ = OA
    for d in range(4):
        sk = newlabel("sq")
        A(f"s_cmp_lg_u32 s{S_W}, {d}")
        A(f"s_cbranch_scc1 {sk}")
        for i in range(8): A(f"v_mov_b32 v{SQ+i}, v{QF+8*d+i}")
        A.label(sk)
    SS = OA + 16
    for i in range(16): A(f"v_mov_b32 v{SB+i}, 0")
    A(f"v_mov_b32 v4, {f32(-3.0e38)}")
    A(f"s_lshl_b32 s{S_KOFF}, s{S_C0}, 9")
    A(f"s_add_u32 s{S_KOFF}, s{S_KOFF}, {56*512}")
    A(f"s_mul_i32 s{S_VOFF}, s{h}, 448")
    A(f"s_add_u32 s{S_VOFF}, s{S_VOFF}, {WS_VT}")
    A(f"s_mov_b32 s{S_IT}, 0")
    A.label("L_slow_loop")
    loadK(0); loadV(0)
    A("s_waitcnt vmcnt(0)")
    A(f"v_mfma_f32_32x32x16_bf16 {vr(SS,16)}, {vr(KB,4)}, {vr(SQ,4)}, 0")
    A(f"v_mfma_f32_32x32x16_bf16 {vr(SS,16)}, {vr(KB+4,4)}, {vr(SQ+4,4)}, {vr(SS,16)}")
    A(f"v_max3_f32 v5, v{SS}, v{SS+1}, v4")
    for i in range(1, 8): A(f"v_max3_f32 v5, v{SS+2*i}, v{SS+2*i+1}, v5")
    A("v_mov_b32 v6, v5")
    A("v_permlane32_swap_b32 v5, v6")
    A("v_max_f32 v5, v5, v6")
    A("v_sub_f32 v6, v4, v5")
    A("v_exp_f32 v6, v6")
    A("v_mov_b32 v4, v5")
    for i in range(16): A(f"v_mul_f32 v{SB+i}, v{SB+i}, v6")
    for i in range(16): A(f"v_sub_f32 v{SS+i}, v{SS+i}, v5")
    for i in range(16): A(f"v_exp_f32 v{SS+i}, v{SS+i}")
    for i in range(8): A(f"v_cvt_pk_bf16_f32 v{PB+i}, v{SS+2*i}, v{SS+2*i+1}")
    A(f"v_mfma_f32_32x32x16_bf16 {vr(SB,16)}, {vr(VB,4)}, {vr(PB,4)}, {vr(SB,16)}")
    A(f"v_mfma_f32_32x32x16_bf16 {vr(SB,16)}, {vr(VB+4,4)}, {vr(PB+4,4)}, {vr(SB,16)}")
    A("s_nop 7")
    A("s_nop 3")
    A(f"s_add_u32 s{S_IT}, s{S_IT}, 1")
    A(f"s_cmp_lt_u32 s{S_IT}, 64")
    A("s_cbranch_scc1 L_slow_loop")
    A(f"v_mov_b32 v2, v{SB+12}")
    A(f"v_mov_b32 v3, v{SB+12}")
    A("v_permlane32_swap_b32 v2, v3")
    A("s_branch L_ofin")

V_CW = 2
V_CT = 3
S_RING, S_WDB, S_WOB = 46, 47, 48
CTOK = {}

def cW(s):
    slot = (s % RING_N) * 2048
    for e in range(2):
        A(f"s_add_u32 m0, s{S_RING}, {slot + 1024*e}")
        if s < 28:
            A(f"s_add_u32 s{T6}, s{S_WDB}, {(16*s + 8*e) * 896}")
            t = A.vm(f"buffer_load_dwordx4 v{V_CW}, {srd(SRD_WD)}, s{T6} offen lds")
        else:
            hh, ks = divmod(s - 28, 2)
            A(f"s_add_u32 s{T6}, s{S_WOB}, {(28*hh + 16*ks + 8*e) * 896}")
            t = A.vm(f"buffer_load_dwordx4 v{V_CW}, {srd(SRD_WO)}, s{T6} offen lds")
    CTOK[("W", s)] = t

def phaseC_prefetch(n):
    t0, t1 = V_VA, V_VA + 1
    A(f"s_mul_i32 s{S_RING}, s{S_RT}, {RING_B}")
    A(f"s_mul_i32 s{S_WDB}, s{S_RT}, {448*896}")
    A(f"s_mul_i32 s{S_WOB}, s{S_RT}, {112*896}")
    A(f"v_lshrrev_b32 v{t0}, 3, v1")
    A(f"v_mul_u32_u24 v{t0}, 896, v{t0}")
    A(f"v_bfe_u32 v{t1}, v1, 1, 2")
    A(f"v_bfe_u32 v{V_CW}, v1, 4, 1")
    A(f"v_lshlrev_b32 v{V_CW}, 1, v{V_CW}")
    A(f"v_xor_b32 v{t1}, v{t1}, v{V_CW}")
    A(f"v_lshl_add_u32 v{t0}, v{t1}, 5, v{t0}")
    A(f"v_and_b32 v{t1}, 1, v1")
    A(f"v_lshl_add_u32 v{t0}, v{t1}, 4, v{t0}")
    A(f"s_lshl_b32 s{T1}, s{S_CT}, 7")
    A(f"v_add_u32 v{V_CW}, s{T1}, v{t0}")
    for s in range(n): cW(s)

CACC = 24
CWF = 88
CAF = 104
COW = 56
COF = 184

def pair_set(which, va, vb):
    A(f"s_lshl_b32 s{T0}, s{S_RT}, 2")
    A(f"s_add_u32 s{T0}, s{T0}, {LDS_CNT + 16 + 16*which}")
    A(f"v_mov_b32 v{va}, s{T0}")
    A(f"v_mov_b32 v{vb}, 1")
    A("s_waitcnt lgkmcnt(0)")
    A(f"ds_write_b32 v{va}, v{vb}")

def pair_wait(xor, va, vb):
    L = newlabel("pw"); D = newlabel("pwd")
    A(f"v_xor_b32 v{va}, {4*xor}, v{va}")
    A(f"s_mov_b32 s{S_CNT}, 0x100000")
    A.label(L)
    A(f"ds_read_b32 v{vb}, v{va}")
    A("s_waitcnt lgkmcnt(0)")
    A(f"v_readfirstlane_b32 s{T0}, v{vb}")
    A(f"s_cmp_lg_u32 s{T0}, 0")
    A(f"s_cbranch_scc1 {D}")
    A(f"s_sub_u32 s{S_CNT}, s{S_CNT}, 1")
    A(f"s_cmp_lg_u32 s{S_CNT}, 0")
    A(f"s_cbranch_scc1 {L}")
    A.label(D)

def phaseC():
    assert RING_N == 13
    wq = S_RT
    S_H0, S_H1, S_O0, S_KH, S_ORT, S_PEND = S_KOFF, S_VOFF, S_IT, S_C0, S_KVJ, S_QRT
    A(f"s_lshr_b32 s{S_KH}, s{wq}, 1")
    A(f"s_and_b32 s{T2}, s{wq}, 1")
    A(f"s_lshl_b32 s{T1}, s{S_RB64}, 1")
    A(f"s_add_u32 s{S_ORT}, s{T1}, s{T2}")
    A("v_lshrrev_b32 v5, 5, v1")
    A("v_bfe_u32 v6, v1, 2, 2")
    A("v_lshl_add_u32 v5, v5, 2, v6")
    A("v_lshlrev_b32 v5, 7, v5")
    A("v_and_b32 v6, 2, v6")
    A("v_bfe_u32 v7, v1, 4, 1")
    A("v_xor_b32 v6, v6, v7")
    A("v_lshl_add_u32 v5, v6, 5, v5")
    A("v_and_b32 v6, 3, v1")
    A("v_lshl_add_u32 v5, v6, 3, v5")
    A(f"s_lshl_b32 s{T0}, s{S_KH}, 6")
    A(f"v_xor_b32 v5, s{T0}, v5")
    A("v_xor_b32 v6, 64, v5")
    A(f"v_add_u32 v{V_CT}, s{S_RING}, v5")
    A(f"v_add_u32 v{V_CT+1}, s{S_RING}, v6")
    A(f"s_mul_i32 s{T0}, s{S_KH}, {2*RING_B}")
    A(f"v_add_u32 v11, s{T0}, v5")
    A(f"v_add_u32 v12, s{T0}, v6")
    A(f"s_mul_i32 s{T0}, s{wq}, 7")
    A(f"s_lshr_b32 s{T0}, s{T0}, 1")
    A("v_bfe_u32 v5, v1, 2, 2")
    A(f"v_add_u32 v5, s{T0}, v5")
    A("v_and_b32 v6, 16, v1")
    A("v_cmp_ne_u32 vcc, 0, v6")
    A("v_lshlrev_b32 v5, 7, v5")
    A("v_bfe_u32 v6, v1, 1, 1")
    A("v_lshl_add_u32 v5, v6, 3, v5")
    A(f"v_mov_b32 v6, {14*128}")
    A("v_cndmask_b32 v5, v5, v6, vcc")
    A("v_and_b32 v6, 1, v1")
    A(f"v_add_u32 v6, s{T1}, v6")
    A("v_lshl_add_u32 v5, v6, 11, v5")
    A(f"v_add_u32 v5, {WS_FH}, v5")
    A(f"s_lshl_b32 s{T0}, s{S_ORT}, 4")
    A(f"s_lshl_b32 s{T3}, s{S_KH}, 3")
    A(f"s_add_u32 s{T0}, s{T0}, s{T3}")
    A(f"s_lshl_b32 s{S_O0}, s{T0}, 11")
    A(f"s_add_u32 s{S_O0}, s{S_O0}, {WS_O}")
    A("v_and_b32 v7, 7, v1")
    A(f"v_add_u32 v7, s{T0}, v7")
    A("v_lshlrev_b32 v7, 7, v7")
    A(f"v_add_u32 v7, {WS_FO}, v7")
    A("v_and_b32 v13, 15, v1")
    A("v_lshlrev_b32 v13, 10, v13")
    A(f"s_mul_i32 s{S_H0}, s{S_ORT}, {H_RT}")
    A(f"s_mul_i32 s{T0}, s{wq}, {28*1024}")
    A(f"s_add_u32 s{T0}, s{T0}, {WS_H}")
    A(f"s_add_u32 s{S_H0}, s{S_H0}, s{T0}")
    A(f"s_xor_b32 s{T3}, s{S_ORT}, 1")
    A(f"s_mul_i32 s{S_H1}, s{T3}, {H_RT}")
    A(f"s_add_u32 s{S_H1}, s{S_H1}, s{T0}")
    A("v_and_b32 v8, 31, v1")
    A("v_lshlrev_b32 v10, 2, v8")
    A(f"s_lshl_b32 s{T5}, s{S_ORT}, 7")
    A(f"s_add_u32 s{T5}, s{T5}, {WS_G}")
    poll(5, V_T)
    stamp(4)
    A.vm_issued = 0
    for k in list(CTOK): CTOK[k] = 0
    def af(s, r): return CAF + 8 * (s % RING_N) + 4 * r
    def cA(s):
        for r in range(2):
            base = S_H0 if r == 0 else S_H1
            hi, lo = divmod(s, 4)
            if hi:
                A(f"s_add_u32 s{T7}, s{base}, {hi*4096}")
                so = T7
            else: so = base
            t = A.vm(f"buffer_load_dwordx4 {vr(af(s,r),4)}, v{V_L16}, {srd(SRD_WS)}, s{so} offen offset:{lo*1024} sc1")
        CTOK[("A", s)] = t
    A.vm(f"buffer_load_dword v9, v10, {srd(SRD_WS)}, s{T5} offen sc1")
    for s in range(RING_N): cA(s)
    def reads(s):
        fb = CWF + 8 * (s & 1)
        for c in range(2):
            for a in range(2):
                A(f"ds_read_b64_tr_b16 {vr(fb+4*c+2*a,2)}, v{V_CT+c} offset:{(s % RING_N)*2048 + a*1024}")
    def mf(s):
        fb = CWF + 8 * (s & 1)
        for r in range(2):
            for c in range(2):
                acc = CACC + 16 * (2 * r + c)
                cc = "0" if s == 0 else vr(acc, 16)
                if "nocm" in OPT["exp"] and s > 0: continue
                A(f"v_mfma_f32_32x32x16_bf16 {vr(acc,16)}, {vr(fb+4*c,4)}, {vr(af(s,r),4)}, {cc}")
    A.vm_wait(CTOK[("W", 0)])
    reads(0)
    for s in range(28):
        if s == OPT["hold"]:
            L = newlabel("hold"); D = newlabel("holdd")
            A(f"v_mov_b32 v{V_T}, {LDS_CNT + 8}")
            A(f"s_mov_b32 s{S_CNT}, 0x10000")
            A.label(L)
            A(f"ds_read_b32 v{V_T+1}, v{V_T}")
            A("s_waitcnt lgkmcnt(0)")
            A(f"v_readfirstlane_b32 s{T0}, v{V_T+1}")
            A(f"s_cmp_ge_u32 s{T0}, {OPT['holdn']}")
            A(f"s_cbranch_scc1 {D}")
            A("s_sleep 3")
            A(f"s_sub_u32 s{S_CNT}, s{S_CNT}, 1")
            A(f"s_cmp_lg_u32 s{S_CNT}, 0")
            A(f"s_cbranch_scc1 {L}")
            A.label(D)
            stamp(8)
        if s + 1 < 28:
            A.vm_wait(max(CTOK[("W", s + 1)], CTOK[("A", s)]))
            reads(s + 1)
            A("s_waitcnt lgkmcnt(4)")
        else:
            A.vm_wait(CTOK[("A", s)], "lgkmcnt(0)")
        if OPT["cprio"]: A(f"s_setprio {OPT['cprio']}")
        mf(s)
        if OPT["cprio"]: A("s_setprio 0")
        n = s + RING_N
        if "nocl" in OPT["exp"]:
            CTOK[("W", n)] = 0; CTOK[("A", n)] = 0
            continue
        if n < 36: cW(n)
        if n < 28: cA(n)
    stamp(5)
    PIECE = [0, 1024, 2048, 3072, 20480, 21504, 22528, 23552]
    A(f"v_add_u32 v14, s{S_RING}, v{V_L16}")
    for k in range(8):
        A(f"ds_write_b128 v14, {vr(CACC+32+4*k,4)} offset:{PIECE[k]}")
    A("s_waitcnt vmcnt(0)")
    pair_set(0, 5, 6)
    pair_wait(1, 5, 6)
    A(f"s_xor_b32 s{T0}, s{wq}, 1")
    A(f"s_mul_i32 s{T0}, s{T0}, {RING_B}")
    A(f"v_add_u32 v15, s{T0}, v{V_L16}")
    for k in range(8):
        A(f"ds_read_b128 {vr(COF+4*k,4)}, v15 offset:{PIECE[k]}")
    for k in range(8):
        for ks in range(2):
            off = (k >> 2) * RING_B + ((28 + 2 * (k & 3) + ks) % RING_N) * 2048
            for c in range(2):
                for a in range(2):
                    A(f"ds_read_b64_tr_b16 {vr(COW+16*k+8*ks+4*c+2*a,2)}, v{11+c} offset:{off + a*1024}")
    A("v_sub_f32 v9, 1.0, v9")
    pair_set(1, 5, 6)
    for i in range(32): A(f"v_add_f32 v{CACC+i}, v{CACC+i}, v{COF+i}")
    for i in range(32): A(f"v_mul_f32 v{CACC+i}, v{CACC+i}, v9")
    pair_wait(1, 5, 6)
    A(f"s_lshl_b32 s{T0}, s{S_ORT}, 5")
    A(f"v_add_u32 v8, s{T0}, v8")
    A("v_mul_u32_u24 v8, 896, v8")
    A("v_lshrrev_b32 v9, 5, v1")
    A("v_lshl_add_u32 v8, v9, 4, v8")
    A(f"s_lshl_b32 s{T5}, s{S_CT}, 7")
    A(f"s_lshl_b32 s{T0}, s{S_KH}, 6")
    A(f"s_add_u32 s{T5}, s{T5}, s{T0}")
    A(f"s_xor_b32 s{T0}, s{wq}, 2")
    A(f"s_mul_i32 s{T0}, s{T0}, {RING_B}")
    A(f"v_add_u32 v15, s{T0}, v{V_L16}")
    A(f"s_lshl_b32 s{T0}, s{S_RT}, 2")
    A(f"s_add_u32 s{T0}, s{T0}, {LDS_CNT + 16 + 32}")
    A(f"v_mov_b32 v5, s{T0}")
    A("v_xor_b32 v10, 8, v5")
    A("v_mov_b32 v6, 1")
    poll(7, V_T, sleep=1)
    L = newlabel("probe"); D = newlabel("probed")
    A(f"s_mov_b32 s{S_CNT}, 0x8000")
    A.label(L)
    A(f"buffer_load_dword v{V_T}, v13, {srd(SRD_WS)}, s{S_O0} offen offset:1008 sc1")
    A("s_waitcnt vmcnt(0)")
    A(f"v_cmp_ne_u32 vcc, -1, v{V_T}")
    A(f"s_cbranch_vccnz {D}")
    A("s_sleep 1")
    A(f"s_sub_u32 s{S_CNT}, s{S_CNT}, 1")
    A(f"s_cmp_lg_u32 s{S_CNT}, 0")
    A(f"s_cbranch_scc1 {L}")
    A.label(D)
    stamp(6)
    A(f"s_setprio 3")
    A(f"s_movk_i32 s{S_PEND}, 0xff")
    S_NEXT = S_HF
    A(f"s_mov_b32 s{S_NEXT}, 0")
    A(f"s_mov_b32 s{S_CNT}, 0x4000")
    A.label("L_oround")
    for k in range(8):
        sk = newlabel("ol")
        A(f"s_bitcmp1_b32 s{S_PEND}, {k}")
        A(f"s_cbranch_scc0 {sk}")
        A(f"s_add_u32 s{T7}, s{S_O0}, {k*2048}")
        for ks in range(2):
            A(f"buffer_load_dwordx4 {vr(COF+8*k+4*ks,4)}, v{V_L16}, {srd(SRD_WS)}, s{T7} offen offset:{ks*1024} sc1")
        A.label(sk)
    A("s_waitcnt vmcnt(0)")
    for k in range(8):
        sk = newlabel("om")
        o = COF + 8 * k
        A(f"s_bitcmp1_b32 s{S_PEND}, {k}")
        A(f"s_cbranch_scc0 {sk}")
        A(f"v_max3_u32 v{V_T}, v{o}, v{o+1}, v{o+2}")
        A(f"v_max3_u32 v{V_T+1}, v{o+3}, v{o+4}, v{o+5}")
        A(f"v_max3_u32 v{V_T}, v{V_T}, v{o+6}, v{o+7}")
        A(f"v_max_u32 v{V_T}, v{V_T}, v{V_T+1}")
        A(f"v_cmp_eq_u32 vcc, -1, v{V_T}")
        A(f"s_cbranch_vccnz {sk}")
        A(f"s_bitset0_b32 s{S_PEND}, {k}")
        A.label(sk)
        sk = newlabel("oa")
        A(f"s_lshr_b32 s{T0}, s{S_PEND}, {k}")
        A(f"s_and_b32 s{T0}, s{T0}, 1")
        A(f"s_lshl_b32 s{T0}, s{T0}, 8")
        A(f"s_or_b32 s{T0}, s{T0}, s{S_NEXT}")
        A(f"s_cmp_eq_u32 s{T0}, {k}")
        A(f"s_cbranch_scc0 {sk}")
        for ks in range(2):
            for c in (1, 0):
                acc = CACC + 16 * c
                A(f"v_mfma_f32_32x32x16_bf16 {vr(acc,16)}, {vr(COW+16*k+8*ks+4*c,4)}, {vr(o+4*ks,4)}, {vr(acc,16)}")
        A(f"s_mov_b32 s{S_NEXT}, {k+1}")
        A.label(sk)
    A(f"s_cmp_eq_u32 s{S_PEND}, 0")
    A("s_cbranch_scc1 L_odone")
    A(f"s_sub_u32 s{S_CNT}, s{S_CNT}, 1")
    A(f"s_cmp_lg_u32 s{S_CNT}, 0")
    A("s_cbranch_scc1 L_oround")
    A.label("L_odone")
    A("s_nop 7")
    A("s_nop 1")
    for q in range(4):
        A(f"ds_write_b128 v14, {vr(CACC+16+4*q,4)} offset:{1024*q}")
    A("s_waitcnt lgkmcnt(0)")
    A("ds_write_b32 v5, v6")
    L = newlabel("fw"); D = newlabel("fwd")
    A(f"s_mov_b32 s{S_CNT}, 0x400000")
    A.label(L)
    A("ds_read_b32 v6, v10")
    A("s_waitcnt lgkmcnt(0)")
    A(f"v_readfirstlane_b32 s{T0}, v6")
    A(f"s_cmp_lg_u32 s{T0}, 0")
    A(f"s_cbranch_scc1 {D}")
    A(f"s_sub_u32 s{S_CNT}, s{S_CNT}, 1")
    A(f"s_cmp_lg_u32 s{S_CNT}, 0")
    A(f"s_cbranch_scc1 {L}")
    A.label(D)
    for q in range(4):
        A(f"ds_read_b128 {vr(COW+4*q,4)}, v15 offset:{1024*q}")
    for q in range(4):
        A(f"s_waitcnt lgkmcnt({3-q})")
        for i in range(4): A(f"v_add_f32 v{CACC+4*q+i}, v{CACC+4*q+i}, v{COW+4*q+i}")
        for i in range(2): A(f"v_cvt_pk_bf16_f32 v{CACC+16+2*q+i}, v{CACC+4*q+2*i}, v{CACC+4*q+2*i+1}")
    P = CACC + 16
    for a, b in ((0, 2), (1, 3), (4, 6), (5, 7)):
        A(f"v_permlane32_swap_b32 v{P+a}, v{P+b}")
    A(f"buffer_store_dwordx4 {vr(P,4)}, v8, {srd(SRD_OUT)}, s{T5} offen {OPT.get('osc','')}")
    A(f"buffer_store_dwordx4 {vr(P+4,4)}, v8, {srd(SRD_OUT)}, s{T5} offen offset:32 {OPT.get('osc','')}")
    stamp(7)
    prof_dump(2)
    A("s_endpgm")

def main():
    prologue()
    A(f"s_cmp_ge_u32 s{S_SLOT}, 28")
    A("s_cbranch_scc1 L_gate")
    phaseA_setup()
    st0 = PA()
    if OPT["tfirst"]: global_touch()
    st0.dma(2 * OPT["pre1"], force=True)
    if OPT["gtouch"] and not OPT["tfirst"]: global_touch()
    A("s_barrier")
    st0.dma(2 * (OPT["pre2"] - OPT["pre1"]), force=True)
    prologue2()
    stamp2(1)
    vm0 = A.vm_issued
    A(f"s_cmp_ge_u32 s{S_W}, 4")
    A("s_cbranch_scc1 L_A_g")
    phaseA_readbases(0)
    A(f"s_cmp_ge_u32 s{S_J}, 10")
    A("s_cbranch_scc1 L_A_vvv")
    A(f"s_cmp_eq_u32 s{S_J}, 9")
    A("s_cbranch_scc1 L_A_kvv")
    s1 = roleA_pass1(st0, vm0, [False, False, False]); e1 = (A.vm_issued, s1.dq, dict(s1.tok), s1.tagtok, list(STORES), A.lg_issued, A.lg_done, dict(s1.rtok))
    A.label("L_A_p2")
    roleA_pass2(s1)
    attention()
    A.label("L_A_g")
    roleG_phaseA(st0, vm0)
    phaseC()
    for lab, fl in (("L_A_vvv", [True, True, True]), ("L_A_kvv", [False, True, True])):
        A.label(lab)
        s2 = roleA_pass1(st0, vm0, fl)
        assert (A.vm_issued, s2.dq, dict(s2.tok), s2.tagtok, list(STORES), A.lg_issued, A.lg_done, dict(s2.rtok)) == e1
        A("s_branch L_A_p2")
    A.label("L_gate")
    gate_path()
    touch_path()
    attention_slow()
    A.label("L_end")
    body = A.finalize()
    hdr = open(f"cdna_kernels/{NAME}.s.ref").read().split("; Override launch")[0]
    text = hdr + f"""; @launch grid=(256,1,1) block=(512,1,1) lds={LDS_BYTES}
.amdgcn_target "amdgcn-amd-amdhsa--gfx950"
.text
.globl {NAME}_kernel
.p2align 8
.type {NAME}_kernel,@function
{NAME}_kernel:
{body}    s_endpgm
L_codeend:
.section .rodata,"a"
.p2align 6
.amdhsa_kernel {NAME}_kernel
  .amdhsa_next_free_vgpr 256
  .amdhsa_next_free_sgpr 102
  .amdhsa_accum_offset 256
  .amdhsa_group_segment_fixed_size 0
  .amdhsa_kernarg_size 88
  .amdhsa_user_sgpr_count 2
  .amdhsa_user_sgpr_kernarg_segment_ptr 1
  .amdhsa_system_sgpr_workgroup_id_x 1
.end_amdhsa_kernel
"""
    open(OUT, "w").write(text)
    print("wrote", OUT, len(text), "bytes,", len(A.ins), "instructions")

main()
```

```python
import math, struct, sys, os, copy
from collections import deque
sys.path.insert(0, os.path.dirname(os.path.abspath(__file__)))
from asmlib import Asm

NAME = "gated_mix__mha_block__geglu_ffn__prompt"
OPT = dict(wspre=0, itouch=0, hlate=0, hold=99, holdn=64, tmap=1, tfirst=0, vlay=1, fullf=1, profile=0, rt=0, sp2=0, barm=1, fill=6, force_slow=0, exp="", codepf=1, qflag=36, qpoll=54, gpch=18, yld=0, prio=2, gprio=3, cprio=0, cpre=3, gtouch=1, pre1=2, pre2=5, ring=13, vbar="14:21,15:22,16:27", lead=9, touch=1)
for a in sys.argv[1:]:
    if "=" in a:
        k, v = a.split("=", 1)
        OPT[k] = int(v) if v.lstrip("-").isdigit() else v
OUT = OPT.get("out", f"cdna_kernels/{NAME}.s")

def f32(x): return "0x%08x" % struct.unpack("<I", struct.pack("<f", x))[0]

WS_QK = 0x000000
QK_RT = 112 * 512
WS_VT = 0x400000
VT_KT = 4 * 7168
WS_H = 0x600000
H_RT = 112 * 1024
WS_O = 0xD00000
O_RT = 32 * 1024
WS_G = 0xF00000
WS_FQ = 0xF10000
WS_FH = 0xF20000
WS_FO = 0xF40000
WS_PROF = 0xF80000
WS_SIZE = 0x1000000

LOG2E = 1.4426950408889634
QSCALE = LOG2E / math.sqrt(28.0)
GK0 = -2.0 * math.sqrt(2.0 / math.pi) * LOG2E
GK1 = GK0 * 0.044715

S_W = 3
SRD_X, SRD_QKV, SRD_GU, SRD_WD, SRD_WO, SRD_WS, SRD_OUT, SRD_DBG, SRD_GW = 4, 8, 12, 16, 20, 24, 28, 32, 36
S_XCD, S_SLOT, S_RB, S_J, S_RT, S_RTG = 40, 41, 42, 43, 44, 45
S_MA, S_MX, S_MV = 46, 47, 48
S_HB = 49
T0, T1, T2, T3, T4, T5, T6, T7 = 50, 51, 52, 53, 54, 55, 56, 57
S_CNT = 58
S_HF = 59
S_TAG = 60
S_HEAD, S_QB, S_RB64, S_CT = 62, 63, 64, 65
S_VMASK = 66
S_KOFF, S_VOFF, S_IT, S_C0 = 68, 69, 70, 71
S_PROF = 72
S_PC = 96
S_KVJ, S_QRT = 98, 99
S_OK = 46
S_QOFF = 48
S_OOFF = 47
def srd(n): return f"s[{n}:{n+3}]"
def vr(a, n): return f"v[{a}:{a+n-1}]"

SLOT = 16384
NSLOT = 10
RING_N = OPT["ring"]
RING_B = 13 * 2048
LDS_AR = 4 * RING_B
LDS_CNT = LDS_AR + 49152
LDS_BYTES = 163840

A = Asm()
_lbl = [0]
def newlabel(p):
    _lbl[0] += 1
    return f"L_{p}_{_lbl[0]}"

CLK = "s_memrealtime" if OPT["rt"] else "s_memtime"
def stamp2(k):
    if OPT["profile"] == 2:
        A(f"{CLK} s[{S_PROF+2*k}:{S_PROF+2*k+1}]")

def stamp(k):
    if OPT["profile"] == 2 and k > 0: return
    if OPT["profile"]:
        A(f"{CLK} s[{S_PROF+2*k}:{S_PROF+2*k+1}]")
        if k == 0: A(f"s_memrealtime s[{S_PROF+20}:{S_PROF+21}]")

def prof_dump(vtmp):
    if not OPT["profile"]: return
    A("s_waitcnt vmcnt(0)")
    A(f"s_memrealtime s[{S_PROF+22}:{S_PROF+23}]")
    A("s_waitcnt lgkmcnt(0)")
    if OPT.get("dbg"):
        sk = newlabel("dbg")
        A(f"s_cmp_lg_u32 s2, {OPT['dbg']}")
        A(f"s_cbranch_scc1 {sk}")
        A(f"s_cmp_lg_u32 s{S_RT}, 0")
        A(f"s_cbranch_scc1 {sk}")
        A(f"s_mul_i32 s{T0}, s{S_W}, 7")
        A(f"s_add_u32 s{T0}, s{T0}, 8")
        A(f"v_mov_b32 v{vtmp}, s{T0}")
        A("s_mov_b64 exec, 1")
        for n, k in enumerate((0, 1, 2, 4, 5, 6, 11)):
            A(f"s_sub_u32 s{T1}, s{S_PROF+2*k}, s{S_TAG}")
            A(f"v_mov_b32 v{vtmp+1}, s{T1}")
            A(f"buffer_store_dword v{vtmp+1}, v{vtmp}, {srd(SRD_DBG)}, 0 offen offset:{4*n}")
        A("s_mov_b64 exec, -1")
        A.label(sk)
    A(f"s_lshl_b32 s{T0}, s2, 3")
    A(f"s_add_u32 s{T0}, s{T0}, s{S_W}")
    A(f"s_lshl_b32 s{T0}, s{T0}, 6")
    A(f"s_add_u32 s{T0}, s{T0}, {WS_PROF}")
    A(f"v_mov_b32 v{vtmp}, s{T0}")
    A("s_mov_b64 exec, 1")
    for k in range(12):
        A(f"v_mov_b32 v{vtmp+1}, s{S_PROF+2*k}")
        A(f"buffer_store_dword v{vtmp+1}, v{vtmp}, {srd(SRD_WS)}, 0 offen offset:{4*k}")
    A(f"v_mov_b32 v{vtmp+1}, s100")
    A(f"buffer_store_dword v{vtmp+1}, v{vtmp}, {srd(SRD_WS)}, 0 offen offset:48")
    A("s_mov_b64 exec, -1")

def poll(vaddr, vtmp, sleep=2):
    L = newlabel("poll"); D = newlabel("polld")
    A(f"s_mov_b32 s{S_CNT}, 0x4000")
    A.label(L)
    A(f"buffer_load_dwordx2 {vr(vtmp,2)}, v{vaddr}, {srd(SRD_WS)}, 0 offen sc1")
    A("s_waitcnt vmcnt(0)")
    A(f"v_cmp_ne_u64 vcc, s[{S_TAG}:{S_TAG+1}], {vr(vtmp,2)}")
    A(f"s_cbranch_vccz {D}")
    A(f"s_sleep {sleep}")
    A(f"s_sub_u32 s{S_CNT}, s{S_CNT}, 1")
    A(f"s_cmp_lg_u32 s{S_CNT}, 0")
    A(f"s_cbranch_scc1 {L}")
    A.label(D)

def get_tag_spin(vtmp):
    L = newlabel("tag"); D = newlabel("tagd")
    A(f"s_mov_b32 s{S_CNT}, 0x4000")
    A(f"v_mov_b32 v{vtmp+2}, 0")
    A.label(L)
    A(f"buffer_load_dwordx2 {vr(vtmp,2)}, v{vtmp+2}, {srd(SRD_DBG)}, 0 offen sc1")
    A("s_waitcnt vmcnt(0)")
    A(f"v_readfirstlane_b32 s{S_TAG}, v{vtmp}")
    A(f"v_readfirstlane_b32 s{S_TAG+1}, v{vtmp+1}")
    A(f"s_cmp_lg_u32 s{S_TAG+1}, 0")
    A(f"s_cbranch_scc1 {D}")
    A("s_sleep 4")
    A(f"s_sub_u32 s{S_CNT}, s{S_CNT}, 1")
    A(f"s_cmp_lg_u32 s{S_CNT}, 0")
    A(f"s_cbranch_scc1 {L}")
    A.label(D)

def flag_store(soff_reg, vtmp):
    A(f"v_mov_b32 v{vtmp}, s{S_TAG}")
    A(f"v_mov_b32 v{vtmp+1}, s{S_TAG+1}")
    A(f"v_mov_b32 v{vtmp+2}, 0")
    A("s_mov_b64 exec, 1")
    t = A.vm(f"buffer_store_dwordx2 {vr(vtmp,2)}, v{vtmp+2}, {srd(SRD_WS)}, s{soff_reg} offen sc1")
    A("s_mov_b64 exec, -1")
    return t

V_X0, V_X1, V_Q, V_F, V_XB = 2, 3, 4, 5, 6
V_TB = 7
V_TV = 10
V_VA = 11
V_XA = 15
V_L16 = 16
V_G = 17
V_T = 18
XF = 24
ACC1 = 136
FS1 = (240, 200, 224)
FS2 = (216, 200, 208)
ACC2 = 224
TMP8 = 24
TMPV = 184
VB = 24
QF = 56
KB = 88
PB = 120
PL = 128
OA = 136
SB = 200

def mk_srd(n, p, size):
    A(f"s_mov_b32 s{n}, s{p}")
    A(f"s_mov_b32 s{n+1}, s{p+1}")
    A(f"s_mov_b32 s{n+2}, {size}")
    A(f"s_mov_b32 s{n+3}, 0x00020000")

def prologue():
    if OPT["profile"]: A("s_memrealtime s[100:101]")
    A("s_cmp_ge_u32 s2, 256")
    A("s_cbranch_scc1 L_end")
    A("s_load_dwordx16 s[72:87], s[0:1], 0")
    A("s_load_dwordx4 s[88:91], s[0:1], 64")
    A("s_load_dwordx2 s[92:93], s[0:1], 80")
    A(f"s_lshr_b32 s{S_SLOT}, s2, 3")
    if OPT["codepf"]:
        A(f"s_getpc_b64 s[{S_PC}:{S_PC+1}]")
        A.label("L_pc")
        A(f"s_lshl_b32 s{T0}, s{S_SLOT}, 13")
        A("v_lshlrev_b32 v2, 4, v0")
        A(f"v_add_u32 v2, s{T0}, v2")
        A("v_and_b32 v2, 0xffff, v2")
        A("v_min_u32 v2, L_codeend-L_pc-16, v2")
        A.vm(f"global_load_dwordx4 v[252:255], v2, s[{S_PC}:{S_PC+1}]")
    A("v_lshrrev_b32 v1, 6, v0")
    A(f"v_readfirstlane_b32 s{S_W}, v1")
    A("v_and_b32 v1, 63, v0")
    A(f"s_and_b32 s{S_XCD}, s2, 7")
    A(f"s_and_b32 s{S_RT}, s{S_W}, 3")
    A(f"s_mul_i32 s{T0}, s{S_SLOT}, 37")
    A(f"s_lshr_b32 s{T0}, s{T0}, 8")
    A(f"s_mul_i32 s{T1}, s{T0}, 7")
    A(f"s_sub_u32 s{S_CT}, s{S_SLOT}, s{T1}")
    A(f"s_lshr_b32 s{T2}, s{S_XCD}, 1")
    A(f"s_lshl_b32 s{T2}, s{T2}, 2")
    A(f"s_add_u32 s{S_RB}, s{T2}, s{T0}")
    A(f"s_and_b32 s{T3}, s{S_XCD}, 1")
    A(f"s_mul_i32 s{T3}, s{T3}, 7")
    A(f"s_add_u32 s{S_J}, s{T3}, s{S_CT}")
    A(f"s_lshl_b32 s{S_RB64}, s{S_XCD}, 2")
    A(f"s_add_u32 s{S_RB64}, s{S_RB64}, s{T0}")

def prologue2():
    A(f"s_lshr_b32 s{T4}, s{S_SLOT}, 4")
    A(f"s_lshl_b32 s{S_HEAD}, s{S_XCD}, 1")
    A(f"s_add_u32 s{S_HEAD}, s{S_HEAD}, s{T4}")
    A(f"s_and_b32 s{S_QB}, s{S_SLOT}, 15")
    A(f"s_lshl_b32 s{S_RTG}, s{S_RB}, 2")
    A(f"s_add_u32 s{S_RTG}, s{S_RTG}, s{S_RT}")
    mk_srd(SRD_WO, 76, 448 * 896)
    mk_srd(SRD_WD, 84, 1792 * 896)
    mk_srd(SRD_GW, 86, 896)
    mk_srd(SRD_OUT, 88, 2048 * 896)
    mk_srd(SRD_DBG, 90, 256)
    if OPT.get("wsoff"):
        A(f"s_add_u32 s92, s92, {OPT['wsoff'] << 20}")
        A("s_addc_u32 s93, s93, 0")
    mk_srd(SRD_WS, 92, WS_SIZE)
    A(f"v_lshlrev_b32 v{V_L16}, 4, v1")
    stamp(0)

def publish_tag():
    sk = newlabel("notag")
    A(f"s_xor_b32 s{T0}, s2, 224")
    A(f"s_or_b32 s{T0}, s{T0}, s{S_W}")
    A(f"s_cmp_lg_u32 s{T0}, 0")
    A(f"s_cbranch_scc1 {sk}")
    A(f"s_memrealtime s[{S_TAG}:{S_TAG+1}]")
    A("s_waitcnt lgkmcnt(0)")
    A(f"s_or_b32 s{S_TAG+1}, s{S_TAG+1}, 0x80000000")
    A(f"v_mov_b32 v2, s{S_TAG}")
    A(f"v_mov_b32 v3, s{S_TAG+1}")
    A("v_mov_b32 v4, 0")
    A("s_mov_b64 exec, 1")
    A(f"buffer_store_dwordx2 v[2:3], v4, {srd(SRD_DBG)}, 0 offen sc1")
    A("s_mov_b64 exec, -1")
    A.label(sk)

def phaseA_setup():
    w = S_W
    A(f"s_lshl_b32 s{S_MA}, s{w}, 10")
    A(f"s_lshl_b32 s{S_MX}, s{w}, 11")
    A(f"s_lshr_b32 s{T0}, s{w}, 2")
    A(f"s_lshl_b32 s{S_MV}, s{T0}, 13")
    A(f"s_lshl_b32 s{T1}, s{S_RT}, 10")
    A(f"s_add_u32 s{S_MV}, s{S_MV}, s{T1}")
    t0, t1, t2, t3 = V_T, V_T + 1, V_T + 2, V_T + 3
    A(f"s_lshl_b32 s{T1}, s{S_RB}, 7")
    A(f"s_lshl_b32 s{T2}, s{w}, 4")
    A(f"s_add_u32 s{T1}, s{T1}, s{T2}")
    A(f"v_lshrrev_b32 v{t0}, 3, v1")
    A(f"v_add_u32 v{t1}, s{T1}, v{t0}")
    A(f"v_mul_u32_u24 v{t1}, 896, v{t1}")
    A(f"v_lshrrev_b32 v{t2}, 4, v1")
    A(f"v_and_b32 v{t3}, 7, v1")
    A(f"v_xor_b32 v{t3}, v{t3}, v{t2}")
    A(f"v_lshl_add_u32 v{V_X0}, v{t3}, 4, v{t1}")
    A(f"v_xor_b32 v{t3}, 4, v{t3}")
    A(f"v_lshl_add_u32 v{V_X1}, v{t3}, 4, v{t1}")
    A(f"v_add_u32 v{V_X1}, {8*896}, v{V_X1}")
    A(f"s_lshl_b32 s{T1}, s{w}, 2")
    A(f"v_add_u32 v{t1}, s{T1}, v{t2}")
    A(f"v_mul_u32_u24 v{t1}, 2688, v{t1}")
    A(f"v_bfe_u32 v{t3}, v1, 1, 3")
    A(f"v_lshlrev_b32 v{V_Q}, 1, v{t2}")
    A(f"v_xor_b32 v{t3}, v{t3}, v{V_Q}")
    A(f"v_lshl_add_u32 v{t1}, v{t3}, 5, v{t1}")
    A(f"v_and_b32 v{t3}, 1, v1")
    A(f"v_lshl_add_u32 v{t1}, v{t3}, 4, v{t1}")
    A(f"s_mul_i32 s{T1}, s{S_J}, 3")
    A(f"s_lshr_b32 s{T1}, s{T1}, 1")
    A(f"s_lshl_b32 s{T1}, s{T1}, 7")
    A(f"v_add_u32 v{V_Q}, s{T1}, v{t1}")
    A(f"s_lshl_b32 s{T1}, s{S_RT}, 3")
    A(f"v_add_u32 v{t1}, s{T1}, v{t0}")
    A(f"v_mul_u32_u24 v{t1}, 3584, v{t1}")
    A(f"v_lshl_add_u32 v{t1}, v{t3}, 4, v{t1}")
    A(f"v_bfe_u32 v{t3}, v1, 1, 2")
    A(f"v_bfe_u32 v{V_F}, v1, 4, 1")
    A(f"v_lshlrev_b32 v{V_F}, 1, v{V_F}")
    A(f"v_add_u32 v{V_F}, s{T0}, v{V_F}")
    A(f"v_xor_b32 v{t3}, v{t3}, v{V_F}")
    A(f"v_lshl_add_u32 v{t1}, v{t3}, 5, v{t1}")
    A(f"s_lshl_b32 s{T1}, s{S_J}, 8")
    A(f"v_add_u32 v{V_F}, s{T1}, v{t1}")
    A("s_waitcnt lgkmcnt(0)")
    mk_srd(SRD_X, 72, 2048 * 896)
    mk_srd(SRD_QKV, 74, 448 * 2688)
    A(f"s_cmp_ge_u32 s{S_W}, 4")
    A(f"s_cselect_b32 s{SRD_GU}, s82, s80")
    A(f"s_cselect_b32 s{SRD_GU+1}, s83, s81")
    A(f"s_mov_b32 s{SRD_GU+2}, {448*3584}")
    A(f"s_mov_b32 s{SRD_GU+3}, 0x00020000")

def issue_half(it, e):
    slot = (it % NSLOT) * SLOT
    if it < 21:
        c, k = divmod(it, 3)
        if k == 0:
            A(f"s_add_u32 m0, s{S_MX}, {slot + 1024*e}")
            A(f"s_movk_i32 s{T6}, {c*128}")
            return A.vm(f"buffer_load_dwordx4 v{V_X0+e}, {srd(SRD_X)}, s{T6} offen lds")
        b = 2 * c + k - 1
        if e == 0:
            A(f"s_add_u32 m0, s{S_MA}, {slot}")
            A(f"s_mov_b32 s{T6}, {b*32*2688}")
            return A.vm(f"buffer_load_dwordx4 v{V_Q}, {srd(SRD_QKV)}, s{T6} offen lds")
        A(f"s_add_u32 m0, s{S_MA}, {slot+8192}")
        A(f"s_mov_b32 s{T6}, {b*32*3584}")
        return A.vm(f"buffer_load_dwordx4 v{V_F}, {srd(SRD_GU)}, s{T6} offen lds")
    v = it - 21
    A(f"s_add_u32 m0, s{S_MV}, {slot + 4096*e}")
    A(f"s_mov_b32 s{T6}, {(v*64+32*e)*3584+128}")
    return A.vm(f"buffer_load_dwordx4 v{V_F}, {srd(SRD_GU)}, s{T6} offen lds")

def phaseA_readbases(cg):
    hf, g16, r, c4 = V_T, V_T + 1, V_T + 2, V_T + 3
    u0, u1 = V_T + 4, V_T + 5
    A(f"v_lshrrev_b32 v{hf}, 5, v1")
    A(f"v_bfe_u32 v{g16}, v1, 4, 1")
    A(f"v_bfe_u32 v{r}, v1, 2, 2")
    A(f"v_and_b32 v{c4}, 3, v1")
    A(f"v_and_b32 v{u0}, 31, v1")
    A(f"s_lshl_b32 s{T1}, s{S_RT}, 5")
    A(f"v_add_u32 v{u0}, s{T1}, v{u0}")
    A(f"v_lshlrev_b32 v{u0}, 7, v{u0}")
    A(f"v_bfe_u32 v{u1}, v1, 1, 3")
    A(f"v_xor_b32 v{u1}, v{u1}, v{hf}")
    A(f"v_lshl_add_u32 v{V_XB}, v{u1}, 4, v{u0}")
    A(f"v_lshl_add_u32 v{u0}, v{hf}, 3, v{r}")
    A(f"v_and_b32 v{u1}, 2, v{r}")
    A(f"v_add_u32 v{u1}, v{u1}, v{g16}")
    A(f"v_lshlrev_b32 v{u1}, 5, v{u1}")
    A(f"v_lshl_add_u32 v{u1}, v{c4}, 3, v{u1}")
    A(f"v_lshl_add_u32 v{u1}, v{u0}, 7, v{u1}")
    A(f"v_lshl_add_u32 v{V_TV}, v{g16}, 13, v{u1}")
    if cg == 1:
        A(f"v_lshl_add_u32 v{V_TB}, v{g16}, 12, v{u1}")
        A(f"v_add_u32 v{V_TB}, 8192, v{V_TB}")
    else:
        A(f"v_lshlrev_b32 v{u0}, 8, v{u0}")
        A(f"v_lshl_add_u32 v{u0}, v{c4}, 3, v{u0}")
        A(f"v_lshlrev_b32 v{u1}, 1, v{r}")
        A(f"v_xor_b32 v{u1}, v{u1}, v{g16}")
        A(f"v_lshl_add_u32 v{u0}, v{u1}, 5, v{u0}")
        A(f"s_and_b32 s{T1}, s{S_J}, 1")
        for t in range(3):
            A(f"s_add_u32 s{T2}, s{T1}, {t}")
            A(f"s_lshl_b32 s{T2}, s{T2}, 6")
            A(f"v_xor_b32 v{V_TB+t}, s{T2}, v{u0}")
    A(f"v_mov_b32 v{V_T+4}, {f32(GK0)}")
    A(f"s_mul_i32 s{S_HB}, s{S_RTG}, {H_RT}")
    A(f"s_lshl_b32 s{T1}, s{S_J}, 13")
    A(f"s_add_u32 s{S_HB}, s{S_HB}, s{T1}")
    A(f"s_add_u32 s{S_HB}, s{S_HB}, {WS_H}")

STORES = []

def gelu_tile(acc, fs_add, tmp):
    F = []
    e = lambda s: F.append(lambda s=s: A(s))
    for i in range(8): e(f"v_mul_f32 v{tmp+i}, v{acc+i}, v{acc+i}")
    for i in range(8): e(f"v_fmamk_f32 v{tmp+i}, v{tmp+i}, {f32(GK1)}, v{V_T+4}")
    for i in range(8): e(f"v_mul_f32 v{tmp+i}, v{tmp+i}, v{acc+i}")
    for i in range(8):
        e(f"v_exp_f32 v{tmp+i}, v{tmp+i}")
        e(f"v_mul_f32 v{acc+i}, v{acc+i}, v{acc+8+i}")
    for i in range(8): e(f"v_add_f32 v{tmp+i}, 1.0, v{tmp+i}")
    for i in range(8): e(f"v_rcp_f32 v{tmp+i}, v{tmp+i}")
    for i in range(8): e(f"v_mul_f32 v{acc+i}, v{acc+i}, v{tmp+i}")
    for i in range(4): e(f"v_cvt_pk_bf16_f32 v{acc+8+i}, v{acc+2*i}, v{acc+2*i+1}")
    def st():
        A(f"s_add_u32 s{T7}, s{S_HB}, {fs_add*1024}")
        STORES.append(A.vm(f"buffer_store_dwordx4 {vr(acc+8,4)}, v{V_L16}, {srd(SRD_WS)}, s{T7} offen sc1"))
    F.append(st)
    return F

def qk_tile(acc, t):
    A(f"s_mul_i32 s{T3}, s{S_J}, 3")
    A(f"s_add_u32 s{T3}, s{T3}, {t}")
    sk = newlabel("noscale")
    A(f"s_mov_b32 s{T4}, {f32(QSCALE)}")
    A("s_nop 7")
    A(f"s_cmp_ge_u32 s{T3}, 14")
    A(f"s_cbranch_scc1 {sk}")
    for i in range(16): A(f"v_mul_f32 v{acc+i}, s{T4}, v{acc+i}")
    A.label(sk)
    for i in range(8): A(f"v_cvt_pk_bf16_f32 v{acc+i}, v{acc+2*i}, v{acc+2*i+1}")
    A(f"s_lshl_b32 s{T3}, s{T3}, 11")
    A(f"s_mul_i32 s{T4}, s{S_RTG}, {QK_RT}")
    A(f"s_add_u32 s{T3}, s{T3}, s{T4}")
    for a, b in ((0, 2), (1, 3), (4, 6), (5, 7)):
        A(f"v_permlane32_swap_b32 v{acc+a}, v{acc+b}")
    STORES.append(A.vm(f"buffer_store_dwordx4 {vr(acc,4)}, v{V_L16}, {srd(SRD_WS)}, s{T3} offen sc1"))
    STORES.append(A.vm(f"buffer_store_dwordx4 {vr(acc+4,4)}, v{V_L16}, {srd(SRD_WS)}, s{T3} offen offset:1024 sc1"))

def v_lane(dst):
    A(f"v_lshrrev_b32 v{dst}, 5, v1")
    A(f"v_mul_u32_u24 v{dst}, {7168 - 512}, v{dst}")
    A(f"v_add_u32 v{dst}, v{dst}, v{V_L16}")

def v_tile(acc, t, tmp):
    v_lane(tmp)
    A(f"s_mul_i32 s{T3}, s{S_J}, 1536")
    A(f"s_mul_i32 s{T4}, s{S_RTG}, {VT_KT}")
    A(f"s_add_u32 s{T3}, s{T3}, s{T4}")
    A(f"s_add_u32 s{T3}, s{T3}, {WS_VT + (t-28)*512}")
    A(f"s_add_u32 s{T4}, s{T3}, {2*7168}")
    for i in range(8): A(f"v_cvt_pk_bf16_f32 v{acc+i}, v{acc+2*i}, v{acc+2*i+1}")
    STORES.append(A.vm(f"buffer_store_dwordx4 {vr(acc,4)}, v{tmp}, {srd(SRD_WS)}, s{T3} offen sc1"))
    STORES.append(A.vm(f"buffer_store_dwordx4 {vr(acc+4,4)}, v{tmp}, {srd(SRD_WS)}, s{T4} offen sc1"))

STEPS = []
for _b in range(14):
    for _ks in range(2): STEPS.append((_b, _ks == 0, 1, _ks, 2 * _b + _ks))
for _v in range(7):
    for _ks in range(4): STEPS.append((14 + _v, _ks == 0, 2, _ks, 4 * _v + _ks))
def items_of(ch):
    if ch < 14:
        return [3 * (ch // 2), 3 * (ch // 2) + 1] if ch % 2 == 0 else [3 * (ch // 2) + 2]
    return [21 + ch - 14]
CONSUMED = {it: ch for ch in range(21) for it in items_of(ch)}
def avail(it):
    free = -1 if it < NSLOT else CONSUMED[it - NSLOT] + 1
    return max(free, min(CONSUMED[it] - OPT["lead"], 14))

BARR = {ch: items_of(ch)[-1] for ch in range(14)}
for _x in OPT["vbar"].split(","):
    _c, _i = _x.split(":"); BARR[int(_c)] = int(_i)
assert max(BARR.values()) == 27

def cnt_init(second):
    sk = newlabel("cinit")
    A(f"s_cmp_lg_u32 s{S_W}, 0")
    A(f"s_cbranch_scc1 {sk}")
    A(f"v_lshlrev_b32 v{V_T}, 2, v1")
    A(f"v_add_u32 v{V_T}, {LDS_CNT}, v{V_T}")
    A(f"v_cmp_eq_u32 vcc, 1, v1")
    A(f"v_cndmask_b32 v{V_T+1}, 0, {second}, vcc")
    A(f"ds_write_b32 v{V_T}, v{V_T+1}")
    A.label(sk)

def cnt_add(off, va, vb):
    A(f"v_mov_b32 v{va}, {LDS_CNT + off}")
    A(f"v_mov_b32 v{vb}, 1")
    A("s_waitcnt lgkmcnt(0)")
    A.lg_all()
    A("s_mov_b64 exec, 1")
    A(f"ds_add_u32 v{va}, v{vb}")
    A("s_mov_b64 exec, -1")

def cnt_wait(off, target, va, vb):
    L = newlabel("cnt"); D = newlabel("cntd")
    A(f"v_mov_b32 v{va}, {LDS_CNT + off}")
    A(f"s_mov_b32 s{S_CNT}, 0x100000")
    A.label(L)
    A(f"ds_read_b32 v{vb}, v{va}")
    A("s_waitcnt lgkmcnt(0)")
    A(f"v_readfirstlane_b32 s{T0}, v{vb}")
    A(f"s_cmp_ge_u32 s{T0}, {target}")
    A(f"s_cbranch_scc1 {D}")
    A(f"s_sub_u32 s{S_CNT}, s{S_CNT}, 1")
    A(f"s_cmp_lg_u32 s{S_CNT}, 0")
    A(f"s_cbranch_scc1 {L}")
    A.label(D)

class PA:
    def __init__(self):
        self.tok = {}; self.dq = 0; self.chunk = -1; self.fill = deque(); self.tagtok = None; self.hooks = {}; self.landed = -1; self.rtok = {}; self.xtok = {}; self.rate = OPT["fill"]
    def dma(self, n=1, force=False):
        for _ in range(n):
            it, e = divmod(self.dq, 2)
            if it >= 28 or (avail(it) > self.chunk and not (force and (it < NSLOT or CONSUMED[it - NSLOT] + 1 <= self.chunk))): return
            t = 0 if ("nodma" in OPT["exp"] and it >= 5) else issue_half(it, e)
            if e == 1: self.tok[it] = t
            self.dq += 1
    def drain(self, n):
        for _ in range(n):
            if not self.fill: break
            self.fill.popleft()()

def fbase(i, p): return (FS1 if p == 1 else FS2)[i % 3]

def pa_mfma_list(st, cg, vflags, i):
    ch, first, p, ks, gk = STEPS[i]
    fb = fbase(i, p)
    x = vr(XF + 4 * gk, 4)
    n = (3 if cg == 0 else 4) if p == 1 else 2
    out = []
    for t in range(n):
        def m(t=t):
            acc = (ACC1 if p == 1 else ACC2) + 16 * t
            c = "0" if gk == 0 else vr(acc, 16)
            w = vr(fb + 4 * t, 4)
            A.lg_wait(max(st.rtok.get((i, t), 0), st.xtok.get(gk, 0) if p == 1 else 0))
            if "nomfma" in OPT["exp"]:
                pass
            elif p == 1 and cg == 0 and vflags[t]:
                A(f"v_mfma_f32_32x32x16_bf16 {vr(acc,16)}, {x}, {w}, {c}")
            else:
                A(f"v_mfma_f32_32x32x16_bf16 {vr(acc,16)}, {w}, {x}, {c}")
        out.append(m)
    return out

def pa_gap(st, p):
    st.dma(1)
    if p == 2: st.drain(st.rate)

def pa_mfmas(st, cg, vflags, i):
    for m in pa_mfma_list(st, cg, vflags, i):
        m(); pa_gap(st, STEPS[i][2])

def pa_run(st, cg, vflags, i0, i1):
    n1 = 3 if cg == 0 else 4
    for i in range(i0, i1):
        Ms = pa_mfma_list(st, cg, vflags, i - 2) if i >= 2 else []
        pp = STEPS[i - 2][2] if i >= 2 else 1
        Rs = []
        if i < len(STEPS):
            ch, first, p, ks, gk = STEPS[i]
            bar = first and ch in BARR
            fb = fbase(i, p)
            n = n1 if p == 1 else 2
            pitch = 256 if (p == 1 and cg == 0) else 128
            def R(t):
                for a in range(2):
                    if "noread" in OPT["exp"]: continue
                    st.rtok[(i, t)] = A.lg(f"ds_read_b64_tr_b16 {vr(fb + 4*t + 2*a, 2)}, v{V_VA+t} offset:{(16*ks + 4*a) * pitch}")
            def X(kk):
                c = gk // 4
                xslot = ((3 * c) % NSLOT) * SLOT
                A(f"v_xor_b32 v{V_XA}, {xslot | (kk << 5)}, v{V_XB}")
                st.xtok[4 * c + kk] = A.lg(f"ds_read_b128 {vr(XF + 4*(4*c+kk), 4)}, v{V_XA}")
            Rs = [lambda t=t: R(t) for t in range(n)]
            if p == 1 and ch % 2 == 0:
                if ks == 0: Rs = [lambda: X(0)] + Rs + [lambda: X(1)]
                else: Rs = [lambda: X(2), lambda: X(3)] + Rs
            h = 0
            if bar:
                h = min(len(Ms), OPT["barm"])
                for m in Ms[:h]:
                    m(); pa_gap(st, pp)
                Ms = Ms[h:]
            if first:
                its = items_of(ch)
                if bar:
                    need = BARR[ch]
                    while need not in st.tok:
                        before = st.dq
                        st.dma(1, force=True)
                        assert st.dq != before, "item needed before its slot is free"
                    A.vm_wait(st.tok[need], "lgkmcnt(0)")
                    A.lg_all()
                    A("s_barrier")
                    st.chunk = ch
                    st.landed = need
                assert st.landed >= its[-1]
                SP = {0: 2, 1: 3, 3: 4, 6: 5, 9: 6, 12: 7, 14: 8, 18: 9} if not OPT["sp2"] else {13: 2, 14: 3, 15: 4, 16: 5, 17: 6, 18: 7, 19: 8, 20: 9}
                if ch in SP: stamp2(SP[ch])
                wslot = (its[-1] % NSLOT) * SLOT
                if p == 1:
                    for t in range(n1):
                        if cg == 0: A(f"v_add_u32 v{V_VA+t}, {wslot}, v{V_TB+t}")
                        else: A(f"v_xor_b32 v{V_VA+t}, {wslot | (t << 5)}, v{V_TB}")
                else:
                    for t in range(2):
                        A(f"v_xor_b32 v{V_VA+t}, {wslot | ((2*cg + t) << 5)}, v{V_TV}")
                if ch in st.hooks: st.hooks[ch]()
        if ("before", i) in st.hooks: st.hooks[("before", i)]()
        k = max(len(Ms), 1)
        per = -(-len(Rs) // k)
        for j in range(k):
            if j < len(Ms): Ms[j]()
            for r in Rs[j * per:(j + 1) * per]: r()
            if j < len(Ms): pa_gap(st, pp)
        if i < 2: st.dma(2)
        if ("after", i) in st.hooks: st.hooks[("after", i)]()

def tag_hooks(st):
    def issue():
        A(f"v_mov_b32 v{V_T+2}, 0")
        st.tagtok = A.vm(f"buffer_load_dwordx2 {vr(V_T,2)}, v{V_T+2}, {srd(SRD_DBG)}, 0 offen sc1")
    def check():
        A.vm_wait(st.tagtok)
        A(f"v_readfirstlane_b32 s{S_TAG}, v{V_T}")
        A(f"v_readfirstlane_b32 s{S_TAG+1}, v{V_T+1}")
        ok = newlabel("tagok")
        A(f"s_cmp_lg_u32 s{S_TAG+1}, 0")
        A(f"s_cbranch_scc1 {ok}")
        get_tag_spin(V_T)
        A.label(ok)
    return issue, check

def hflag_off(dst, cg):
    A(f"s_lshl_b32 s{dst}, s{S_RTG}, 4")
    A(f"s_add_u32 s{dst}, s{dst}, s{S_J}")
    A(f"s_lshl_b32 s{dst}, s{dst}, 7")
    A(f"s_add_u32 s{dst}, s{dst}, {WS_FH + 8*cg}")

def roleA_pass1(st0, vm0, vflags):
    global STORES
    STORES = []
    st = copy.deepcopy(st0)
    A.vm_issued = vm0
    A.lg_issued = 0; A.lg_done = 0
    issue, check = tag_hooks(st)
    st.hooks = {10: issue, 13: check, 14: lambda: cnt_init(0)}
    pa_run(st, 0, vflags, 0, 30)
    stamp(1)
    for t in range(3):
        acc = ACC1 + 16 * t
        if vflags[t]: v_tile(acc, t, TMPV)
        else: qk_tile(acc, t)
    return st

def interleave(a, b, every):
    out = []; b = list(b)
    for k, f in enumerate(a):
        out.append(f)
        if b and (k + 1) % every == 0: out.append(b.pop(0))
    return out, b

def o_arm_stores(tmp):
    for i in range(4): A(f"v_mov_b32 v{tmp+i}, -1")
    for ks in range(2):
        t = A.vm(f"buffer_store_dwordx4 {vr(tmp,4)}, v{V_L16}, {srd(SRD_WS)}, s{S_OOFF} offen offset:{1024*ks} sc1")
    return t

def o_arm_flag():
    A(f"s_sub_u32 s{T3}, s{S_OOFF}, {WS_O}")
    A(f"s_lshr_b32 s{T3}, s{T3}, 4")
    A(f"s_add_u32 s{T3}, s{T3}, {WS_FO}")
    flag_store(T3, V_T)

def poll2_issue():
    A.vm(f"buffer_load_dwordx2 {vr(V_T,2)}, v2, {srd(SRD_WS)}, 0 offen sc1")
    return A.vm(f"buffer_load_dwordx2 {vr(V_T+2,2)}, v3, {srd(SRD_WS)}, 0 offen sc1")

def poll2_test():
    A(f"v_cmp_ne_u64 vcc, s[{S_TAG}:{S_TAG+1}], {vr(V_T,2)}")
    A(f"v_cmp_ne_u64 s[{T2}:{T3}], s[{S_TAG}:{S_TAG+1}], {vr(V_T+2,2)}")
    A(f"s_or_b64 s[{T2}:{T3}], s[{T2}:{T3}], vcc")

def roleA_pass2(st):
    qstore = STORES[-1]
    e = lambda s: st.fill.append(lambda s=s: A(s))
    def hq():
        if "noqwait" not in OPT["exp"]: A.vm_wait(qstore)
        A(f"s_lshl_b32 s{T3}, s{S_J}, 6")
        A(f"s_add_u32 s{T3}, s{T3}, s{S_RTG}")
        A(f"s_lshl_b32 s{T3}, s{T3}, 3")
        A(f"s_add_u32 s{T3}, s{T3}, {WS_FQ}")
        flag_store(T3, V_T)
        stamp(7)
    ptok = []; atok = []
    def setup():
        assert st.dq == 56, st.dq
        st.fill.append(attn_setup)
        st.fill.append(lambda: atok.append(o_arm_stores(VB)))
        for i in range(32): e(f"v_mov_b32 v{VB+i}, v4")
    def hpoll():
        assert not st.fill
        A.vm_wait(atok[0])
        o_arm_flag()
        ptok.append(poll2_issue())
    st.hooks = {("before", OPT["qflag"]): hq, ("after", 39): setup, ("before", OPT["qpoll"]): hpoll,
                ("before", 57): lambda: cnt_add(4, V_VA, V_VA + 1)}
    for i in range(64):
        if "noafill" not in OPT["exp"]: e(f"v_mov_b32 v{OA+i}, 0")
    pa_run(st, 0, None, 30, 58)
    st.drain(10 ** 6)
    stamp(2)
    if "stopA" in OPT["exp"]:
        prof_dump(2); A("s_endpgm")
    hflag_off(S_HF, 0)
    A.vm_wait(ptok[-1])
    poll2_test()
    A("s_cbranch_scc1 L_attn_miss")
    stamp(3)
    g = gelu_tile(ACC2, 4, 200) + gelu_tile(ACC2 + 16, 5, 200)
    g2, left = interleave(g[:-1], attn_load_list(), 6)
    for f in g2 + left + g[-1:]: f()
    A("s_branch L_attn")
    A.label("L_attn_miss")
    A("s_nop 2")
    for f in gelu_tile(ACC2, 4, 200): f()
    poll2_issue()
    for f in gelu_tile(ACC2 + 16, 5, 200): f()
    stamp(8)
    A("s_waitcnt vmcnt(1)")
    poll2_test()
    A("s_cbranch_scc0 L_attn_go")
    A.label("L_attn_late")
    A(f"s_mov_b32 s{S_CNT}, 0x4000")
    A.label("L_attn_spin")
    poll2_issue()
    A("s_waitcnt vmcnt(0)")
    poll2_test()
    A("s_cbranch_scc0 L_attn_go")
    A(f"s_sub_u32 s{S_CNT}, s{S_CNT}, 1")
    A(f"s_cmp_lg_u32 s{S_CNT}, 0")
    A("s_cbranch_scc1 L_attn_spin")
    A.label("L_attn_go")
    A("s_nop 0")
    stamp(9)
    for f in attn_load_list(): f()

def roleG_phaseA(st0, vm0):
    global STORES
    STORES = []
    st = copy.deepcopy(st0)
    A.vm_issued = vm0
    A.lg_issued = 0; A.lg_done = 0
    phaseA_readbases(1)
    issue, check = tag_hooks(st)
    def epi1():
        stamp(1)
        if "nogelu" in OPT["exp"]: return
        late = []
        for t in range(4):
            g = gelu_tile(ACC1 + 16 * t, t, TMP8)
            if OPT["hlate"]: late.append(g.pop())
            st.fill.extend(g)
        st.fill.extend(late)
    hooks = {10: issue, 13: check, ("after", 31): epi1, ("before", 57): lambda: cnt_add(4, V_VA, V_VA + 1)}
    if OPT["gprio"]: hooks[OPT["gpch"]] = lambda: A(f"s_setprio {OPT['gprio']}")
    st.hooks = hooks
    pa_run(st, 1, None, 0, 58)
    stamp(2)
    st.drain(10 ** 6)
    for t in range(2):
        for f in gelu_tile(ACC2 + 16 * t, 6 + t, TMP8): f()
    if OPT["gprio"]: A("s_setprio 0")
    if "stopA" in OPT["exp"]:
        prof_dump(2); A("s_endpgm")
    cnt_wait(4, 8, V_VA, V_VA + 1)
    phaseC_prefetch(OPT["cpre"])
    hflag_off(T3, 1)
    A.vm_wait(STORES[-1])
    flag_store(T3, V_T)
    stamp(3)
    if "gexit" in OPT["exp"]:
        prof_dump(2); A("s_endpgm")
    for s in range(OPT["cpre"], RING_N): cW(s)

def gate_path():
    A(f"s_lshr_b32 s{T2}, s{S_XCD}, 1")
    A(f"s_lshl_b32 s{T2}, s{T2}, 2")
    A(f"s_sub_u32 s{T4}, s{S_SLOT}, 28")
    A(f"s_add_u32 s{S_RB}, s{T4}, s{T2}")
    A("s_waitcnt lgkmcnt(0)")
    mk_srd(SRD_X, 72, 2048 * 896)
    prologue2()
    A(f"s_cmp_ge_u32 s{S_W}, 4")
    A("s_cbranch_scc1 L_touch")
    publish_tag()
    cnt_init(8)
    A(f"s_and_b32 s{T0}, s{S_XCD}, 1")
    A(f"s_cmp_lg_u32 s{T0}, 0")
    A("s_cbranch_scc1 L_gate_skip")
    A("v_and_b32 v2, 31, v1")
    A(f"s_lshl_b32 s{T0}, s{S_RTG}, 5")
    A(f"v_add_u32 v2, s{T0}, v2")
    A("v_lshrrev_b32 v4, 5, v1")
    A("v_lshlrev_b32 v4, 4, v4")
    A("v_mul_u32_u24 v3, 896, v2")
    A("v_add_u32 v3, v3, v4")
    for i in range(16): A(f"v_mov_b32 v{136+i}, 0")
    A(f"s_mov_b32 s{T0}, 0")
    A.label("L_gate_loop")
    for k in range(4):
        A(f"buffer_load_dwordx4 {vr(24+4*k,4)}, v3, {srd(SRD_X)}, s{T0} offen offset:{k*32}")
        A(f"buffer_load_dwordx4 {vr(80+4*k,4)}, v4, {srd(SRD_GW)}, s{T0} offen offset:{k*32}")
    A("s_waitcnt vmcnt(0)")
    for k in range(4):
        A(f"v_mfma_f32_32x32x16_bf16 {vr(136,16)}, {vr(80+4*k,4)}, {vr(24+4*k,4)}, {vr(136,16)}")
    A(f"s_add_u32 s{T0}, s{T0}, 128")
    A(f"s_cmp_lt_u32 s{T0}, 896")
    A("s_cbranch_scc1 L_gate_loop")
    A(f"v_mul_f32 v5, {f32(-LOG2E)}, v136")
    A("v_exp_f32 v5, v5")
    A("v_add_f32 v5, 1.0, v5")
    A("v_rcp_f32 v5, v5")
    A("v_lshlrev_b32 v2, 2, v2")
    A(f"s_mov_b32 s{T0}, {WS_G}")
    A("s_mov_b32 exec_hi, 0")
    A(f"buffer_store_dword v5, v2, {srd(SRD_WS)}, s{T0} offen sc1")
    A("s_mov_b32 exec_hi, -1")
    get_tag_spin(V_T)
    A(f"s_lshl_b32 s{T3}, s{S_RTG}, 11")
    A(f"s_add_u32 s{T3}, s{T3}, {WS_FH + 14*128}")
    flag_store(T3, V_T)
    A.label("L_gate_skip")
    if "stopA" in OPT["exp"]: A("s_endpgm")
    attn_setup()
    for i in range(32): A(f"v_mov_b32 v{VB+i}, v4")
    for i in range(64): A(f"v_mov_b32 v{OA+i}, 0")
    o_arm_stores(SB)
    A("s_waitcnt vmcnt(0) lgkmcnt(0)")
    A("s_barrier")
    get_tag_spin(V_T)
    o_arm_flag()
    poll(2, V_T, sleep=8)
    stamp(3)
    A(f"s_mov_b32 s{S_HF}, 0")
    A("s_branch L_attn_late")

def global_touch():
    if OPT["tmap"]:
        A(f"s_mul_i32 s{T1}, s{S_RB}, 14")
        A(f"s_add_u32 s{T1}, s{T1}, s{S_J}")
        A(f"s_cmp_eq_u32 s{S_W}, 0")
        A(f"s_cselect_b32 s{T0}, s{T1}, s2")
    else:
        A(f"s_mul_i32 s{T0}, s{S_XCD}, 28")
        A(f"s_add_u32 s{T0}, s{T0}, s{S_SLOT}")
    A(f"s_lshl_b32 s{T0}, s{T0}, 13")
    A(f"v_lshlrev_b32 v{V_T}, 7, v1")
    dn = newlabel("gt"); l1 = newlabel("gt"); l2 = newlabel("gt")
    A(f"s_cmp_eq_u32 s{S_RT}, 2")
    A(f"s_cbranch_scc1 {l2}")
    A(f"s_cmp_eq_u32 s{S_W}, 1")
    A(f"s_cbranch_scc1 {l1}")
    A(f"s_cmp_eq_u32 s{S_W}, 0")
    A(f"s_cselect_b32 s{T0}, s{T0}, 0x10000000")
    A.vm(f"buffer_load_dword v{V_G}, v{V_T}, {srd(SRD_X)}, s{T0} offen")
    A(f"s_branch {dn}")
    A.label(l1)
    A(f"buffer_load_dword v{V_G}, v{V_T}, {srd(SRD_QKV)}, s{T0} offen")
    A(f"s_branch {dn}")
    A.label(l2)
    A(f"buffer_load_dword v{V_G}, v{V_T}, {srd(SRD_GU)}, s{T0} offen")
    A.label(dn)

def touch_path():
    A.label("L_touch")
    if not OPT["touch"]:
        A("s_endpgm"); return
    TW = T5
    A(f"s_sub_u32 s{T0}, s{S_SLOT}, 28")
    A(f"s_lshl_b32 s{T0}, s{T0}, 3")
    A(f"s_add_u32 s{T0}, s{T0}, s{S_XCD}")
    A(f"s_lshl_b32 s{T0}, s{T0}, 2")
    A(f"s_add_u32 s{TW}, s{T0}, s{S_RT}")
    tab = [(0, SRD_X, 2048 * 896, 896, 128), (32, 74, 448 * 2688, 128, 64 * 2688), (53, 80, 448 * 3584, 128, 64 * 3584),
           (81, 82, 448 * 3584, 128, 64 * 3584), (109, 76, 448 * 896, 128, 19 * 8192)]
    R = SRD_QKV
    for k, (f, p, nb, ls, rs) in enumerate(tab):
        if k == 0:
            A(f"s_mov_b32 s{R}, s{p}"); A(f"s_mov_b32 s{R+1}, s{p+1}"); A(f"s_mov_b32 s{R+2}, {nb}")
            A(f"s_mov_b32 s{T1}, {ls}"); A(f"s_mov_b32 s{T2}, {rs}"); A(f"s_mov_b32 s{T3}, {f}")
        else:
            A(f"s_cmp_ge_u32 s{TW}, {f}")
            A(f"s_cselect_b32 s{R}, s{p}, s{R}"); A(f"s_cselect_b32 s{R+1}, s{p+1}, s{R+1}"); A(f"s_cselect_b32 s{R+2}, {nb}, s{R+2}")
            A(f"s_cselect_b32 s{T1}, {ls}, s{T1}"); A(f"s_cselect_b32 s{T2}, {rs}, s{T2}"); A(f"s_cselect_b32 s{T3}, {f}, s{T3}")
    A(f"s_mov_b32 s{R+3}, 0x00020000")
    A(f"s_sub_u32 s{T3}, s{TW}, s{T3}")
    A(f"s_lshl_b32 s{T3}, s{T3}, 6")
    A(f"v_add_u32 v2, s{T3}, v1")
    A(f"v_mul_lo_u32 v2, v2, s{T1}")
    A(f"s_mov_b32 s{T4}, 0")
    for r in range(7 if OPT["itouch"] else 0):
        A(f"buffer_load_dword v{24+r}, v2, {srd(R)}, s{T4} offen")
        A(f"s_add_u32 s{T4}, s{T4}, s{T2}")
    A(f"s_lshl_b32 s{T3}, s{TW}, 6")
    A(f"v_add_u32 v2, s{T3}, v1")
    A("v_lshlrev_b32 v2, 7, v2")
    A(f"buffer_load_dword v32, v2, {srd(SRD_WD)}, 0 offen")
    A(f"s_mov_b32 s{T4}, {8192*128}")
    A(f"buffer_load_dword v33, v2, {srd(SRD_WD)}, s{T4} offen")
    for r in range(OPT["wspre"]):
        A(f"s_mov_b32 s{T4}, {r*8192*128}")
        A(f"buffer_load_dword v{40+r}, v2, {srd(SRD_WS)}, s{T4} offen")
    A("v_and_b32 v2, 15, v1")
    A("v_lshlrev_b32 v2, 20, v2")
    A(f"buffer_load_dword v34, v2, {srd(SRD_WS)}, 0 offen")
    A(f"buffer_load_dword v35, v2, {srd(SRD_OUT)}, 0 offen")
    A("s_waitcnt vmcnt(0)")
    A("s_endpgm")

def div3(dst, src):
    A(f"s_mul_i32 s{dst}, s{src}, 43")
    A(f"s_lshr_b32 s{dst}, s{dst}, 7")

def attn_setup():
    h = S_HEAD
    A(f"s_mul_i32 s{S_C0}, s{h}, 7")
    A(f"s_lshr_b32 s{S_C0}, s{S_C0}, 1")
    A(f"s_lshr_b32 s{T0}, s{S_C0}, 2")
    A(f"s_add_u32 s{T1}, s{S_C0}, 3")
    A(f"s_lshr_b32 s{T1}, s{T1}, 2")
    div3(T6, T0)
    div3(T2, T1)
    A(f"s_lshl_b32 s{T2}, s{T2}, 8")
    A(f"s_or_b32 s{T6}, s{T6}, s{T2}")
    A(f"s_add_u32 s{T0}, s{T0}, 14")
    A(f"s_add_u32 s{T1}, s{T1}, 14")
    div3(S_KVJ, T0)
    div3(T2, T1)
    A(f"s_lshl_b32 s{T2}, s{T2}, 8")
    A(f"s_or_b32 s{S_KVJ}, s{S_KVJ}, s{T2}")
    A(f"s_mul_i32 s{T0}, s{h}, 28")
    A(f"s_add_u32 s{T1}, s{T0}, 27")
    A(f"s_lshr_b32 s{T0}, s{T0}, 5")
    A(f"s_lshr_b32 s{T1}, s{T1}, 5")
    A(f"s_add_u32 s{T0}, s{T0}, 28")
    A(f"s_add_u32 s{T1}, s{T1}, 28")
    div3(T2, T0)
    A(f"s_lshl_b32 s{T2}, s{T2}, 16")
    A(f"s_or_b32 s{S_KVJ}, s{S_KVJ}, s{T2}")
    div3(T2, T1)
    A(f"s_lshl_b32 s{T2}, s{T2}, 24")
    A(f"s_or_b32 s{S_KVJ}, s{S_KVJ}, s{T2}")
    A("v_lshrrev_b32 v2, 4, v1")
    A("v_lshlrev_b32 v2, 3, v2")
    A(f"v_lshrrev_b32 v2, v2, s{S_KVJ}")
    A("v_and_b32 v2, 0xff, v2")
    A("v_lshlrev_b32 v2, 6, v2")
    A("v_and_b32 v3, 15, v1")
    A(f"s_lshl_b32 s{T0}, s{S_W}, 4")
    A(f"v_add3_u32 v2, v2, v3, s{T0}")
    A("v_lshlrev_b32 v2, 3, v2")
    A(f"v_add_u32 v2, {WS_FQ}, v2")
    A("v_bfe_u32 v3, v1, 2, 1")
    A("v_lshlrev_b32 v3, 3, v3")
    A(f"v_lshrrev_b32 v3, v3, s{T6}")
    A("v_and_b32 v3, 0xff, v3")
    A("v_lshlrev_b32 v3, 6, v3")
    A("v_and_b32 v4, 3, v1")
    A(f"s_lshl_b32 s{T0}, s{S_QB}, 2")
    A(f"v_add3_u32 v3, v3, v4, s{T0}")
    A("v_lshlrev_b32 v3, 3, v3")
    A(f"v_add_u32 v3, {WS_FQ}, v3")
    A(f"s_add_u32 s{S_QRT}, s{T0}, s{S_W}")
    A(f"s_lshl_b32 s{T1}, s{S_QRT}, 11")
    A(f"s_add_u32 s{T1}, s{T1}, {WS_FH + 14*128}")
    A(f"v_mov_b32 v4, s{T1}")
    A("v_and_b32 v5, 8, v1")
    A("v_cmp_ne_u32 vcc, 0, v5")
    A("v_cndmask_b32 v3, v3, v4, vcc")
    A("v_and_b32 v5, 31, v1")
    A("v_cmp_eq_u32 vcc, 28, v5")
    A("v_mov_b32 v4, 0x3f803f80")
    A("v_cndmask_b32 v4, 0, v4, vcc")
    A("v_lshlrev_b32 v5, 2, v5")
    A(f"s_mov_b32 s{S_VMASK}, 0x0fffffff")
    A(f"s_mov_b32 s{S_VMASK+1}, 0x0fffffff")
    A(f"s_lshl_b32 s{T1}, s{S_C0}, 9")
    A(f"s_mul_i32 s{S_KOFF}, s{S_W}, {16*QK_RT}")
    A(f"s_add_u32 s{S_KOFF}, s{S_KOFF}, s{T1}")
    A(f"s_add_u32 s{S_KOFF}, s{S_KOFF}, {56*512}")
    A(f"s_mul_i32 s{S_VOFF}, s{h}, 448")
    A(f"s_mul_i32 s{T2}, s{S_W}, {16*VT_KT}")
    A(f"s_add_u32 s{S_VOFF}, s{S_VOFF}, s{T2}")
    A(f"s_add_u32 s{S_VOFF}, s{S_VOFF}, {WS_VT}")
    v_lane(8)
    A(f"v_add_u32 v9, {2*7168}, v8")
    A(f"s_mul_i32 s{S_QOFF}, s{S_QB}, {4*QK_RT}")
    A(f"s_add_u32 s{S_QOFF}, s{S_QOFF}, s{T1}")
    A(f"s_lshl_b32 s{T0}, s{S_QRT}, 4")
    A(f"s_add_u32 s{T0}, s{T0}, s{h}")
    A(f"s_lshl_b32 s{S_OOFF}, s{T0}, 11")
    A(f"s_add_u32 s{S_OOFF}, s{S_OOFF}, {WS_O}")

def loadK1(buf, ks):
    A(f"buffer_load_dwordx4 {vr(KB+8*buf+4*ks,4)}, v{V_L16}, {srd(SRD_WS)}, s{S_KOFF} offen offset:{1024*ks} sc1")
    if ks == 1: A(f"s_add_u32 s{S_KOFF}, s{S_KOFF}, {QK_RT}")
def loadK(buf):
    loadK1(buf, 0); loadK1(buf, 1)
def loadV(buf):
    A(f"s_mov_b64 exec, s[{S_VMASK}:{S_VMASK+1}]")
    for ks in range(2):
        A(f"buffer_load_dwordx4 {vr(VB+8*buf+4*ks,4)}, v{8+ks}, {srd(SRD_WS)}, s{S_VOFF} offen sc1")
    A("s_mov_b64 exec, -1")
    A(f"s_add_u32 s{S_VOFF}, s{S_VOFF}, {VT_KT}")

def attn_load_list():
    L = []
    for qt in range(4):
        for ks in range(2):
            def q(qt=qt, ks=ks):
                A(f"s_add_u32 s{T2}, s{S_QOFF}, {qt*QK_RT}")
                A(f"buffer_load_dwordx4 {vr(QF+8*qt+4*ks,4)}, v{V_L16}, {srd(SRD_WS)}, s{T2} offen offset:{1024*ks} sc1")
            L.append(q)
    def gl():
        A(f"s_lshl_b32 s{T2}, s{S_QRT}, 7")
        A(f"s_add_u32 s{T2}, s{T2}, {WS_G}")
        A(f"buffer_load_dword v{V_G}, v5, {srd(SRD_WS)}, s{T2} offen sc1")
    L.append(gl)
    for b in range(4):
        L.append(lambda b=b: loadK1(b, 0)); L.append(lambda b=b: loadK1(b, 1))
        if b < 3: L.append(lambda b=b: loadV(b))
    return L

def attention():
    h = S_HEAD
    A.label("L_attn")
    if OPT["prio"]: A(f"s_setprio {OPT['prio']}")
    for i in range(4): A(f"v_mov_b32 v{PB+4+i}, 0")
    A(f"v_mov_b32 v6, {LDS_CNT + 4}")
    A("v_cmp_eq_u32 vcc, 0, v1")
    A("v_cndmask_b32 v10, 0, 1, vcc")
    A("s_waitcnt vmcnt(12)")
    stamp(4)
    ev = newlabel("qeven"); dn = newlabel("qdone")
    A(f"s_and_b32 s{T0}, s{h}, 1")
    A(f"s_cmp_eq_u32 s{T0}, 0")
    A(f"s_cbranch_scc1 {ev}")
    A("s_mov_b32 exec_hi, 0")
    for qt in range(4):
        A(f"v_mov_b32 v{QF+8*qt}, 0"); A(f"v_mov_b32 v{QF+8*qt+1}, 0")
    A(f"s_branch {dn}")
    A.label(ev)
    A("s_mov_b32 exec_lo, 0")
    for qt in range(4):
        A(f"v_mov_b32 v{QF+8*qt+6}, 0"); A(f"v_mov_b32 v{QF+8*qt+7}, 0")
    A.label(dn)
    A("s_mov_b64 exec, -1")
    A("s_nop 1")
    def qk(buf, qt, sb, ks):
        c = "0" if ks == 0 else vr(SB + 16 * sb, 16)
        A(f"v_mfma_f32_32x32x16_bf16 {vr(SB+16*sb,16)}, {vr(KB+8*buf+4*ks,4)}, {vr(QF+8*qt+4*ks,4)}, {c}")
    def pv(buf, qt, ks):
        A(f"v_mfma_f32_32x32x16_bf16 {vr(OA+16*qt,16)}, {vr(VB+8*buf+4*ks,4)}, {vr(PB+4*ks,4)}, {vr(OA+16*qt,16)}")
    qk(0, 0, 0, 0); qk(0, 0, 0, 1)
    A(f"s_mov_b32 s{S_IT}, 0")
    A("s_nop 7")
    A("s_nop 3")
    A.label("L_attn_loop")
    for tt in range(4):
        for qt in range(4):
            u = 4 * tt + qt
            s = SB + 16 * (u & 1)
            nb, nq = (tt, qt + 1) if qt < 3 else ((tt + 1) & 3, 0)
            pb_, pq = (tt, qt - 1) if qt > 0 else ((tt - 1) & 3, 3)
            E = lambda i: A(f"v_exp_f32 v{s+i}, v{s+i}")
            C = lambda i: A(f"v_cvt_pk_bf16_f32 v{PB+i}, v{s+2*i}, v{s+2*i+1}")
            def Y1():
                if qt == 3:
                    if tt == 0:
                        A(f"s_cmp_eq_u32 s{S_IT}, 3")
                        A(f"s_cselect_b32 s{S_KOFF}, {WS_SIZE}, s{S_KOFF}")
                        A(f"s_cselect_b32 s{S_VOFF}, {WS_SIZE}, s{S_VOFF}")
                    if tt == 2:
                        A("ds_read_b32 v7, v6")
                    if OPT["hold"] < 28: A("ds_add_u32 v6, v10 offset:4")
                    loadK(tt)
                elif qt == 0 and tt == 1:
                    sk = newlabel("hf")
                    A(f"s_cmp_eq_u32 s{S_HF}, 0")
                    A(f"s_cbranch_scc1 {sk}")
                    A("s_waitcnt vmcnt(4)")
                    flag_store(S_HF, V_T)
                    A(f"s_mov_b32 s{S_HF}, 0")
                    A.label(sk)
                elif OPT["yld"]: A(f"s_nop {OPT['yld']}")
            def Y2():
                if qt == 0: loadV((tt - 1) & 3)
                elif OPT["yld"]: A(f"s_nop {OPT['yld']}")
            if qt == 3:
                A("s_waitcnt vmcnt(10)")
            qk(nb, nq, (u + 1) & 1, 0)
            E(0); E(1); E(2)
            qk(nb, nq, (u + 1) & 1, 1)
            E(3); E(4); E(5)
            Y1()
            E(6); E(7); C(0); C(1); C(2); C(3)
            pv(pb_, pq, 1)
            E(8); E(9); E(10)
            if qt == 0: A("s_waitcnt vmcnt(10)")
            pv(tt, qt, 0)
            E(11); E(12); E(13)
            Y2()
            E(14); E(15); C(4); C(5); C(6); C(7)
    A(f"s_add_u32 s{S_IT}, s{S_IT}, 1")
    A(f"s_cmp_lt_u32 s{S_IT}, 4")
    A("s_cbranch_scc1 L_attn_loop")
    pv(3, 3, 1)
    stamp(5)
    okc = newlabel("ringok")
    A("s_waitcnt lgkmcnt(0)")
    A(f"v_readfirstlane_b32 s{T0}, v7")
    A(f"s_cmp_ge_u32 s{T0}, 8")
    A(f"s_cbranch_scc1 {okc}")
    cnt_wait(4, 8, 6, 7)
    A.label(okc)
    for d in range(4):
        sk = newlabel("ow")
        A(f"s_cmp_eq_u32 s{S_W}, {d}")
        A(f"s_cbranch_scc1 {sk}")
        A(f"s_sub_u32 s{T0}, s{S_W}, {d+1}")
        A(f"s_and_b32 s{T0}, s{T0}, 3")
        A(f"s_lshl_b32 s{T0}, s{T0}, 12")
        A(f"s_add_u32 s{T0}, s{T0}, {LDS_AR + d*12288}")
        A(f"v_add_u32 v2, s{T0}, v{V_L16}")
        for q in range(4):
            A(f"ds_write_b128 v2, {vr(OA+16*d+4*q,4)} offset:{1024*q}")
        A.label(sk)
    for d in range(4):
        sk = newlabel("om")
        A(f"s_cmp_lg_u32 s{S_W}, {d}")
        A(f"s_cbranch_scc1 {sk}")
        for i in range(16): A(f"v_mov_b32 v{SB+i}, v{OA+16*d+i}")
        A.label(sk)
    cnt_add(0, 3, 4)
    cnt_wait(0, 4, 3, 4)
    A(f"s_mul_i32 s{T0}, s{S_W}, 12288")
    A(f"s_add_u32 s{T0}, s{T0}, {LDS_AR}")
    A(f"v_add_u32 v2, s{T0}, v{V_L16}")
    for k in range(12):
        A(f"ds_read_b128 {vr(OA+4*k,4)}, v2 offset:{1024*k}")
    for p in range(3):
        A(f"s_waitcnt lgkmcnt({8-4*p})")
        for i in range(16): A(f"v_add_f32 v{SB+i}, v{SB+i}, v{OA+16*p+i}")
    A(f"v_mov_b32 v2, v{SB+12}")
    A(f"v_mov_b32 v3, v{SB+12}")
    A("v_permlane32_swap_b32 v2, v3")
    A(f"s_mov_b32 s{T0}, {f32(2.0**-64)}")
    A(f"s_mov_b32 s{T1}, {f32(2.0**64)}")
    A(f"v_cmp_le_f32 vcc, s{T0}, v3")
    A(f"v_cmp_ge_f32 s[{T2}:{T3}], s{T1}, v3")
    A(f"s_and_b64 s[{T2}:{T3}], s[{T2}:{T3}], vcc")
    A(f"s_cmp_eq_u64 s[{T2}:{T3}], -1")
    if OPT["force_slow"]:
        A("s_branch L_slow")
    else:
        A("s_cbranch_scc0 L_slow")
    A.label("L_ofin")
    A("v_rcp_f32 v3, v3")
    A(f"v_mul_f32 v3, v3, v{V_G}")
    for i in range(16): A(f"v_mul_f32 v{SB+i}, v{SB+i}, v3")
    for i in range(8): A(f"v_cvt_pk_bf16_f32 v{PB+i}, v{SB+2*i}, v{SB+2*i+1}")
    A("s_mov_b32 exec_lo, 0")
    A(f"v_mov_b32 v{PB+6}, 0")
    A(f"v_mov_b32 v{PB+7}, 0")
    A("s_mov_b64 exec, -1")
    for i in range(8): A(f"v_min_u32 v{PB+i}, -2, v{PB+i}")
    A(f"buffer_store_dwordx4 {vr(PB,4)}, v{V_L16}, {srd(SRD_WS)}, s{S_OOFF} offen sc1")
    A(f"buffer_store_dwordx4 {vr(PB+4,4)}, v{V_L16}, {srd(SRD_WS)}, s{S_OOFF} offen offset:1024 sc1")
    stamp(6)
    prof_dump(2)
    A("s_endpgm")

def attention_slow():
    h = S_HEAD
    A.label("L_slow")
    A("v_lshrrev_b32 v2, 4, v1")
    A("v_lshlrev_b32 v2, 3, v2")
    A(f"v_lshrrev_b32 v2, v2, s{S_KVJ}")
    A("v_and_b32 v2, 0xff, v2")
    A("v_lshlrev_b32 v2, 6, v2")
    A("v_and_b32 v3, 15, v1")
    A("v_add_u32 v2, v2, v3")
    A("v_lshlrev_b32 v2, 3, v2")
    A(f"v_add_u32 v2, {WS_FQ}, v2")
    for qq in range(4):
        poll(2, V_T)
        if qq < 3: A("v_add_u32 v2, 128, v2")
    SQ = OA
    for d in range(4):
        sk = newlabel("sq")
        A(f"s_cmp_lg_u32 s{S_W}, {d}")
        A(f"s_cbranch_scc1 {sk}")
        for i in range(8): A(f"v_mov_b32 v{SQ+i}, v{QF+8*d+i}")
        A.label(sk)
    SS = OA + 16
    for i in range(16): A(f"v_mov_b32 v{SB+i}, 0")
    A(f"v_mov_b32 v4, {f32(-3.0e38)}")
    A(f"s_lshl_b32 s{S_KOFF}, s{S_C0}, 9")
    A(f"s_add_u32 s{S_KOFF}, s{S_KOFF}, {56*512}")
    A(f"s_mul_i32 s{S_VOFF}, s{h}, 448")
    A(f"s_add_u32 s{S_VOFF}, s{S_VOFF}, {WS_VT}")
    A(f"s_mov_b32 s{S_IT}, 0")
    A.label("L_slow_loop")
    loadK(0); loadV(0)
    A("s_waitcnt vmcnt(0)")
    A(f"v_mfma_f32_32x32x16_bf16 {vr(SS,16)}, {vr(KB,4)}, {vr(SQ,4)}, 0")
    A(f"v_mfma_f32_32x32x16_bf16 {vr(SS,16)}, {vr(KB+4,4)}, {vr(SQ+4,4)}, {vr(SS,16)}")
    A(f"v_max3_f32 v5, v{SS}, v{SS+1}, v4")
    for i in range(1, 8): A(f"v_max3_f32 v5, v{SS+2*i}, v{SS+2*i+1}, v5")
    A("v_mov_b32 v6, v5")
    A("v_permlane32_swap_b32 v5, v6")
    A("v_max_f32 v5, v5, v6")
    A("v_sub_f32 v6, v4, v5")
    A("v_exp_f32 v6, v6")
    A("v_mov_b32 v4, v5")
    for i in range(16): A(f"v_mul_f32 v{SB+i}, v{SB+i}, v6")
    for i in range(16): A(f"v_sub_f32 v{SS+i}, v{SS+i}, v5")
    for i in range(16): A(f"v_exp_f32 v{SS+i}, v{SS+i}")
    for i in range(8): A(f"v_cvt_pk_bf16_f32 v{PB+i}, v{SS+2*i}, v{SS+2*i+1}")
    A(f"v_mfma_f32_32x32x16_bf16 {vr(SB,16)}, {vr(VB,4)}, {vr(PB,4)}, {vr(SB,16)}")
    A(f"v_mfma_f32_32x32x16_bf16 {vr(SB,16)}, {vr(VB+4,4)}, {vr(PB+4,4)}, {vr(SB,16)}")
    A("s_nop 7")
    A("s_nop 3")
    A(f"s_add_u32 s{S_IT}, s{S_IT}, 1")
    A(f"s_cmp_lt_u32 s{S_IT}, 64")
    A("s_cbranch_scc1 L_slow_loop")
    A(f"v_mov_b32 v2, v{SB+12}")
    A(f"v_mov_b32 v3, v{SB+12}")
    A("v_permlane32_swap_b32 v2, v3")
    A("s_branch L_ofin")

V_CW = 2
V_CT = 3
S_RING, S_WDB, S_WOB = 46, 47, 48
CTOK = {}

def cW(s):
    slot = (s % RING_N) * 2048
    for e in range(2):
        A(f"s_add_u32 m0, s{S_RING}, {slot + 1024*e}")
        if s < 28:
            A(f"s_add_u32 s{T6}, s{S_WDB}, {(16*s + 8*e) * 896}")
            t = A.vm(f"buffer_load_dwordx4 v{V_CW}, {srd(SRD_WD)}, s{T6} offen lds")
        else:
            hh, ks = divmod(s - 28, 2)
            A(f"s_add_u32 s{T6}, s{S_WOB}, {(28*hh + 16*ks + 8*e) * 896}")
            t = A.vm(f"buffer_load_dwordx4 v{V_CW}, {srd(SRD_WO)}, s{T6} offen lds")
    CTOK[("W", s)] = t

def phaseC_prefetch(n):
    t0, t1 = V_VA, V_VA + 1
    A(f"s_mul_i32 s{S_RING}, s{S_RT}, {RING_B}")
    A(f"s_mul_i32 s{S_WDB}, s{S_RT}, {448*896}")
    A(f"s_mul_i32 s{S_WOB}, s{S_RT}, {112*896}")
    A(f"v_lshrrev_b32 v{t0}, 3, v1")
    A(f"v_mul_u32_u24 v{t0}, 896, v{t0}")
    A(f"v_bfe_u32 v{t1}, v1, 1, 2")
    A(f"v_bfe_u32 v{V_CW}, v1, 4, 1")
    A(f"v_lshlrev_b32 v{V_CW}, 1, v{V_CW}")
    A(f"v_xor_b32 v{t1}, v{t1}, v{V_CW}")
    A(f"v_lshl_add_u32 v{t0}, v{t1}, 5, v{t0}")
    A(f"v_and_b32 v{t1}, 1, v1")
    A(f"v_lshl_add_u32 v{t0}, v{t1}, 4, v{t0}")
    A(f"s_lshl_b32 s{T1}, s{S_CT}, 7")
    A(f"v_add_u32 v{V_CW}, s{T1}, v{t0}")
    for s in range(n): cW(s)

CACC = 24
CWF = 88
CAF = 104
COW = 56
COF = 184

def pair_set(which, va, vb):
    A(f"s_lshl_b32 s{T0}, s{S_RT}, 2")
    A(f"s_add_u32 s{T0}, s{T0}, {LDS_CNT + 16 + 16*which}")
    A(f"v_mov_b32 v{va}, s{T0}")
    A(f"v_mov_b32 v{vb}, 1")
    A("s_waitcnt lgkmcnt(0)")
    A(f"ds_write_b32 v{va}, v{vb}")

def pair_wait(xor, va, vb):
    L = newlabel("pw"); D = newlabel("pwd")
    A(f"v_xor_b32 v{va}, {4*xor}, v{va}")
    A(f"s_mov_b32 s{S_CNT}, 0x100000")
    A.label(L)
    A(f"ds_read_b32 v{vb}, v{va}")
    A("s_waitcnt lgkmcnt(0)")
    A(f"v_readfirstlane_b32 s{T0}, v{vb}")
    A(f"s_cmp_lg_u32 s{T0}, 0")
    A(f"s_cbranch_scc1 {D}")
    A(f"s_sub_u32 s{S_CNT}, s{S_CNT}, 1")
    A(f"s_cmp_lg_u32 s{S_CNT}, 0")
    A(f"s_cbranch_scc1 {L}")
    A.label(D)

def phaseC():
    assert RING_N == 13
    wq = S_RT
    S_H0, S_H1, S_O0, S_KH, S_ORT, S_PEND = S_KOFF, S_VOFF, S_IT, S_C0, S_KVJ, S_QRT
    A(f"s_lshr_b32 s{S_KH}, s{wq}, 1")
    A(f"s_and_b32 s{T2}, s{wq}, 1")
    A(f"s_lshl_b32 s{T1}, s{S_RB64}, 1")
    A(f"s_add_u32 s{S_ORT}, s{T1}, s{T2}")
    A("v_lshrrev_b32 v5, 5, v1")
    A("v_bfe_u32 v6, v1, 2, 2")
    A("v_lshl_add_u32 v5, v5, 2, v6")
    A("v_lshlrev_b32 v5, 7, v5")
    A("v_and_b32 v6, 2, v6")
    A("v_bfe_u32 v7, v1, 4, 1")
    A("v_xor_b32 v6, v6, v7")
    A("v_lshl_add_u32 v5, v6, 5, v5")
    A("v_and_b32 v6, 3, v1")
    A("v_lshl_add_u32 v5, v6, 3, v5")
    A(f"s_lshl_b32 s{T0}, s{S_KH}, 6")
    A(f"v_xor_b32 v5, s{T0}, v5")
    A("v_xor_b32 v6, 64, v5")
    A(f"v_add_u32 v{V_CT}, s{S_RING}, v5")
    A(f"v_add_u32 v{V_CT+1}, s{S_RING}, v6")
    A(f"s_mul_i32 s{T0}, s{S_KH}, {2*RING_B}")
    A(f"v_add_u32 v11, s{T0}, v5")
    A(f"v_add_u32 v12, s{T0}, v6")
    A(f"s_mul_i32 s{T0}, s{wq}, 7")
    A(f"s_lshr_b32 s{T0}, s{T0}, 1")
    A("v_bfe_u32 v5, v1, 2, 2")
    A(f"v_add_u32 v5, s{T0}, v5")
    A("v_and_b32 v6, 16, v1")
    A("v_cmp_ne_u32 vcc, 0, v6")
    A("v_lshlrev_b32 v5, 7, v5")
    A("v_bfe_u32 v6, v1, 1, 1")
    A("v_lshl_add_u32 v5, v6, 3, v5")
    A(f"v_mov_b32 v6, {14*128}")
    A("v_cndmask_b32 v5, v5, v6, vcc")
    A("v_and_b32 v6, 1, v1")
    A(f"v_add_u32 v6, s{T1}, v6")
    A("v_lshl_add_u32 v5, v6, 11, v5")
    A(f"v_add_u32 v5, {WS_FH}, v5")
    A(f"s_lshl_b32 s{T0}, s{S_ORT}, 4")
    A(f"s_lshl_b32 s{T3}, s{S_KH}, 3")
    A(f"s_add_u32 s{T0}, s{T0}, s{T3}")
    A(f"s_lshl_b32 s{S_O0}, s{T0}, 11")
    A(f"s_add_u32 s{S_O0}, s{S_O0}, {WS_O}")
    A("v_and_b32 v7, 7, v1")
    A(f"v_add_u32 v7, s{T0}, v7")
    A("v_lshlrev_b32 v7, 7, v7")
    A(f"v_add_u32 v7, {WS_FO}, v7")
    A("v_and_b32 v13, 15, v1")
    A("v_lshlrev_b32 v13, 10, v13")
    A(f"s_mul_i32 s{S_H0}, s{S_ORT}, {H_RT}")
    A(f"s_mul_i32 s{T0}, s{wq}, {28*1024}")
    A(f"s_add_u32 s{T0}, s{T0}, {WS_H}")
    A(f"s_add_u32 s{S_H0}, s{S_H0}, s{T0}")
    A(f"s_xor_b32 s{T3}, s{S_ORT}, 1")
    A(f"s_mul_i32 s{S_H1}, s{T3}, {H_RT}")
    A(f"s_add_u32 s{S_H1}, s{S_H1}, s{T0}")
    A("v_and_b32 v8, 31, v1")
    A("v_lshlrev_b32 v10, 2, v8")
    A(f"s_lshl_b32 s{T5}, s{S_ORT}, 7")
    A(f"s_add_u32 s{T5}, s{T5}, {WS_G}")
    poll(5, V_T)
    stamp(4)
    A.vm_issued = 0
    for k in list(CTOK): CTOK[k] = 0
    def af(s, r): return CAF + 8 * (s % RING_N) + 4 * r
    def cA(s):
        for r in range(2):
            base = S_H0 if r == 0 else S_H1
            hi, lo = divmod(s, 4)
            if hi:
                A(f"s_add_u32 s{T7}, s{base}, {hi*4096}")
                so = T7
            else: so = base
            t = A.vm(f"buffer_load_dwordx4 {vr(af(s,r),4)}, v{V_L16}, {srd(SRD_WS)}, s{so} offen offset:{lo*1024} sc1")
        CTOK[("A", s)] = t
    A.vm(f"buffer_load_dword v9, v10, {srd(SRD_WS)}, s{T5} offen sc1")
    for s in range(RING_N): cA(s)
    def reads(s):
        fb = CWF + 8 * (s & 1)
        for c in range(2):
            for a in range(2):
                A(f"ds_read_b64_tr_b16 {vr(fb+4*c+2*a,2)}, v{V_CT+c} offset:{(s % RING_N)*2048 + a*1024}")
    def mf(s):
        fb = CWF + 8 * (s & 1)
        for r in range(2):
            for c in range(2):
                acc = CACC + 16 * (2 * r + c)
                cc = "0" if s == 0 else vr(acc, 16)
                if "nocm" in OPT["exp"] and s > 0: continue
                A(f"v_mfma_f32_32x32x16_bf16 {vr(acc,16)}, {vr(fb+4*c,4)}, {vr(af(s,r),4)}, {cc}")
    A.vm_wait(CTOK[("W", 0)])
    reads(0)
    for s in range(28):
        if s == OPT["hold"]:
            L = newlabel("hold"); D = newlabel("holdd")
            A(f"v_mov_b32 v{V_T}, {LDS_CNT + 8}")
            A(f"s_mov_b32 s{S_CNT}, 0x10000")
            A.label(L)
            A(f"ds_read_b32 v{V_T+1}, v{V_T}")
            A("s_waitcnt lgkmcnt(0)")
            A(f"v_readfirstlane_b32 s{T0}, v{V_T+1}")
            A(f"s_cmp_ge_u32 s{T0}, {OPT['holdn']}")
            A(f"s_cbranch_scc1 {D}")
            A("s_sleep 3")
            A(f"s_sub_u32 s{S_CNT}, s{S_CNT}, 1")
            A(f"s_cmp_lg_u32 s{S_CNT}, 0")
            A(f"s_cbranch_scc1 {L}")
            A.label(D)
            stamp(8)
        if s + 1 < 28:
            A.vm_wait(max(CTOK[("W", s + 1)], CTOK[("A", s)]))
            reads(s + 1)
            A("s_waitcnt lgkmcnt(4)")
        else:
            A.vm_wait(CTOK[("A", s)], "lgkmcnt(0)")
        if OPT["cprio"]: A(f"s_setprio {OPT['cprio']}")
        mf(s)
        if OPT["cprio"]: A("s_setprio 0")
        n = s + RING_N
        if "nocl" in OPT["exp"]:
            CTOK[("W", n)] = 0; CTOK[("A", n)] = 0
            continue
        if n < 36: cW(n)
        if n < 28: cA(n)
    stamp(5)
    PIECE = [0, 1024, 2048, 3072, 20480, 21504, 22528, 23552]
    A(f"v_add_u32 v14, s{S_RING}, v{V_L16}")
    for k in range(8):
        A(f"ds_write_b128 v14, {vr(CACC+32+4*k,4)} offset:{PIECE[k]}")
    A("s_waitcnt vmcnt(0)")
    pair_set(0, 5, 6)
    pair_wait(1, 5, 6)
    A(f"s_xor_b32 s{T0}, s{wq}, 1")
    A(f"s_mul_i32 s{T0}, s{T0}, {RING_B}")
    A(f"v_add_u32 v15, s{T0}, v{V_L16}")
    for k in range(8):
        A(f"ds_read_b128 {vr(COF+4*k,4)}, v15 offset:{PIECE[k]}")
    for k in range(8):
        for ks in range(2):
            off = (k >> 2) * RING_B + ((28 + 2 * (k & 3) + ks) % RING_N) * 2048
            for c in range(2):
                for a in range(2):
                    A(f"ds_read_b64_tr_b16 {vr(COW+16*k+8*ks+4*c+2*a,2)}, v{11+c} offset:{off + a*1024}")
    A("v_sub_f32 v9, 1.0, v9")
    pair_set(1, 5, 6)
    for i in range(32): A(f"v_add_f32 v{CACC+i}, v{CACC+i}, v{COF+i}")
    for i in range(32): A(f"v_mul_f32 v{CACC+i}, v{CACC+i}, v9")
    pair_wait(1, 5, 6)
    A(f"s_lshl_b32 s{T0}, s{S_ORT}, 5")
    A(f"v_add_u32 v8, s{T0}, v8")
    A("v_mul_u32_u24 v8, 896, v8")
    A("v_lshrrev_b32 v9, 5, v1")
    A("v_lshl_add_u32 v8, v9, 4, v8")
    A(f"s_lshl_b32 s{T5}, s{S_CT}, 7")
    A(f"s_lshl_b32 s{T0}, s{S_KH}, 6")
    A(f"s_add_u32 s{T5}, s{T5}, s{T0}")
    A(f"s_xor_b32 s{T0}, s{wq}, 2")
    A(f"s_mul_i32 s{T0}, s{T0}, {RING_B}")
    A(f"v_add_u32 v15, s{T0}, v{V_L16}")
    A(f"s_lshl_b32 s{T0}, s{S_RT}, 2")
    A(f"s_add_u32 s{T0}, s{T0}, {LDS_CNT + 16 + 32}")
    A(f"v_mov_b32 v5, s{T0}")
    A("v_xor_b32 v10, 8, v5")
    A("v_mov_b32 v6, 1")
    poll(7, V_T, sleep=1)
    L = newlabel("probe"); D = newlabel("probed")
    A(f"s_mov_b32 s{S_CNT}, 0x8000")
    A.label(L)
    A(f"buffer_load_dword v{V_T}, v13, {srd(SRD_WS)}, s{S_O0} offen offset:1008 sc1")
    A("s_waitcnt vmcnt(0)")
    A(f"v_cmp_ne_u32 vcc, -1, v{V_T}")
    A(f"s_cbranch_vccnz {D}")
    A("s_sleep 1")
    A(f"s_sub_u32 s{S_CNT}, s{S_CNT}, 1")
    A(f"s_cmp_lg_u32 s{S_CNT}, 0")
    A(f"s_cbranch_scc1 {L}")
    A.label(D)
    stamp(6)
    A(f"s_setprio 3")
    A(f"s_movk_i32 s{S_PEND}, 0xff")
    S_NEXT = S_HF
    A(f"s_mov_b32 s{S_NEXT}, 0")
    A(f"s_mov_b32 s{S_CNT}, 0x4000")
    A.label("L_oround")
    for k in range(8):
        sk = newlabel("ol")
        A(f"s_bitcmp1_b32 s{S_PEND}, {k}")
        A(f"s_cbranch_scc0 {sk}")
        A(f"s_add_u32 s{T7}, s{S_O0}, {k*2048}")
        for ks in range(2):
            A(f"buffer_load_dwordx4 {vr(COF+8*k+4*ks,4)}, v{V_L16}, {srd(SRD_WS)}, s{T7} offen offset:{ks*1024} sc1")
        A.label(sk)
    A("s_waitcnt vmcnt(0)")
    for k in range(8):
        sk = newlabel("om")
        o = COF + 8 * k
        A(f"s_bitcmp1_b32 s{S_PEND}, {k}")
        A(f"s_cbranch_scc0 {sk}")
        A(f"v_max3_u32 v{V_T}, v{o}, v{o+1}, v{o+2}")
        A(f"v_max3_u32 v{V_T+1}, v{o+3}, v{o+4}, v{o+5}")
        A(f"v_max3_u32 v{V_T}, v{V_T}, v{o+6}, v{o+7}")
        A(f"v_max_u32 v{V_T}, v{V_T}, v{V_T+1}")
        A(f"v_cmp_eq_u32 vcc, -1, v{V_T}")
        A(f"s_cbranch_vccnz {sk}")
        A(f"s_bitset0_b32 s{S_PEND}, {k}")
        A.label(sk)
        sk = newlabel("oa")
        A(f"s_lshr_b32 s{T0}, s{S_PEND}, {k}")
        A(f"s_and_b32 s{T0}, s{T0}, 1")
        A(f"s_lshl_b32 s{T0}, s{T0}, 8")
        A(f"s_or_b32 s{T0}, s{T0}, s{S_NEXT}")
        A(f"s_cmp_eq_u32 s{T0}, {k}")
        A(f"s_cbranch_scc0 {sk}")
        for ks in range(2):
            for c in (1, 0):
                acc = CACC + 16 * c
                A(f"v_mfma_f32_32x32x16_bf16 {vr(acc,16)}, {vr(COW+16*k+8*ks+4*c,4)}, {vr(o+4*ks,4)}, {vr(acc,16)}")
        A(f"s_mov_b32 s{S_NEXT}, {k+1}")
        A.label(sk)
    A(f"s_cmp_eq_u32 s{S_PEND}, 0")
    A("s_cbranch_scc1 L_odone")
    A(f"s_sub_u32 s{S_CNT}, s{S_CNT}, 1")
    A(f"s_cmp_lg_u32 s{S_CNT}, 0")
    A("s_cbranch_scc1 L_oround")
    A.label("L_odone")
    A("s_nop 7")
    A("s_nop 1")
    for q in range(4):
        A(f"ds_write_b128 v14, {vr(CACC+16+4*q,4)} offset:{1024*q}")
    A("s_waitcnt lgkmcnt(0)")
    A("ds_write_b32 v5, v6")
    L = newlabel("fw"); D = newlabel("fwd")
    A(f"s_mov_b32 s{S_CNT}, 0x400000")
    A.label(L)
    A("ds_read_b32 v6, v10")
    A("s_waitcnt lgkmcnt(0)")
    A(f"v_readfirstlane_b32 s{T0}, v6")
    A(f"s_cmp_lg_u32 s{T0}, 0")
    A(f"s_cbranch_scc1 {D}")
    A(f"s_sub_u32 s{S_CNT}, s{S_CNT}, 1")
    A(f"s_cmp_lg_u32 s{S_CNT}, 0")
    A(f"s_cbranch_scc1 {L}")
    A.label(D)
    for q in range(4):
        A(f"ds_read_b128 {vr(COW+4*q,4)}, v15 offset:{1024*q}")
    for q in range(4):
        A(f"s_waitcnt lgkmcnt({3-q})")
        for i in range(4): A(f"v_add_f32 v{CACC+4*q+i}, v{CACC+4*q+i}, v{COW+4*q+i}")
        for i in range(2): A(f"v_cvt_pk_bf16_f32 v{CACC+16+2*q+i}, v{CACC+4*q+2*i}, v{CACC+4*q+2*i+1}")
    P = CACC + 16
    for a, b in ((0, 2), (1, 3), (4, 6), (5, 7)):
        A(f"v_permlane32_swap_b32 v{P+a}, v{P+b}")
    A(f"buffer_store_dwordx4 {vr(P,4)}, v8, {srd(SRD_OUT)}, s{T5} offen {OPT.get('osc','')}")
    A(f"buffer_store_dwordx4 {vr(P+4,4)}, v8, {srd(SRD_OUT)}, s{T5} offen offset:32 {OPT.get('osc','')}")
    stamp(7)
    prof_dump(2)
    A("s_endpgm")

def main():
    prologue()
    A(f"s_cmp_ge_u32 s{S_SLOT}, 28")
    A("s_cbranch_scc1 L_gate")
    phaseA_setup()
    st0 = PA()
    if OPT["tfirst"]: global_touch()
    st0.dma(2 * OPT["pre1"], force=True)
    if OPT["gtouch"] and not OPT["tfirst"]: global_touch()
    A("s_barrier")
    st0.dma(2 * (OPT["pre2"] - OPT["pre1"]), force=True)
    prologue2()
    stamp2(1)
    vm0 = A.vm_issued
    A(f"s_cmp_ge_u32 s{S_W}, 4")
    A("s_cbranch_scc1 L_A_g")
    phaseA_readbases(0)
    A(f"s_cmp_ge_u32 s{S_J}, 10")
    A("s_cbranch_scc1 L_A_vvv")
    A(f"s_cmp_eq_u32 s{S_J}, 9")
    A("s_cbranch_scc1 L_A_kvv")
    s1 = roleA_pass1(st0, vm0, [False, False, False]); e1 = (A.vm_issued, s1.dq, dict(s1.tok), s1.tagtok, list(STORES), A.lg_issued, A.lg_done, dict(s1.rtok))
    A.label("L_A_p2")
    roleA_pass2(s1)
    attention()
    A.label("L_A_g")
    roleG_phaseA(st0, vm0)
    phaseC()
    for lab, fl in (("L_A_vvv", [True, True, True]), ("L_A_kvv", [False, True, True])):
        A.label(lab)
        s2 = roleA_pass1(st0, vm0, fl)
        assert (A.vm_issued, s2.dq, dict(s2.tok), s2.tagtok, list(STORES), A.lg_issued, A.lg_done, dict(s2.rtok)) == e1
        A("s_branch L_A_p2")
    A.label("L_gate")
    gate_path()
    touch_path()
    attention_slow()
    A.label("L_end")
    body = A.finalize()
    hdr = open(f"cdna_kernels/{NAME}.s.ref").read().split("; Override launch")[0]
    text = hdr + f"""; @launch grid=(256,1,1) block=(512,1,1) lds={LDS_BYTES}
.amdgcn_target "amdgcn-amd-amdhsa--gfx950"
.text
.globl {NAME}_kernel
.p2align 8
.type {NAME}_kernel,@function
{NAME}_kernel:
{body}    s_endpgm
L_codeend:
.section .rodata,"a"
.p2align 6
.amdhsa_kernel {NAME}_kernel
  .amdhsa_next_free_vgpr 256
  .amdhsa_next_free_sgpr 102
  .amdhsa_accum_offset 256
  .amdhsa_group_segment_fixed_size 0
  .amdhsa_kernarg_size 88
  .amdhsa_user_sgpr_count 2
  .amdhsa_user_sgpr_kernarg_segment_ptr 1
  .amdhsa_system_sgpr_workgroup_id_x 1
.end_amdhsa_kernel
"""
    open(OUT, "w").write(text)
    print("wrote", OUT, len(text), "bytes,", len(A.ins), "instructions")

main()
```

```python
import math, struct, sys, os, copy
from collections import deque
sys.path.insert(0, os.path.dirname(os.path.abspath(__file__)))
from asmlib import Asm

NAME = "gated_mix__mha_block__geglu_ffn__prompt"
OPT = dict(profile=0, rt=0, force_slow=0, exp="", codepf=1, prio=2, pre1=3, pre2=5,
           gtouch=1, direct=8, gprio=3, gpslot=44, rprio=3, xprio=0, fill=5, qrate=40, fbars="9_10", qbar=10, split=42,
           apoll=54, cearly=0, cpre=3, vlead=9, lead=9, p1pace=60, fpace=100, vpace=50, cpace=50, barm=2, osc="",
           wtouch=0, tlb=0, wdch=2, owait=2, hold=99, holdn=60)
for a in sys.argv[1:]:
    if "=" in a:
        k, v = a.split("=", 1)
        assert k in OPT or k == "out", k
        OPT[k] = int(v) if v.lstrip("-").isdigit() else v
OUT = OPT.get("out", f"cdna_kernels/{NAME}.s")

def f32i(x): return struct.unpack("<I", struct.pack("<f", x))[0]
def f32(x): return "0x%08x" % f32i(x)

WS_QK = 0x000000
QK_RT = 112 * 512
WS_VT = 0x400000
VT_KT = 4 * 7168
WS_H = 0x600000
H_RT = 112 * 1024
WS_O = 0xD00000
O_RT = 32 * 1024
WS_G = 0xF00000
WS_FQ = 0xF10000
WS_FH = 0xF20000
WS_FO = 0xF60000
WS_PROF = 0xF80000
WS_SIZE = 0x1000000

LOG2E = 1.4426950408889634
QSCALE = LOG2E / math.sqrt(28.0)
GK0 = -2.0 * math.sqrt(2.0 / math.pi) * LOG2E
GK1 = GK0 * 0.044715

S_W = 3
SRD_X, SRD_QKV, SRD_GU, SRD_WD, SRD_WO, SRD_WS, SRD_OUT, SRD_DBG, SRD_GW = 4, 8, 12, 16, 20, 24, 28, 32, 36
S_XCD, S_SLOT, S_RB, S_J, S_RT, S_RTG = 40, 41, 42, 43, 44, 45
S_MV, S_MX, S_CG = 46, 47, 48
S_HB = 49
T0, T1, T2, T3, T4, T5, T6, T7 = 50, 51, 52, 53, 54, 55, 56, 57
S_CNT = 58
S_NEXT = 59
S_HF = 59
S_TAG = 60
S_HEAD, S_QB, S_RB64, S_CT = 62, 63, 64, 65
S_VMASK = 66
S_KOFF, S_VOFF, S_IT, S_C0 = 68, 69, 70, 71
S_PROF = 72
S_PC = 96
S_KVJ, S_QRT = 98, 99
S_OK = 64
S_OOFF, S_QOFF = 46, 47
def srd(n): return f"s[{n}:{n+3}]"
def vr(a, n): return f"v[{a}:{a+n-1}]"

SLOT = 16384
NSLOT = 9
LDS_CNT = 155648
RING_N = 13
POS = [0, 8192, 16384, 24576, 114688, 122880, 131072, 139264, 147456, 32768, 40960, 98304, 106496]
WIN2 = 98304
LDS_AR = 49152
LDS_GW = LDS_CNT + 1024
LDS_BYTES = 163840

A = Asm()
_lbl = [0]
def newlabel(p):
    _lbl[0] += 1
    return f"L_{p}_{_lbl[0]}"

CLK = "s_memrealtime" if OPT["rt"] else "s_memtime"
def stamp2(k):
    if OPT["profile"] == 2:
        A(f"{CLK} s[{S_PROF+2*k}:{S_PROF+2*k+1}]")

def stamp(k):
    if OPT["profile"] == 2 and k > 0: return
    if OPT["profile"]:
        A(f"{CLK} s[{S_PROF+2*k}:{S_PROF+2*k+1}]")
        if k == 0: A(f"s_memrealtime s[{S_PROF+20}:{S_PROF+21}]")

def prof_dump(vtmp):
    if not OPT["profile"]: return
    A("s_waitcnt vmcnt(0)")
    A(f"s_memrealtime s[{S_PROF+22}:{S_PROF+23}]")
    A("s_waitcnt lgkmcnt(0)")
    A(f"s_lshl_b32 s{T0}, s2, 3")
    A(f"s_add_u32 s{T0}, s{T0}, s{S_W}")
    A(f"s_lshl_b32 s{T0}, s{T0}, 6")
    A(f"s_add_u32 s{T0}, s{T0}, {WS_PROF}")
    A(f"v_mov_b32 v{vtmp}, s{T0}")
    A("s_mov_b64 exec, 1")
    for k in range(12):
        A(f"v_mov_b32 v{vtmp+1}, s{S_PROF+2*k}")
        A(f"buffer_store_dword v{vtmp+1}, v{vtmp}, {srd(SRD_WS)}, 0 offen offset:{4*k}")
    A(f"v_mov_b32 v{vtmp+1}, s100")
    A(f"buffer_store_dword v{vtmp+1}, v{vtmp}, {srd(SRD_WS)}, 0 offen offset:48")
    A("s_mov_b64 exec, -1")

def poll(vaddr, vtmp, sleep=2, hi=False):
    L = newlabel("poll"); D = newlabel("polld")
    A(f"s_mov_b32 s{S_CNT}, 0x4000")
    A.label(L)
    A(f"buffer_load_dwordx2 {vr(vtmp,2)}, v{vaddr}, {srd(SRD_WS)}, 0 offen sc1")
    A("s_waitcnt vmcnt(0)")
    if hi: A("s_setprio 3")
    A(f"v_cmp_ne_u64 vcc, s[{S_TAG}:{S_TAG+1}], {vr(vtmp,2)}")
    if hi: A("s_setprio 0")
    A(f"s_cbranch_vccz {D}")
    A(f"s_sleep {sleep}")
    A(f"s_sub_u32 s{S_CNT}, s{S_CNT}, 1")
    A(f"s_cmp_lg_u32 s{S_CNT}, 0")
    A(f"s_cbranch_scc1 {L}")
    A.label(D)

def get_tag_spin(vtmp):
    L = newlabel("tag"); D = newlabel("tagd")
    A(f"s_mov_b32 s{S_CNT}, 0x4000")
    A(f"v_mov_b32 v{vtmp+2}, 0")
    A.label(L)
    A(f"buffer_load_dwordx2 {vr(vtmp,2)}, v{vtmp+2}, {srd(SRD_DBG)}, 0 offen sc1")
    A("s_waitcnt vmcnt(0)")
    A(f"v_readfirstlane_b32 s{S_TAG}, v{vtmp}")
    A(f"v_readfirstlane_b32 s{S_TAG+1}, v{vtmp+1}")
    A(f"s_cmp_lg_u32 s{S_TAG+1}, 0")
    A(f"s_cbranch_scc1 {D}")
    A("s_sleep 4")
    A(f"s_sub_u32 s{S_CNT}, s{S_CNT}, 1")
    A(f"s_cmp_lg_u32 s{S_CNT}, 0")
    A(f"s_cbranch_scc1 {L}")
    A.label(D)

def flag_prep(vtmp):
    A(f"v_mov_b32 v{vtmp}, s{S_TAG}")
    A(f"v_mov_b32 v{vtmp+1}, s{S_TAG+1}")
    A(f"v_lshlrev_b32 v{vtmp+2}, 3, v1")

def flag_put(soff_reg, vtmp):
    A("s_mov_b64 exec, 0xffff")
    t = A.vm(f"buffer_store_dwordx2 {vr(vtmp,2)}, v{vtmp+2}, {srd(SRD_WS)}, s{soff_reg} offen sc1")
    A("s_mov_b64 exec, -1")
    return t

V_X0, V_X1, V_Q, V_F, V_XB, V_XA = 2, 3, 4, 5, 6, 7
V_TQ, V_TV = 8, 9
V_GA = 9
V_R4 = 10
V_K0 = 11
V_FL = 12
V_L16 = 16
V_G = 17
V_T = 18
XF = 24
ACCQ = 136
ACCA = 152
ACCB = 184
FS1 = (216, 228, 240)
FS2 = (224, 232, 216)
TMP8 = 240
V_VA = 252
VACC = 136
VFS = 200
VB = 24
QF = 56
KBS = (136, 144, 88, 96)
PB = 248
OAS = (152, 168, 216, 184)
SB = 104

def mk_srd(n, p, size):
    A(f"s_mov_b32 s{n}, s{p}")
    A(f"s_mov_b32 s{n+1}, s{p+1}")
    A(f"s_mov_b32 s{n+2}, {size}")
    A(f"s_mov_b32 s{n+3}, 0x00020000")

def prologue():
    if OPT["profile"]: A("s_memrealtime s[100:101]")
    A("s_cmp_ge_u32 s2, 256")
    A("s_cbranch_scc1 L_end")
    A("s_load_dwordx16 s[72:87], s[0:1], 0")
    A("s_load_dwordx4 s[88:91], s[0:1], 64")
    A("s_load_dwordx2 s[92:93], s[0:1], 80")
    A(f"s_lshr_b32 s{S_SLOT}, s2, 3")
    if OPT["codepf"]:
        A(f"s_getpc_b64 s[{S_PC}:{S_PC+1}]")
        A.label("L_pc")
        A(f"s_lshl_b32 s{T0}, s{S_SLOT}, 13")
        A("v_lshlrev_b32 v2, 4, v0")
        A(f"v_add_u32 v2, s{T0}, v2")
        A("v_and_b32 v2, 0xffff, v2")
        A("v_min_u32 v2, L_codeend-L_pc-16, v2")
        A.vm(f"global_load_dwordx4 v[252:255], v2, s[{S_PC}:{S_PC+1}]")
    A("v_lshrrev_b32 v1, 6, v0")
    A(f"v_readfirstlane_b32 s{S_W}, v1")
    A("v_and_b32 v1, 63, v0")
    A(f"s_and_b32 s{S_XCD}, s2, 7")
    A(f"s_and_b32 s{S_RT}, s{S_W}, 3")
    A(f"s_lshr_b32 s{S_CG}, s{S_W}, 2")
    A(f"s_sub_u32 s{T4}, s{S_SLOT}, 4")
    A(f"s_mul_i32 s{T0}, s{T4}, 37")
    A(f"s_lshr_b32 s{T0}, s{T0}, 8")
    A(f"s_mul_i32 s{T1}, s{T0}, 7")
    A(f"s_sub_u32 s{S_CT}, s{T4}, s{T1}")
    A(f"s_cmp_lt_u32 s{S_SLOT}, 4")
    A(f"s_cselect_b32 s{T0}, s{S_SLOT}, s{T0}")
    A(f"s_lshr_b32 s{T2}, s{S_XCD}, 1")
    A(f"s_lshl_b32 s{T2}, s{T2}, 2")
    A(f"s_add_u32 s{S_RB}, s{T2}, s{T0}")
    A(f"s_and_b32 s{T3}, s{S_XCD}, 1")
    A(f"s_mul_i32 s{T3}, s{T3}, 7")
    A(f"s_add_u32 s{S_J}, s{T3}, s{S_CT}")
    A(f"s_lshl_b32 s{S_RB64}, s{S_XCD}, 2")
    A(f"s_add_u32 s{S_RB64}, s{S_RB64}, s{T0}")

def prologue2():
    A(f"s_lshr_b32 s{T4}, s{S_SLOT}, 4")
    A(f"s_lshl_b32 s{S_HEAD}, s{S_XCD}, 1")
    A(f"s_add_u32 s{S_HEAD}, s{S_HEAD}, s{T4}")
    A(f"s_and_b32 s{S_QB}, s{S_SLOT}, 15")
    A(f"s_lshl_b32 s{S_RTG}, s{S_RB}, 2")
    A(f"s_add_u32 s{S_RTG}, s{S_RTG}, s{S_RT}")
    mk_srd(SRD_WO, 76, 448 * 896)
    mk_srd(SRD_WD, 84, 1792 * 896)
    mk_srd(SRD_OUT, 88, 2048 * 896)
    mk_srd(SRD_DBG, 90, 256)
    mk_srd(SRD_WS, 92, WS_SIZE)
    A(f"v_lshlrev_b32 v{V_L16}, 4, v1")
    if OPT["tlb"]:
        A(f"v_and_b32 v{V_T}, 15, v1")
        A(f"v_lshlrev_b32 v{V_T}, 20, v{V_T}")
        A(f"s_cmp_eq_u32 s{S_W}, 4")
        A(f"s_cselect_b32 s{T4}, 0, 0x10000000")
        A.vm(f"buffer_load_dword v{V_G}, v{V_T}, {srd(SRD_WS)}, s{T4} offen")
        A(f"s_cmp_eq_u32 s{S_W}, 5")
        A(f"s_cselect_b32 s{T4}, 0, 0x10000000")
        A.vm(f"buffer_load_dword v{V_G}, v{V_T}, {srd(SRD_OUT)}, s{T4} offen")
    stamp(0)

def cnt_add(off, va, vb):
    A(f"v_mov_b32 v{va}, {LDS_CNT + off}")
    A(f"v_mov_b32 v{vb}, 1")
    A("s_waitcnt lgkmcnt(0)")
    A.lg_all()
    A("s_mov_b64 exec, 1")
    A(f"ds_add_u32 v{va}, v{vb}")
    A("s_mov_b64 exec, -1")

def cnt_wait(off, target, va, vb):
    L = newlabel("cnt"); D = newlabel("cntd")
    A(f"v_mov_b32 v{va}, {LDS_CNT + off}")
    A(f"s_mov_b32 s{S_CNT}, 0x100000")
    A.label(L)
    A(f"ds_read_b32 v{vb}, v{va}")
    A("s_waitcnt lgkmcnt(0)")
    A(f"v_readfirstlane_b32 s{T0}, v{vb}")
    A(f"s_cmp_ge_u32 s{T0}, {target}")
    A(f"s_cbranch_scc1 {D}")
    A(f"s_sub_u32 s{S_CNT}, s{S_CNT}, 1")
    A(f"s_cmp_lg_u32 s{S_CNT}, 0")
    A(f"s_cbranch_scc1 {L}")
    A.label(D)

def cnt_init(second=0):
    sk = newlabel("cinit")
    A(f"s_cmp_lg_u32 s{S_W}, 0")
    A(f"s_cbranch_scc1 {sk}")
    A(f"v_lshlrev_b32 v{V_T}, 2, v1")
    A(f"v_add_u32 v{V_T}, {LDS_CNT}, v{V_T}")
    A("v_cmp_eq_u32 vcc, 1, v1")
    A(f"v_cndmask_b32 v{V_T+1}, 0, {second}, vcc")
    A(f"ds_write_b32 v{V_T}, v{V_T+1}")
    A.label(sk)

def x_dma_setup():
    w = S_W
    t0, t1, t2, t3 = V_T, V_T + 1, V_T + 2, V_T + 3
    A(f"s_lshl_b32 s{S_MX}, s{w}, 11")
    A(f"s_lshl_b32 s{T1}, s{S_RB}, 7")
    A(f"s_lshl_b32 s{T2}, s{w}, 4")
    A(f"s_add_u32 s{T1}, s{T1}, s{T2}")
    A(f"v_lshrrev_b32 v{t0}, 3, v1")
    A(f"v_add_u32 v{t1}, s{T1}, v{t0}")
    A(f"v_mul_u32_u24 v{t1}, 896, v{t1}")
    A(f"v_lshrrev_b32 v{t2}, 4, v1")
    A(f"v_and_b32 v{t3}, 7, v1")
    A(f"v_xor_b32 v{t3}, v{t3}, v{t2}")
    A(f"v_lshl_add_u32 v{V_X0}, v{t3}, 4, v{t1}")
    A(f"v_xor_b32 v{t3}, 4, v{t3}")
    A(f"v_lshl_add_u32 v{V_X1}, v{t3}, 4, v{t1}")
    A(f"v_add_u32 v{V_X1}, {8*896}, v{V_X1}")

def reg_dma_setup():
    t0, t1, t2, t3 = V_T, V_T + 1, V_T + 2, V_T + 3
    A(f"v_bfe_u32 v{t3}, v1, 1, 2")
    A(f"v_bfe_u32 v{t2}, v1, 4, 1")
    A(f"v_lshlrev_b32 v{t2}, 1, v{t2}")
    A(f"v_xor_b32 v{t3}, v{t3}, v{t2}")
    A(f"v_lshlrev_b32 v{t3}, 5, v{t3}")
    A(f"v_and_b32 v{t2}, 1, v1")
    A(f"v_lshl_add_u32 v{t3}, v{t2}, 4, v{t3}")
    A(f"v_add_u32 v{t1}, s{T2}, v{t0}")
    A(f"v_mul_u32_u24 v{t1}, 2688, v{t1}")
    A(f"s_lshl_b32 s{T1}, s{S_J}, 7")
    A(f"v_add3_u32 v{V_Q}, v{t1}, v{t3}, s{T1}")
    A("s_waitcnt lgkmcnt(0)")
    mk_srd(SRD_X, 72, 2048 * 896)
    mk_srd(SRD_QKV, 74, 448 * 2688)

def reg_dma_setup2():
    t0, t1, t3 = V_T, V_T + 1, V_T + 3
    A(f"s_lshl_b32 s{T1}, s{S_RT}, 3")
    A(f"v_add_u32 v{t1}, s{T1}, v{t0}")
    A(f"v_mul_u32_u24 v{t1}, 3584, v{t1}")
    A(f"s_lshl_b32 s{T1}, s{S_CG}, 5")
    A(f"v_xor_b32 v{t3}, s{T1}, v{t3}")
    A(f"s_lshl_b32 s{T1}, s{S_J}, 8")
    A(f"v_add3_u32 v{V_F}, v{t1}, v{t3}, s{T1}")
    A(f"s_lshl_b32 s{S_MV}, s{S_CG}, 13")
    A(f"s_lshl_b32 s{T1}, s{S_RT}, 10")
    A(f"s_add_u32 s{S_MV}, s{S_MV}, s{T1}")
    A(f"s_cmp_ge_u32 s{S_W}, 4")
    A(f"s_cselect_b32 s{SRD_GU}, s82, s80")
    A(f"s_cselect_b32 s{SRD_GU+1}, s83, s81")
    A(f"s_mov_b32 s{SRD_GU+2}, {448*3584}")
    A(f"s_mov_b32 s{SRD_GU+3}, 0x00020000")

def dma_x(slot, c, e):
    A(f"s_add_u32 m0, s{S_MX}, {slot + 1024*e}")
    A(f"s_movk_i32 s{T6}, {c*128}")
    return A.vm(f"buffer_load_dwordx4 v{V_X0+e}, {srd(SRD_X)}, s{T6} offen lds")

def global_touch():
    A(f"s_mul_i32 s{T0}, s{S_XCD}, 28")
    A(f"s_add_u32 s{T0}, s{T0}, s{S_SLOT}")
    A(f"s_sub_u32 s{T0}, s{T0}, 4")
    A(f"s_lshl_b32 s{T0}, s{T0}, 13")
    A(f"v_lshlrev_b32 v{V_T+4}, 7, v1")
    if OPT["wtouch"]:
        mk_srd(SRD_WO, 76, 448 * 896)
        mk_srd(SRD_WD, 84, 1792 * 896)
    dn = newlabel("gt")
    cases = [(S_RT, 2, SRD_GU), (S_W, 1, SRD_QKV)] + ([(S_W, 3, SRD_WD), (S_W, 7, SRD_WO)] if OPT["wtouch"] else [])
    labs = [newlabel("gt") for _ in cases]
    for (reg, val, sr), l in zip(cases, labs):
        A(f"s_cmp_eq_u32 s{reg}, {val}")
        A(f"s_cbranch_scc1 {l}")
    A(f"s_cmp_eq_u32 s{S_W}, 0")
    A(f"s_cselect_b32 s{T0}, s{T0}, 0x10000000")
    A.vm(f"buffer_load_dword v{V_G}, v{V_T+4}, {srd(SRD_X)}, s{T0} offen")
    for (reg, val, sr), l in zip(cases, labs):
        A(f"s_branch {dn}")
        A.label(l)
        A(f"buffer_load_dword v{V_G}, v{V_T+4}, {srd(sr)}, s{T0} offen")
    A.label(dn)

def lane_fields():
    hf, g16, r, c4 = V_T, V_T + 1, V_T + 2, V_T + 3
    u0, u1 = V_T + 4, V_T + 5
    A(f"v_lshrrev_b32 v{hf}, 5, v1")
    A(f"v_bfe_u32 v{g16}, v1, 4, 1")
    A(f"v_bfe_u32 v{r}, v1, 2, 2")
    A(f"v_and_b32 v{c4}, 3, v1")
    A(f"v_and_b32 v{u0}, 31, v1")
    A(f"v_lshlrev_b32 v{V_R4}, 2, v{u0}")
    A(f"s_lshl_b32 s{T1}, s{S_RT}, 5")
    A(f"v_add_u32 v{u0}, s{T1}, v{u0}")
    A(f"v_lshlrev_b32 v{u0}, 7, v{u0}")
    A(f"v_bfe_u32 v{u1}, v1, 1, 3")
    A(f"v_xor_b32 v{u1}, v{u1}, v{hf}")
    A(f"v_lshl_add_u32 v{V_XB}, v{u1}, 4, v{u0}")
    A(f"v_lshl_add_u32 v{u0}, v{hf}, 3, v{r}")

def reg_readbases():
    hf, g16, r, c4 = V_T, V_T + 1, V_T + 2, V_T + 3
    u0, u1 = V_T + 4, V_T + 5
    lane_fields()
    A(f"v_and_b32 v{u1}, 2, v{r}")
    A(f"v_add_u32 v{u1}, v{u1}, v{g16}")
    A(f"v_lshlrev_b32 v{u1}, 5, v{u1}")
    A(f"v_lshl_add_u32 v{u1}, v{c4}, 3, v{u1}")
    A(f"v_lshl_add_u32 v{u1}, v{u0}, 7, v{u1}")
    A(f"s_lshl_b32 s{T1}, s{S_CG}, 6")
    A(f"v_xor_b32 v{V_TQ}, s{T1}, v{u1}")
    A(f"v_lshl_add_u32 v{V_TV}, v{g16}, 13, v{V_TQ}")
    A(f"v_mov_b32 v{V_K0}, {f32(GK0)}")
    A(f"s_mul_i32 s{S_HB}, s{S_RTG}, {H_RT}")
    A(f"s_lshl_b32 s{T1}, s{S_J}, 13")
    A(f"s_add_u32 s{S_HB}, s{S_HB}, s{T1}")
    A(f"s_lshl_b32 s{T1}, s{S_CG}, 11")
    A(f"s_add_u32 s{S_HB}, s{S_HB}, s{T1}")
    A(f"s_add_u32 s{S_HB}, s{S_HB}, {WS_H}")

STORES = []

def gelu_tile(acc, fs_add, tmp):
    F = []
    e = lambda s: F.append(lambda s=s: A(s))
    for i in range(8): e(f"v_mul_f32 v{tmp+i}, v{acc+i}, v{acc+i}")
    for i in range(8): e(f"v_fmamk_f32 v{tmp+i}, v{tmp+i}, {f32(GK1)}, v{V_K0}")
    for i in range(8): e(f"v_mul_f32 v{tmp+i}, v{tmp+i}, v{acc+i}")
    for i in range(8):
        e(f"v_exp_f32 v{tmp+i}, v{tmp+i}")
        e(f"v_mul_f32 v{acc+i}, v{acc+i}, v{acc+8+i}")
    for i in range(8): e(f"v_add_f32 v{tmp+i}, 1.0, v{tmp+i}")
    for i in range(8): e(f"v_rcp_f32 v{tmp+i}, v{tmp+i}")
    for i in range(8): e(f"v_mul_f32 v{acc+i}, v{acc+i}, v{tmp+i}")
    for i in range(4): e(f"v_cvt_pk_bf16_f32 v{acc+8+i}, v{acc+2*i}, v{acc+2*i+1}")
    def st():
        A(f"s_add_u32 s{T7}, s{S_HB}, {fs_add*1024}")
        STORES.append(A.vm(f"buffer_store_dwordx4 {vr(acc+8,4)}, v{V_L16}, {srd(SRD_WS)}, s{T7} offen sc1"))
    F.append(st)
    return F

def capture(fn):
    n0 = len(A.ins); vm0 = A.vm_issued; ns = len(STORES)
    fn()
    ins = [x.text for x in A.ins[n0:]]
    del A.ins[n0:]; A.vm_issued = vm0; del STORES[ns:]
    out = []
    for t in ins:
        if t.startswith("buffer_store"): out.append(lambda t=t: STORES.append(A.vm(t)))
        else: out.append(lambda t=t: A(t))
    return out

def qk_tile(acc):
    A(f"s_sub_u32 s{T4}, s{S_J}, 7")
    A(f"s_ashr_i32 s{T4}, s{T4}, 31")
    A(f"s_and_b32 s{T4}, s{T4}, {f32i(QSCALE) ^ 0x3f800000}")
    A(f"s_xor_b32 s{T4}, s{T4}, 1.0")
    for i in range(16): A(f"v_mul_f32 v{acc+i}, s{T4}, v{acc+i}")
    for i in range(8): A(f"v_cvt_pk_bf16_f32 v{acc+i}, v{acc+2*i}, v{acc+2*i+1}")
    A(f"s_lshl_b32 s{T3}, s{S_J}, 1")
    A(f"s_add_u32 s{T3}, s{T3}, s{S_CG}")
    A(f"s_lshl_b32 s{T3}, s{T3}, 11")
    A(f"s_mul_i32 s{T4}, s{S_RTG}, {QK_RT}")
    A(f"s_add_u32 s{T3}, s{T3}, s{T4}")
    for a, b in ((0, 2), (1, 3), (4, 6), (5, 7)):
        A(f"v_permlane32_swap_b32 v{acc+a}, v{acc+b}")
    STORES.append(A.vm(f"buffer_store_dwordx4 {vr(acc,4)}, v{V_L16}, {srd(SRD_WS)}, s{T3} offen sc1"))
    STORES.append(A.vm(f"buffer_store_dwordx4 {vr(acc+4,4)}, v{V_L16}, {srd(SRD_WS)}, s{T3} offen offset:1024 sc1"))

class Stream:
    def __init__(self, items, first, last, issue, lead):
        self.items, self.first, self.last, self.issue, self.lead = items, first, last, issue, lead
        self.tok = {}; self.dq = 0; self.chunk = -1; self.landed = -1
        self.rtok = {}; self.xtok = {}; self.fill = deque(); self.rate = OPT["fill"]; self.hooks = {}; self.extra = []
        self.credit = 1.0; self.pace = 1.0
    def free(self, n): return -1 if n < NSLOT else self.last(self.items[n - NSLOT]) + 1
    def slot(self, it): return (self.items.index(it) % NSLOT) * SLOT
    def dma(self, k=1, force=False):
        for _ in range(k):
            n, e = divmod(self.dq, 2)
            if n >= len(self.items):
                if self.extra: self.extra.pop(0)()
                continue
            it = self.items[n]
            av = self.free(n) if force else max(self.free(n), self.first(it) - self.lead(it))
            if av > self.chunk: return
            t = 0 if ("nofdma" in OPT["exp"] and it[0] == "F") else self.issue(it, (n % NSLOT) * SLOT, e)
            if e == 1: self.tok[n] = t
            self.dq += 1
    def paced(self):
        self.credit += self.pace
        if self.credit >= 1.0:
            before = (self.dq, len(self.extra))
            self.dma(1)
            self.credit = self.credit - 1.0 if (self.dq, len(self.extra)) != before else 1.0
    def drain(self, k):
        for _ in range(k):
            if not self.fill: break
            self.fill.popleft()()
    def barrier(self, ch, need, drain=True, also=0):
        while need not in self.tok:
            before = self.dq
            self.dma(1, force=True)
            assert self.dq != before, "item needed before its slot is free"
        A.vm_wait(max(self.tok[need], also), "lgkmcnt(0)" if drain else "")
        if drain: A.lg_all()
        A("s_barrier")
        self.chunk = ch; self.landed = need
    def need(self, ch):
        return max(n for n, it in enumerate(self.items) if self.first(it) <= ch)
    def hook(self, key):
        if key in self.hooks: self.hooks[key]()

def tag_hooks(tk):
    def issue():
        A(f"v_mov_b32 v{V_T+2}, 0")
        tk["tag"] = A.vm(f"buffer_load_dwordx2 {vr(V_T,2)}, v{V_T+2}, {srd(SRD_DBG)}, 0 offen sc1")
    def check():
        A.vm_wait(tk["tag"])
        A(f"v_readfirstlane_b32 s{S_TAG}, v{V_T}")
        A(f"v_readfirstlane_b32 s{S_TAG+1}, v{V_T+1}")
        ok = newlabel("tagok")
        A(f"s_cmp_lg_u32 s{S_TAG+1}, 0")
        A(f"s_cbranch_scc1 {ok}")
        get_tag_spin(V_T)
        A.label(ok)
        flag_prep(V_FL)
    return issue, check

R_ITEMS = []
for _c in range(7): R_ITEMS += [("X", _c)] + ([("Q", _c // 2)] if _c % 2 == 0 else []) + [("F", _c)]
R_ITEMS += [("F", v) for v in range(7, 14)]
def r_first(it): return 2 * it[1] if it[0] == "Q" else it[1]
def r_last(it):
    if it[0] == "F" and it[1] >= 7: return it[1] + 1
    return min(2 * it[1] + 1, 6) if it[0] == "Q" else it[1]
R_BARS = [c for c in range(8)] + [int(x) for x in str(OPT["fbars"]).split("_")]
def r_issue(it, slot, e):
    if it[0] == "X": return dma_x(slot, it[1], e)
    if it[0] == "Q":
        A(f"s_add_u32 m0, s{S_MX}, {slot + 1024*e}")
        A(f"s_mov_b32 s{T6}, {(128*it[1] + 8*e) * 2688}")
        return A.vm(f"buffer_load_dwordx4 v{V_Q}, {srd(SRD_QKV)}, s{T6} offen lds")
    pair, v = divmod(it[1], 7)
    A(f"s_add_u32 m0, s{S_MV}, {slot + 4096*e}")
    A(f"s_mov_b32 s{T6}, {(v*64 + 32*e) * 3584 + 128*pair}")
    return A.vm(f"buffer_load_dwordx4 v{V_F}, {srd(SRD_GU)}, s{T6} offen lds")

def reg_run(st, i0, i1):
    def fs(i): return (FS1 if i < 28 else FS2)[i % 3]
    for i in range(i0, i1):
        Ms = []
        if i >= 2:
            p2, gk2 = divmod(i - 2, 28)
            for t in range(3 if p2 == 0 else 2):
                def m(t=t, p2=p2, gk2=gk2):
                    acc = (ACCA, ACCA + 16, ACCQ)[t] if p2 == 0 else ACCB + 16 * t
                    c = "0" if gk2 == 0 else vr(acc, 16)
                    A.lg_wait(max(st.rtok[(i - 2, t)], st.xtok[gk2]))
                    A(f"v_mfma_f32_32x32x16_bf16 {vr(acc,16)}, {vr(fs(i-2) + 4*t, 4)}, {vr(XF + 4*gk2, 4)}, {c}")
                Ms.append(m)
        Rs = []
        def gap():
            st.paced(); st.drain(st.rate)
        if i < 56:
            p, gk = divmod(i, 28)
            ch, ks = divmod(i, 4)
            if ks == 0:
                if ch in R_BARS:
                    nxt = [c for c in R_BARS if c > ch]
                    if ch <= 7:
                        for _ in range(min(OPT["barm"], len(Ms))):
                            Ms.pop(0)(); gap()
                    st.barrier(ch, st.need(nxt[0] - 1) if nxt else len(R_ITEMS) - 1, drain=(ch <= 7),
                               also=STORES[1] if ch == OPT["qbar"] else 0)
                assert st.landed >= st.need(ch)
                SP = {0: 2, 1: 3, 3: 4, 5: 5, 7: 6, 8: 7, 10: 8, 13: 9}
                if ch in SP: stamp2(SP[ch])
                for t in range(2): A(f"v_xor_b32 v{V_VA+t}, {st.slot(('F', ch)) | (t << 5)}, v{V_TV}")
                if p == 0 and ch % 2 == 0: A(f"v_add_u32 v{V_VA+2}, {st.slot(('Q', ch // 2))}, v{V_TQ}")
                if ch == 7: st.pace = OPT["fpace"] / 100.0
                st.hook(ch)
            def R(t):
                row = 16 * (gk % 8 if t == 2 else ks)
                for a in range(2):
                    st.rtok[(i, t)] = A.lg(f"ds_read_b64_tr_b16 {vr(fs(i) + 4*t + 2*a, 2)}, v{V_VA+t} offset:{(row + 4*a) * 128}")
            def X():
                A(f"v_xor_b32 v{V_XA}, {st.slot(('X', ch)) | (ks << 5)}, v{V_XB}")
                st.xtok[gk] = A.lg(f"ds_read_b128 {vr(XF + 4*gk, 4)}, v{V_XA}")
            Rs = [lambda: (X(), R(0)), lambda: R(1), lambda: R(2)] if p == 0 else [lambda: R(0), lambda: R(1)]
        st.hook(("before", i))
        k = max(len(Ms), 1)
        per = -(-len(Rs) // k)
        for j in range(k):
            if j < len(Ms): Ms[j]()
            for r in Rs[j * per:(j + 1) * per]: r()
            if j < len(Ms): gap()
        if i < 2: st.dma(2)
        st.hook(("after", i))

def wg_flag(col):
    A(f"s_lshl_b32 s{T3}, s{S_RB}, 4")
    A(f"s_add_u32 s{T3}, s{T3}, s{col}")
    A(f"s_lshl_b32 s{T3}, s{T3}, 7")
    A(f"s_lshl_b32 s{T4}, s{S_W}, 24")
    A(f"s_add_u32 s{T3}, s{T3}, s{T4}")
    A(f"s_add_u32 s{T3}, s{T3}, {WS_FQ}")
    flag_put(T3, V_FL)

def reg_common(st):
    tk = {}
    issue, check = tag_hooks(tk)
    def epi():
        stamp(1)
        st.rate = OPT["qrate"]
        st.fill.extend(capture(lambda: qk_tile(ACCQ)))
        def slow(): st.rate = OPT["fill"]
        st.fill.append(slow)
        if "nogelu" in OPT["exp"]: return
        for t in range(2): st.fill.extend(gelu_tile(ACCA + 16 * t, t, TMP8))
    def qflag():
        wg_flag(S_J)
        stamp(7)
    def wtouch():
        A(f"s_sub_u32 s{T0}, s2, 32")
        A(f"s_lshl_b32 s{T0}, s{T0}, 13")
        A(f"v_lshlrev_b32 v{V_T+4}, 7, v1")
        A(f"s_cmp_eq_u32 s{S_W}, 3")
        A(f"s_cselect_b32 s{T1}, s{T0}, 0x10000000")
        A.vm(f"buffer_load_dword v{V_G}, v{V_T+4}, {srd(SRD_WD)}, s{T1} offen")
        A(f"s_cmp_eq_u32 s{S_W}, 7")
        A(f"s_cselect_b32 s{T1}, s{T0}, 0x10000000")
        A.vm(f"buffer_load_dword v{V_G}, v{V_T+4}, {srd(SRD_WO)}, s{T1} offen")
    st.hooks = {1: cnt_init, OPT["wdch"]: wtouch, 3: issue, 5: check, ("after", 29): epi, OPT["qbar"]: qflag}
    st.pace = OPT["p1pace"] / 100.0
    reg_run(st, 0, OPT["split"])
    assert st.dq == 2 * len(R_ITEMS) and OPT["split"] > 4 * R_BARS[-1] and R_BARS[-1] >= 10 and OPT["qbar"] in R_BARS

def hflag_off(dst, cg):
    A(f"s_lshl_b32 s{dst}, s{S_RTG}, 4")
    A(f"s_add_u32 s{dst}, s{dst}, s{S_J}")
    A(f"s_lshl_b32 s{dst}, s{dst}, 8")
    A(f"s_add_u32 s{dst}, s{dst}, {WS_FH + 128*cg}")

def interleave(a, b, every, start=0):
    out = []; b = list(b)
    for k, f in enumerate(a):
        out.append(f)
        if b and k >= start and (k + 1 - start) % every == 0: out.append(b.pop(0))
    return out, b

def o_arm_stores(tmp):
    for i in range(4): A(f"v_mov_b32 v{tmp+i}, -1")
    for ks in range(2):
        t = A.vm(f"buffer_store_dwordx4 {vr(tmp,4)}, v{V_L16}, {srd(SRD_WS)}, s{S_OOFF} offen offset:{1024*ks} sc1")
    return t

def o_arm_flag():
    A(f"s_sub_u32 s{T3}, s{S_OOFF}, {WS_O}")
    A(f"s_lshr_b32 s{T3}, s{T3}, 4")
    A(f"s_add_u32 s{T3}, s{T3}, {WS_FO}")
    flag_put(T3, V_FL)

def snapshot(st): return (copy.copy(st.fill), A.vm_issued, A.lg_issued, A.lg_done, list(STORES), dict(st.rtok))
def restore(st, sn):
    global STORES
    st.fill = copy.copy(sn[0]); A.vm_issued, A.lg_issued, A.lg_done = sn[1:4]; STORES[:] = sn[4]; st.rtok = dict(sn[5])
    st.rate = OPT["fill"]; st.extra = []; st.credit = 1.0

def roleA_tail(st):
    tk = {}
    attn_setup()
    tk["arm"] = o_arm_stores(VB)
    for i in range(32): st.fill.append(lambda i=i: A(f"v_mov_b32 v{VB+i}, v4"))
    def pl(): return A.vm(f"buffer_load_dwordx2 {vr(V_T,2)}, v2, {srd(SRD_WS)}, 0 offen sc1")
    def pissue(): tk["p"] = pl()
    st.hooks = {("before", OPT["apoll"]): pissue, ("before", 57): lambda: cnt_add(4, V_VA, V_VA + 1)}
    reg_run(st, OPT["split"], 58)
    st.drain(10 ** 6)
    stamp(2)
    if "stopA" in OPT["exp"]:
        prof_dump(2); A("s_endpgm")
    hflag_off(S_HF, 0)
    A.vm_wait(tk["p"])
    o_arm_flag()
    A(f"v_cmp_ne_u64 vcc, s[{S_TAG}:{S_TAG+1}], {vr(V_T,2)}")
    A("s_cbranch_vccnz L_attn_miss")
    stamp(3)
    g = gelu_tile(ACCB, 4, TMP8) + gelu_tile(ACCB + 16, 5, TMP8)
    g2, left = interleave(g[:-1], attn_load_list(), 6)
    for f in g2 + left + g[-1:]: f()
    A("s_branch L_attn")
    A.label("L_attn_miss")
    A("s_nop 2")
    for f in gelu_tile(ACCB, 4, TMP8): f()
    pl()
    for f in gelu_tile(ACCB + 16, 5, TMP8): f()
    stamp(8)
    A("s_waitcnt vmcnt(1)")
    A(f"v_cmp_ne_u64 vcc, s[{S_TAG}:{S_TAG+1}], {vr(V_T,2)}")
    A("s_cbranch_vccz L_attn_go")
    A.label("L_attn_late")
    poll(2, V_T, sleep=4)
    A.label("L_attn_go")
    stamp(9)
    for f in attn_load_list(): f()

def roleG_tail(st):
    phaseC_dma_setup()
    st.extra = [lambda p=p, e=e: cW1(p, e) for p in range(OPT["cearly"]) for e in range(2)]
    st.pace = OPT["cpace"] / 100.0
    st.fill.extend(capture(phaseC_setup))
    st.hooks = {("before", 57): lambda: cnt_add(4, V_VA, V_VA + 1)}
    if OPT["gprio"]: st.hooks[("before", OPT["gpslot"])] = lambda: A(f"s_setprio {OPT['gprio']}")
    reg_run(st, OPT["split"], 58)
    st.drain(10 ** 6)
    stamp(2)
    for t in range(2):
        for f in gelu_tile(ACCB + 16 * t, 4 + t, TMP8): f()
    if "stopA" in OPT["exp"]:
        prof_dump(2); A("s_endpgm")
    if OPT["gprio"]: A("s_setprio 0")
    for p in range(OPT["cpre"]): cW(p)
    hflag_off(T3, 1)
    A.vm_wait(STORES[-1])
    flag_put(T3, V_FL)
    stamp(3)
    for p in range(OPT["cpre"], 9): cW(p)
    cnt_wait(4, 8, V_T, V_T + 1)
    for p in range(9, RING_N): cW(p)

V_ITEMS = []
for _c in range(7): V_ITEMS += [("X", _c), ("W", 2 * _c), ("W", 2 * _c + 1)]
def vv_first(it): return 2 * it[1] if it[0] == "X" else it[1]
def vv_issue(it, slot, e):
    if it[0] == "X": return dma_x(slot, it[1], e)
    A(f"s_add_u32 m0, s{S_MX}, {slot + 1024*e}")
    A(f"s_mov_b32 s{T6}, {it[1]*32*2688}")
    return A.vm(f"buffer_load_dwordx4 v{V_Q+e}, {srd(SRD_QKV)}, s{T6} offen lds")
VTB, VVA = 248, 252
S_G8 = 49

def v_lane(dst):
    A(f"v_lshrrev_b32 v{dst}, 5, v1")
    A(f"v_mul_u32_u24 v{dst}, {7168 - 512}, v{dst}")
    A(f"v_add_u32 v{dst}, v{dst}, v{V_L16}")

def v_prologue():
    t0, t1, t2, t3 = V_T, V_T + 1, V_T + 2, V_T + 3
    A(f"s_and_b32 s{T5}, s{S_XCD}, 1")
    A(f"v_lshrrev_b32 v{t0}, 5, v1")
    A(f"s_lshl_b32 s{T1}, s{S_W}, 2")
    A(f"v_add_u32 v{t1}, s{T1}, v{t0}")
    A(f"v_mul_u32_u24 v{t1}, 2688, v{t1}")
    A(f"v_bfe_u32 v{t2}, v1, 1, 4")
    A(f"v_lshlrev_b32 v{t0}, 1, v{t0}")
    A(f"v_xor_b32 v{t2}, v{t2}, v{t0}")
    A(f"v_lshl_add_u32 v{t1}, v{t2}, 5, v{t1}")
    A(f"v_and_b32 v{t3}, 1, v1")
    A(f"v_lshl_add_u32 v{t1}, v{t3}, 4, v{t1}")
    A(f"v_xor_b32 v{t2}, 4, v{t2}")
    A(f"v_lshlrev_b32 v{t0}, 5, v{t2}")
    A(f"v_xor_b32 v{t2}, 4, v{t2}")
    A(f"v_lshlrev_b32 v{t2}, 5, v{t2}")
    A(f"v_sub_u32 v{t0}, v{t0}, v{t2}")
    A(f"s_mul_i32 s{T1}, s{T5}, 384")
    A(f"s_add_u32 s{T1}, s{T1}, 1792")
    A(f"v_add_u32 v{V_Q}, s{T1}, v{t1}")
    A(f"v_add_u32 v{V_Q+1}, v{V_Q}, v{t0}")
    A(f"v_add_u32 v{V_Q+1}, {2*2688}, v{V_Q+1}")
    A("s_waitcnt lgkmcnt(0)")
    mk_srd(SRD_X, 72, 2048 * 896)
    mk_srd(SRD_QKV, 74, 448 * 2688)

def v_run(st, n):
    def xreg(gk): return XF + 4 * gk
    for i in range(30):
        Ms = []
        if i >= 2:
            for t in range(n):
                def m(t=t, gk=i - 2):
                    acc = VACC + 16 * t
                    c = "0" if gk == 0 else vr(acc, 16)
                    A.lg_wait(max(st.rtok[(gk, t)], st.xtok[gk]))
                    x = vr(xreg(gk), 4); w = vr(VFS + 16 * (gk % 3) + 4 * t, 4)
                    A(f"v_mfma_f32_32x32x16_bf16 {vr(acc,16)}, {x}, {w}, {c}")
                Ms.append(m)
        def gap():
            st.paced(); st.drain(st.rate)
        Rs = []
        ch, ks = divmod(i, 2)
        if i <= 28 and ks == 0:
            if ch >= 2 and ch % 2 == 0: A.lg_wait(st.xtok[2 * ch - 1])
            st.barrier(ch, st.need(min(ch, 13)), drain=(ch == 14))
            if i < 28:
                for t in range(n): A(f"v_add_u32 v{VVA+t}, {st.slot(('W', ch))}, v{VTB+t}")
            st.hook(ch)
        if i < 28:
            def R(t):
                for a in range(2):
                    st.rtok[(i, t)] = A.lg(f"ds_read_b64_tr_b16 {vr(VFS + 16*(i % 3) + 4*t + 2*a, 2)}, v{VVA+t} offset:{(16*ks + 4*a) * 512}")
            def X(gk):
                A(f"v_xor_b32 v{V_XA}, {st.slot(('X', gk // 4)) | ((gk & 3) << 5)}, v{V_XB}")
                st.xtok[gk] = A.lg(f"ds_read_b128 {vr(xreg(gk), 4)}, v{V_XA}")
            Rs = [lambda t=t: R(t) for t in range(n)]
            if ch % 2 == 0:
                if ks == 0: Rs = [lambda: X(i)] + Rs + [lambda: X(i + 1)]
                else: Rs = [lambda: X(i + 1), lambda: X(i + 2)] + Rs
        k = max(len(Ms), 1)
        per = -(-len(Rs) // k)
        for j in range(k):
            if j < len(Ms): Ms[j]()
            for r in Rs[j * per:(j + 1) * per]: r()
            if j < len(Ms): gap()
        if i < 2: st.dma(2)

def v_path():
    global STORES
    A.vm_issued = 1 if OPT["codepf"] else 0
    v_prologue()
    st0 = Stream(V_ITEMS, vv_first, lambda it: vv_first(it) + 1, vv_issue, lambda it: OPT["vlead"])
    mk_srd(SRD_GW, 86, 896)
    A(f"v_lshlrev_b32 v{V_L16}, 4, v1")
    A(f"s_mov_b32 m0, {LDS_GW}")
    A.vm(f"buffer_load_dwordx4 v{V_L16}, {srd(SRD_GW)}, 0 offen lds")
    st0.dma(4, force=True)
    A("s_barrier")
    st0.dma(6, force=True)
    prologue2()
    A(f"s_or_b32 s{S_G8}, s2, s{S_W}")
    A(f"s_memrealtime s[{S_TAG}:{S_TAG+1}]")
    A("s_waitcnt lgkmcnt(0)")
    A(f"s_or_b32 s{S_TAG+1}, s{S_TAG+1}, 0x80000000")
    flag_prep(V_FL)
    A(f"s_cmp_eq_u32 s{S_G8}, 0")
    A(f"s_cselect_b32 s{T1}, 0, 0x1000")
    A("s_mov_b64 exec, 0xffff")
    A.vm(f"buffer_store_dwordx2 {vr(V_FL,2)}, v{V_FL+2}, {srd(SRD_DBG)}, s{T1} offen sc1")
    A("s_mov_b64 exec, -1")
    lane_fields()
    hf, g16, r, c4, u0, u1 = V_T, V_T + 1, V_T + 2, V_T + 3, V_T + 4, V_T + 5
    A(f"v_lshlrev_b32 v{V_GA}, 4, v{hf}")
    A(f"v_add_u32 v{V_GA}, {LDS_GW}, v{V_GA}")
    A(f"v_lshlrev_b32 v{u0}, 9, v{u0}")
    A(f"v_lshl_add_u32 v{u0}, v{c4}, 3, v{u0}")
    A(f"v_lshlrev_b32 v{u1}, 1, v{r}")
    A(f"v_xor_b32 v{u1}, v{u1}, v{g16}")
    A(f"v_lshl_add_u32 v{u0}, v{u1}, 5, v{u0}")
    A(f"s_lshl_b32 s{T1}, s{S_CG}, 2")
    A(f"s_mul_i32 s{S_J}, s{T5}, 7")
    A(f"s_add_u32 s{S_J}, s{S_J}, s{T1}")
    A(f"s_add_u32 s{T1}, s{T1}, s{T5}")
    for t in range(4):
        A(f"s_add_u32 s{T2}, s{T1}, {t}")
        A(f"s_lshl_b32 s{T2}, s{T2}, 6")
        A(f"v_xor_b32 v{VTB+t}, s{T2}, v{u0}")
    vm0 = A.vm_issued
    A(f"s_cmp_ge_u32 s{S_W}, 4")
    A("s_cbranch_scc1 L_v_hi")
    for n in (4, 3):
        if n == 3: A.label("L_v_hi")
        st = copy.deepcopy(st0); STORES = []
        A.vm_issued = vm0; A.lg_issued = 0; A.lg_done = 0
        tk = {}
        issue, check = tag_hooks(tk)
        st.hooks = {1: lambda: cnt_init(8), 6: issue, 10: check}
        st.pace = OPT["vpace"] / (20.0 * n)
        v_lane(15)
        v_run(st, n)
        assert not st.fill
        stamp(1)
        A(f"s_mul_i32 s{T3}, s{S_RTG}, {VT_KT}")
        A(f"s_lshl_b32 s{T4}, s{S_J}, 9")
        A(f"s_add_u32 s{T3}, s{T3}, s{T4}")
        A(f"s_add_u32 s{T3}, s{T3}, {WS_VT}")
        A(f"s_add_u32 s{T4}, s{T3}, {2*7168}")
        for t in range(n):
            acc = VACC + 16 * t
            for i in range(8): A(f"v_cvt_pk_bf16_f32 v{acc+i}, v{acc+2*i}, v{acc+2*i+1}")
            A.vm(f"buffer_store_dwordx4 {vr(acc,4)}, v15, {srd(SRD_WS)}, s{T3} offen offset:{512*t} sc1")
            vs = A.vm(f"buffer_store_dwordx4 {vr(acc+4,4)}, v15, {srd(SRD_WS)}, s{T4} offen offset:{512*t} sc1")
        def vflag():
            A.vm_wait(vs)
            A("s_barrier")
            A(f"s_add_u32 s{T7}, s{T5}, 14")
            wg_flag(T7)
            stamp(7)
        if n == 4:
            if "stopA" in OPT["exp"]:
                vflag(); A("s_endpgm")
            vflag()
            attn_setup()
            o_arm_stores(VB)
            for i in range(32): A(f"v_mov_b32 v{VB+i}, v4")
            A("s_waitcnt vmcnt(0)")
            o_arm_flag()
            A(f"s_mov_b32 s{S_HF}, 0")
            stamp(3)
            A("s_branch L_attn_late")
        else:
            a = VACC + 48
            for blk in range(7):
                for q in range(4): A(f"ds_read_b128 {vr(VFS + 16*(blk & 1) + 4*q, 4)}, v{V_GA} offset:{32*(4*blk + q)}")
                A("s_waitcnt lgkmcnt(0)")
                for q in range(4):
                    c = "0" if blk + q == 0 else vr(a, 16)
                    A(f"v_mfma_f32_32x32x16_bf16 {vr(a,16)}, {vr(VFS + 16*(blk & 1) + 4*q, 4)}, {vr(XF + 4*(4*blk + q), 4)}, {c}")
                if blk == 3: vflag()
            A(f"v_mul_f32 v{a}, {f32(-LOG2E)}, v{a}")
            A(f"v_exp_f32 v{a}, v{a}")
            A(f"s_lshl_b32 s{T1}, s{T5}, 24")
            A(f"s_lshl_b32 s{T2}, s{S_RTG}, 7")
            A(f"s_add_u32 s{T2}, s{T1}, s{T2}")
            A(f"s_add_u32 s{T2}, s{T2}, {WS_G}")
            A(f"v_add_f32 v{a}, 1.0, v{a}")
            A(f"v_rcp_f32 v{a}, v{a}")
            A(f"buffer_store_dword v{a}, v{V_R4}, {srd(SRD_WS)}, s{T2} offen sc1")
            A(f"s_lshl_b32 s{T2}, s{S_RTG}, 12")
            A(f"s_add_u32 s{T2}, s{T1}, s{T2}")
            A(f"s_add_u32 s{T2}, s{T2}, {WS_FH + 28*128}")
            A("s_waitcnt vmcnt(0)")
            flag_put(T2, V_FL)
            A("s_endpgm")

def attn_setup():
    h = S_HEAD
    A(f"s_mul_i32 s{S_C0}, s{h}, 7")
    A(f"s_lshr_b32 s{S_C0}, s{S_C0}, 1")
    A(f"s_lshr_b32 s{T0}, s{S_C0}, 3")
    A(f"s_add_u32 s{T1}, s{S_C0}, 3")
    A(f"s_lshr_b32 s{T1}, s{T1}, 3")
    A(f"s_lshl_b32 s{T1}, s{T1}, 8")
    A(f"s_or_b32 s{T6}, s{T0}, s{T1}")
    A(f"s_lshr_b32 s{T0}, s{h}, 3")
    A(f"s_mul_i32 s{T0}, s{T0}, 0x01010000")
    A(f"s_or_b32 s{S_KVJ}, s{T0}, s{T6}")
    A(f"s_add_u32 s{S_KVJ}, s{S_KVJ}, 0x0e0e0707")
    A(f"s_mul_i32 s{T6}, s{T6}, 0x10001")
    A("v_bfe_u32 v2, v1, 2, 2")
    A("v_lshlrev_b32 v2, 3, v2")
    A(f"v_lshrrev_b32 v3, v2, s{S_KVJ}")
    A(f"v_lshrrev_b32 v2, v2, s{T6}")
    A("v_and_b32 v4, 3, v1")
    A(f"s_lshl_b32 s{T0}, s{S_W}, 2")
    A(f"v_add_u32 v4, s{T0}, v4")
    A(f"v_mov_b32 v5, s{S_QB}")
    A("v_cmp_le_u32 vcc, 32, v1")
    A("v_cndmask_b32 v2, v3, v2, vcc")
    A("v_cndmask_b32 v4, v4, v5, vcc")
    A("v_and_b32 v2, 0xff, v2")
    A("v_lshl_add_u32 v2, v4, 4, v2")
    A("v_lshlrev_b32 v2, 7, v2")
    A(f"v_add_u32 v2, {WS_FQ}, v2")
    A(f"s_lshl_b32 s{T0}, s{S_QB}, 2")
    A(f"s_add_u32 s{S_QRT}, s{T0}, s{S_W}")
    A("v_and_b32 v5, 31, v1")
    A("v_cmp_eq_u32 vcc, 28, v5")
    A("v_mov_b32 v4, 0x3f803f80")
    A("v_cndmask_b32 v4, 0, v4, vcc")
    A("v_lshlrev_b32 v5, 2, v5")
    A(f"s_mov_b32 s{S_VMASK}, 0x0fffffff")
    A(f"s_mov_b32 s{S_VMASK+1}, 0x0fffffff")
    A(f"s_lshl_b32 s{T1}, s{S_C0}, 9")
    A(f"s_mul_i32 s{S_KOFF}, s{S_W}, {16*QK_RT}")
    A(f"s_add_u32 s{S_KOFF}, s{S_KOFF}, s{T1}")
    A(f"s_add_u32 s{S_KOFF}, s{S_KOFF}, {56*512}")
    A(f"s_mul_i32 s{S_VOFF}, s{h}, 448")
    A(f"s_mul_i32 s{T2}, s{S_W}, {16*VT_KT}")
    A(f"s_add_u32 s{S_VOFF}, s{S_VOFF}, s{T2}")
    A(f"s_add_u32 s{S_VOFF}, s{S_VOFF}, {WS_VT}")
    v_lane(3)
    A(f"v_add_u32 v{V_T+5}, {2*7168}, v3")
    A(f"s_mul_i32 s{S_QOFF}, s{S_QB}, {4*QK_RT}")
    A(f"s_add_u32 s{S_QOFF}, s{S_QOFF}, s{T1}")
    A(f"s_lshl_b32 s{T0}, s{S_QRT}, 4")
    A(f"s_add_u32 s{T0}, s{T0}, s{h}")
    A(f"s_lshl_b32 s{S_OOFF}, s{T0}, 11")
    A(f"s_add_u32 s{S_OOFF}, s{S_OOFF}, {WS_O}")
    for i in range(4):
        A(f"s_add_u32 s{T0}, s{S_W}, {i+1}")
        A(f"s_and_b32 s{T0}, s{T0}, 3")
        A(f"s_mul_i32 s{T0}, s{T0}, 12288")
        A(f"s_add_u32 s{T0}, s{T0}, {LDS_AR + (4096*i if i < 3 else 0)}")
        A(f"v_add_u32 v{(6, 7, 8, 15)[i]}, s{T0}, v{V_L16}")

def loadK1(buf, ks):
    A(f"buffer_load_dwordx4 {vr(KBS[buf]+4*ks,4)}, v{V_L16}, {srd(SRD_WS)}, s{S_KOFF} offen offset:{1024*ks} sc1")
    if ks == 1: A(f"s_add_u32 s{S_KOFF}, s{S_KOFF}, {QK_RT}")
def loadK(buf):
    loadK1(buf, 0); loadK1(buf, 1)
def loadV(buf):
    A(f"s_mov_b64 exec, s[{S_VMASK}:{S_VMASK+1}]")
    for ks in range(2):
        A(f"buffer_load_dwordx4 {vr(VB+8*buf+4*ks,4)}, v{(3, V_T+5)[ks]}, {srd(SRD_WS)}, s{S_VOFF} offen sc1")
    A("s_mov_b64 exec, -1")
    A(f"s_add_u32 s{S_VOFF}, s{S_VOFF}, {VT_KT}")

def attn_load_list():
    L = []
    for i in range(4):
        for ks in range(2):
            def q(i=i, ks=ks):
                A(f"s_add_u32 s{T0}, s{S_W}, {i+1}")
                A(f"s_and_b32 s{T0}, s{T0}, 3")
                A(f"s_mul_i32 s{T0}, s{T0}, {QK_RT}")
                A(f"s_add_u32 s{T0}, s{T0}, s{S_QOFF}")
                A(f"buffer_load_dwordx4 {vr(QF+8*i+4*ks,4)}, v{V_L16}, {srd(SRD_WS)}, s{T0} offen offset:{1024*ks} sc1")
            L.append(q)
    for b in range(4):
        L.append(lambda b=b: loadK1(b, 0)); L.append(lambda b=b: loadK1(b, 1))
        if b < 3: L.append(lambda b=b: loadV(b))
    return L

def attention():
    h = S_HEAD
    OWN = OAS[3]
    A.label("L_attn")
    if OPT["prio"]: A(f"s_setprio {OPT['prio']}")
    for i in range(4): A(f"v_mov_b32 v{PB+4+i}, 0")
    A(f"v_mov_b32 v10, {LDS_CNT}")
    A("v_mov_b32 v11, 1")
    A(f"v_mov_b32 v{V_T}, 0")
    A(f"v_mov_b32 v{V_T+1}, 0")
    A(f"s_lshl_b32 s{T0}, s{S_QRT}, 12")
    A(f"s_add_u32 s{T0}, s{T0}, {WS_FH + 28*128}")
    A(f"v_mov_b32 v2, s{T0}")
    A(f"s_lshl_b32 s{S_QOFF}, s{S_QRT}, 7")
    A(f"s_add_u32 s{S_QOFF}, s{S_QOFF}, {WS_G}")
    A(f"s_mov_b32 s{S_OK}, 0")
    for b in OAS:
        A(f"v_mfma_f32_32x32x16_bf16 {vr(b,16)}, {vr(PB+4,4)}, {vr(PB+4,4)}, 0")
    A("s_waitcnt vmcnt(12)")
    stamp(4)
    ev = newlabel("qeven"); dn = newlabel("qdone")
    A(f"s_and_b32 s{T0}, s{h}, 1")
    A(f"s_cmp_eq_u32 s{T0}, 0")
    A(f"s_cbranch_scc1 {ev}")
    A("s_mov_b32 exec_hi, 0")
    for qt in range(4):
        A(f"v_mov_b32 v{QF+8*qt}, 0"); A(f"v_mov_b32 v{QF+8*qt+1}, 0")
    A(f"s_branch {dn}")
    A.label(ev)
    A("s_mov_b32 exec_lo, 0")
    for qt in range(4):
        A(f"v_mov_b32 v{QF+8*qt+6}, 0"); A(f"v_mov_b32 v{QF+8*qt+7}, 0")
    A.label(dn)
    A("s_mov_b64 exec, -1")
    A("s_nop 1")
    def qk(buf, qt, sb, ks):
        c = "0" if ks == 0 else vr(SB + 16 * sb, 16)
        A(f"v_mfma_f32_32x32x16_bf16 {vr(SB+16*sb,16)}, {vr(KBS[buf]+4*ks,4)}, {vr(QF+8*qt+4*ks,4)}, {c}")
    def pv(buf, qt, ks):
        A(f"v_mfma_f32_32x32x16_bf16 {vr(OAS[qt],16)}, {vr(VB+8*buf+4*ks,4)}, {vr(PB+4*ks,4)}, {vr(OAS[qt],16)}")
    qk(0, 0, 0, 0); qk(0, 0, 0, 1)
    A(f"s_mov_b32 s{S_IT}, {3 if 'short' in OPT['exp'] else 0}")
    A("s_nop 7")
    A("s_nop 2")
    A.label("L_attn_loop")
    for tt in range(4):
        for qt in range(4):
            u = 4 * tt + qt
            s = SB + 16 * (u & 1)
            nb, nq = (tt, qt + 1) if qt < 3 else ((tt + 1) & 3, 0)
            pb_, pq = (tt, qt - 1) if qt > 0 else ((tt - 1) & 3, 3)
            E = lambda i: A(f"v_exp_f32 v{s+i}, v{s+i}")
            C = lambda i: A(f"v_cvt_pk_bf16_f32 v{PB+i}, v{s+2*i}, v{s+2*i+1}")
            if qt == 3:
                A("s_waitcnt vmcnt(10)")
            qk(nb, nq, (u + 1) & 1, 0)
            E(0); E(1); E(2)
            qk(nb, nq, (u + 1) & 1, 1)
            E(3); E(4); E(5)
            if qt == 3:
                if tt == 0:
                    A(f"s_cmp_eq_u32 s{S_IT}, 3")
                    A(f"s_cselect_b32 s{S_KOFF}, {WS_SIZE}, s{S_KOFF}")
                    A(f"s_cselect_b32 s{S_VOFF}, {WS_SIZE}, s{S_VOFF}")
                if tt == 2: A(f"ds_read_b32 v{V_T+4}, v10 offset:4")
                if OPT["hold"] < 28: A("ds_add_u32 v10, v11 offset:8")
                loadK(tt)
            if qt == 0 and tt == 1:
                sk = newlabel("hf")
                A(f"s_cmp_eq_u32 s{S_HF}, 0")
                A(f"s_cbranch_scc1 {sk}")
                A("s_waitcnt vmcnt(4)")
                flag_put(S_HF, V_FL)
                A(f"s_mov_b32 s{S_HF}, 0")
                A.label(sk)
            if qt == 1 and tt == 2:
                sk = newlabel("gf")
                A(f"v_cmp_ne_u64 vcc, s[{S_TAG}:{S_TAG+1}], {vr(V_T,2)}")
                A(f"s_cbranch_vccnz {sk}")
                A(f"buffer_load_dword v{V_G}, v5, {srd(SRD_WS)}, s{S_QOFF} offen sc1")
                A(f"s_mov_b32 s{S_OK}, 1")
                A.label(sk)
                A(f"buffer_load_dwordx2 {vr(V_T,2)}, v2, {srd(SRD_WS)}, 0 offen sc1")
            E(6); E(7); C(0); C(1); C(2); C(3)
            pv(pb_, pq, 1)
            E(8); E(9); E(10)
            if qt == 0: A("s_waitcnt vmcnt(10)")
            pv(tt, qt, 0)
            E(11); E(12); E(13)
            if qt == 0: loadV((tt - 1) & 3)
            E(14); E(15); C(4); C(5); C(6); C(7)
    A(f"s_add_u32 s{S_IT}, s{S_IT}, 1")
    A(f"s_cmp_lt_u32 s{S_IT}, 4")
    A("s_cbranch_scc1 L_attn_loop")
    pv(3, 3, 1)
    stamp(5)
    okc = newlabel("ringok")
    A("s_waitcnt lgkmcnt(0)")
    A(f"v_readfirstlane_b32 s{T0}, v{V_T+4}")
    A(f"s_cmp_ge_u32 s{T0}, 8")
    A(f"s_cbranch_scc1 {okc}")
    cnt_wait(4, 8, V_T + 4, V_T + 3)
    A.label(okc)
    okg = newlabel("gok")
    A(f"s_cmp_eq_u32 s{S_OK}, 1")
    A(f"s_cbranch_scc1 {okg}")
    poll(2, V_T)
    A(f"buffer_load_dword v{V_G}, v5, {srd(SRD_WS)}, s{S_QOFF} offen sc1")
    A.label(okg)
    for i in range(3):
        for q in range(4):
            A(f"ds_write_b128 v{6+i}, {vr(OAS[i]+4*q,4)} offset:{1024*q}")
    A("s_waitcnt lgkmcnt(0)")
    A("s_mov_b64 exec, 1")
    A("ds_add_u32 v10, v11")
    A("s_mov_b64 exec, -1")
    L = newlabel("cnt"); D = newlabel("cntd")
    A(f"s_mov_b32 s{S_CNT}, 0x100000")
    A.label(L)
    A("ds_read_b32 v11, v10")
    A("s_waitcnt lgkmcnt(0)")
    A(f"v_readfirstlane_b32 s{T0}, v11")
    A(f"s_cmp_ge_u32 s{T0}, 4")
    A(f"s_cbranch_scc1 {D}")
    A(f"s_sub_u32 s{S_CNT}, s{S_CNT}, 1")
    A(f"s_cmp_lg_u32 s{S_CNT}, 0")
    A(f"s_cbranch_scc1 {L}")
    A.label(D)
    for k in range(12):
        A(f"ds_read_b128 {vr(OAS[k // 4]+4*(k % 4),4)}, v15 offset:{1024*k}")
    A(f"s_mov_b32 s{T0}, {f32(2.0**-64)}")
    A(f"s_mov_b32 s{T1}, {f32(2.0**64)}")
    for p in range(3):
        A(f"s_waitcnt lgkmcnt({8-4*p})")
        for i in range(16): A(f"v_add_f32 v{OWN+i}, v{OWN+i}, v{OAS[p]+i}")
    A(f"v_mov_b32 v2, v{OWN+12}")
    A(f"v_mov_b32 v9, v{OWN+12}")
    A("v_permlane32_swap_b32 v2, v9")
    A(f"v_cmp_le_f32 vcc, s{T0}, v9")
    A(f"v_cmp_ge_f32 s[{T2}:{T3}], s{T1}, v9")
    A(f"s_and_b64 s[{T2}:{T3}], s[{T2}:{T3}], vcc")
    A(f"s_cmp_eq_u64 s[{T2}:{T3}], -1")
    if OPT["force_slow"]:
        A("s_branch L_slow")
    else:
        A("s_cbranch_scc0 L_slow")
    A.label("L_ofin")
    A("s_waitcnt vmcnt(0)")
    A("v_rcp_f32 v9, v9")
    A(f"v_mul_f32 v9, v9, v{V_G}")
    for half in range(2):
        for i in range(8): A(f"v_mul_f32 v{OWN+8*half+i}, v{OWN+8*half+i}, v9")
        for i in range(4): A(f"v_cvt_pk_bf16_f32 v{PB+4*half+i}, v{OWN+8*half+2*i}, v{OWN+8*half+2*i+1}")
        if half:
            A("s_mov_b32 exec_lo, 0")
            A(f"v_mov_b32 v{PB+6}, 0")
            A(f"v_mov_b32 v{PB+7}, 0")
            A("s_mov_b64 exec, -1")
        for i in range(4): A(f"v_min_u32 v{PB+4*half+i}, -2, v{PB+4*half+i}")
        A(f"buffer_store_dwordx4 {vr(PB+4*half,4)}, v{V_L16}, {srd(SRD_WS)}, s{S_OOFF} offen offset:{1024*half} sc1")
    if OPT["owait"]:
        A("v_mov_b32 v11, 1")
        if OPT["owait"] == 2: A("s_waitcnt vmcnt(0)")
        A("s_mov_b64 exec, 1")
        A("ds_add_u32 v10, v11 offset:12")
        A("s_mov_b64 exec, -1")
    stamp(6)
    prof_dump(2)
    A("s_endpgm")

def attention_slow():
    h = S_HEAD
    OWN = OAS[3]
    A.label("L_slow")
    A("v_lshrrev_b32 v2, 4, v1")
    A("v_lshlrev_b32 v2, 3, v2")
    A(f"v_lshrrev_b32 v2, v2, s{S_KVJ}")
    A("v_and_b32 v2, 0xff, v2")
    A("v_and_b32 v4, 15, v1")
    A("v_lshl_add_u32 v2, v4, 4, v2")
    A("v_lshlrev_b32 v2, 7, v2")
    A(f"v_add_u32 v2, {WS_FQ}, v2")
    poll(2, V_T)
    SQ = QF + 24
    SS = SB
    for i in range(16): A(f"v_mov_b32 v{OWN+i}, 0")
    A(f"v_mov_b32 v4, {f32(-3.0e38)}")
    A(f"s_lshl_b32 s{S_KOFF}, s{S_C0}, 9")
    A(f"s_add_u32 s{S_KOFF}, s{S_KOFF}, {56*512}")
    A(f"s_mul_i32 s{S_VOFF}, s{h}, 448")
    A(f"s_add_u32 s{S_VOFF}, s{S_VOFF}, {WS_VT}")
    A(f"s_mov_b32 s{S_IT}, 0")
    A.label("L_slow_loop")
    loadK(0); loadV(0)
    A("s_waitcnt vmcnt(0)")
    A(f"v_mfma_f32_32x32x16_bf16 {vr(SS,16)}, {vr(KBS[0],4)}, {vr(SQ,4)}, 0")
    A(f"v_mfma_f32_32x32x16_bf16 {vr(SS,16)}, {vr(KBS[0]+4,4)}, {vr(SQ+4,4)}, {vr(SS,16)}")
    A(f"v_max3_f32 v5, v{SS}, v{SS+1}, v4")
    for i in range(1, 8): A(f"v_max3_f32 v5, v{SS+2*i}, v{SS+2*i+1}, v5")
    A("v_mov_b32 v6, v5")
    A("v_permlane32_swap_b32 v5, v6")
    A("v_max_f32 v5, v5, v6")
    A("v_sub_f32 v6, v4, v5")
    A("v_exp_f32 v6, v6")
    A("v_mov_b32 v4, v5")
    for i in range(16): A(f"v_mul_f32 v{OWN+i}, v{OWN+i}, v6")
    for i in range(16): A(f"v_sub_f32 v{SS+i}, v{SS+i}, v5")
    for i in range(16): A(f"v_exp_f32 v{SS+i}, v{SS+i}")
    for i in range(8): A(f"v_cvt_pk_bf16_f32 v{PB+i}, v{SS+2*i}, v{SS+2*i+1}")
    A(f"v_mfma_f32_32x32x16_bf16 {vr(OWN,16)}, {vr(VB,4)}, {vr(PB,4)}, {vr(OWN,16)}")
    A(f"v_mfma_f32_32x32x16_bf16 {vr(OWN,16)}, {vr(VB+4,4)}, {vr(PB+4,4)}, {vr(OWN,16)}")
    A("s_nop 7")
    A("s_nop 3")
    A(f"s_add_u32 s{S_IT}, s{S_IT}, 1")
    A(f"s_cmp_lt_u32 s{S_IT}, 64")
    A("s_cbranch_scc1 L_slow_loop")
    A(f"v_mov_b32 v2, v{OWN+12}")
    A(f"v_mov_b32 v9, v{OWN+12}")
    A("v_permlane32_swap_b32 v2, v9")
    A("s_branch L_ofin")

V_CW = 15
V_CT = 2
V_CT2 = 4
S_RING, S_WDB, S_WOB = 66, 67, 62
S_H0, S_H1, S_O0, S_KH, S_ORT, S_PEND, S_GET = S_KOFF, S_VOFF, S_IT, S_C0, S_KVJ, S_QRT, S_QB
CTOK = {}

def cW1(s, e):
    A(f"s_add_u32 m0, s{S_RING}, {POS[s % RING_N] + 1024*e}")
    if s < 28:
        A(f"s_add_u32 s{T6}, s{S_WDB}, {(16*s + 8*e) * 896}")
        t = A.vm(f"buffer_load_dwordx4 v{V_CW}, {srd(SRD_WD)}, s{T6} offen lds")
    else:
        hh, ks = divmod(s - 28, 2)
        A(f"s_add_u32 s{T6}, s{S_WOB}, {(28*hh + 16*ks + 8*e) * 896}")
        t = A.vm(f"buffer_load_dwordx4 v{V_CW}, {srd(SRD_WO)}, s{T6} offen lds")
    if e == 1: CTOK[("W", s)] = t

def cW(s):
    cW1(s, 0); cW1(s, 1)

def phaseC_dma_setup():
    t0, t1 = V_T, V_T + 1
    A(f"s_lshl_b32 s{S_RING}, s{S_RT}, 11")
    A(f"s_mul_i32 s{S_WDB}, s{S_RT}, {448*896}")
    A(f"s_mul_i32 s{S_WOB}, s{S_RT}, {112*896}")
    A(f"v_lshrrev_b32 v{t0}, 3, v1")
    A(f"v_mul_u32_u24 v{t0}, 896, v{t0}")
    A(f"v_bfe_u32 v{t1}, v1, 1, 2")
    A(f"v_bfe_u32 v{V_CW}, v1, 4, 1")
    A(f"v_lshlrev_b32 v{V_CW}, 1, v{V_CW}")
    A(f"v_xor_b32 v{t1}, v{t1}, v{V_CW}")
    A(f"v_lshl_add_u32 v{t0}, v{t1}, 5, v{t0}")
    A(f"v_and_b32 v{t1}, 1, v1")
    A(f"v_lshl_add_u32 v{t0}, v{t1}, 4, v{t0}")
    A(f"s_lshl_b32 s{T1}, s{S_CT}, 7")
    A(f"v_add_u32 v{V_CW}, s{T1}, v{t0}")

def lds_ref(lo, hi, addr):
    return (lo, addr) if addr < 65536 - 4096 else (hi, addr - WIN2)

CV = 24
CACC = 36
CWF = 100
CAF = 116
COW = 68
COF = 192
V_WO, V_WO2, V_HF, V_PR, V_XW, V_XR1, V_XR2, V_OUT, V_P0, V_ONE = CV, CV + 2, CV + 4, CV + 5, CV + 6, CV + 7, CV + 8, CV + 9, CV + 10, CV + 11

def phaseC_setup():
    wq = S_RT
    a, b, c = V_T, V_T + 1, V_T + 2
    A(f"s_lshr_b32 s{S_KH}, s{wq}, 1")
    A(f"s_and_b32 s{T2}, s{wq}, 1")
    A(f"s_lshl_b32 s{T1}, s{S_RB64}, 1")
    A(f"s_add_u32 s{S_ORT}, s{T1}, s{T2}")
    A(f"v_lshrrev_b32 v{a}, 5, v1")
    A(f"v_bfe_u32 v{b}, v1, 2, 2")
    A(f"v_lshl_add_u32 v{a}, v{a}, 2, v{b}")
    A(f"v_lshlrev_b32 v{a}, 7, v{a}")
    A(f"v_and_b32 v{b}, 2, v{b}")
    A(f"v_bfe_u32 v{c}, v1, 4, 1")
    A(f"v_xor_b32 v{b}, v{b}, v{c}")
    A(f"v_lshl_add_u32 v{a}, v{b}, 5, v{a}")
    A(f"v_and_b32 v{b}, 3, v1")
    A(f"v_lshl_add_u32 v{a}, v{b}, 3, v{a}")
    A(f"s_lshl_b32 s{T0}, s{S_KH}, 6")
    A(f"v_xor_b32 v{a}, s{T0}, v{a}")
    A(f"v_xor_b32 v{b}, 64, v{a}")
    A(f"v_add_u32 v{V_CT}, s{S_RING}, v{a}")
    A(f"v_add_u32 v{V_CT+1}, s{S_RING}, v{b}")
    A(f"v_add_u32 v{V_CT2}, {WIN2}, v{V_CT}")
    A(f"v_add_u32 v{V_CT2+1}, {WIN2}, v{V_CT+1}")
    A(f"s_lshl_b32 s{T0}, s{S_KH}, 12")
    A(f"v_add_u32 v{V_WO}, s{T0}, v{a}")
    A(f"v_add_u32 v{V_WO+1}, s{T0}, v{b}")
    A(f"v_add_u32 v{V_WO2}, {WIN2}, v{V_WO}")
    A(f"v_add_u32 v{V_WO2+1}, {WIN2}, v{V_WO+1}")
    A(f"s_mul_i32 s{T0}, s{wq}, 7")
    A(f"s_lshr_b32 s{T0}, s{T0}, 1")
    A(f"v_bfe_u32 v{a}, v1, 2, 2")
    A(f"v_add_u32 v{a}, s{T0}, v{a}")
    A(f"v_lshlrev_b32 v{a}, 8, v{a}")
    A(f"v_bfe_u32 v{b}, v1, 1, 1")
    A(f"v_lshl_add_u32 v{a}, v{b}, 7, v{a}")
    A(f"v_and_b32 v{b}, 1, v1")
    A(f"v_add_u32 v{b}, s{T1}, v{b}")
    A(f"v_lshl_add_u32 v{a}, v{b}, 12, v{a}")
    A(f"v_add_u32 v{a}, {WS_FH}, v{a}")
    A(f"s_lshl_b32 s{T0}, s{S_ORT}, 4")
    A(f"s_lshl_b32 s{T3}, s{S_KH}, 3")
    A(f"s_add_u32 s{T0}, s{T0}, s{T3}")
    A(f"s_lshl_b32 s{S_O0}, s{T0}, 11")
    A(f"s_add_u32 s{S_O0}, s{S_O0}, {WS_O}")
    A(f"v_and_b32 v{c}, 7, v1")
    A(f"v_add_u32 v{b}, s{T0}, v{c}")
    A(f"v_lshlrev_b32 v{b}, 7, v{b}")
    A(f"v_add_u32 v{b}, {WS_FO}, v{b}")
    A("v_cmp_le_u32 vcc, 32, v1")
    A(f"v_cndmask_b32 v{V_HF}, v{a}, v{b}, vcc")
    A(f"s_lshl_b32 s{T0}, s{S_ORT}, 12")
    A(f"s_add_u32 s{T0}, s{T0}, {WS_FH + 28*128}")
    A(f"v_mov_b32 v{b}, s{T0}")
    A("v_cmp_eq_u32 vcc, 16, v1")
    A(f"v_cndmask_b32 v{V_HF}, v{V_HF}, v{b}, vcc")
    A(f"v_lshlrev_b32 v{V_PR}, 11, v{c}")
    A(f"v_bfe_u32 v{b}, v1, 3, 1")
    A(f"v_lshl_add_u32 v{V_PR}, v{b}, 10, v{V_PR}")
    A(f"s_mul_i32 s{S_H0}, s{S_ORT}, {H_RT}")
    A(f"s_mul_i32 s{T0}, s{wq}, {28*1024}")
    A(f"s_add_u32 s{T0}, s{T0}, {WS_H}")
    A(f"s_add_u32 s{S_H0}, s{S_H0}, s{T0}")
    A(f"s_xor_b32 s{T3}, s{S_ORT}, 1")
    A(f"s_mul_i32 s{S_H1}, s{T3}, {H_RT}")
    A(f"s_add_u32 s{S_H1}, s{S_H1}, s{T0}")
    A(f"v_add_u32 v{V_XW}, s{S_RING}, v{V_L16}")
    A(f"v_xor_b32 v{V_XR1}, 0x800, v{V_XW}")
    A(f"v_xor_b32 v{V_XR2}, 0x1000, v{V_XW}")
    A(f"s_lshl_b32 s{T0}, s{S_RT}, 2")
    A(f"s_add_u32 s{T0}, s{T0}, {LDS_CNT + 16}")
    A(f"v_mov_b32 v{V_P0}, s{T0}")
    A(f"v_xor_b32 v6, 4, v{V_P0}")
    A(f"v_xor_b32 v7, 8, v{V_P0}")
    A(f"v_mov_b32 v{V_ONE}, 1")
    A(f"v_and_b32 v{a}, 31, v1")
    A(f"s_lshl_b32 s{T0}, s{S_ORT}, 5")
    A(f"v_add_u32 v{a}, s{T0}, v{a}")
    A(f"v_mul_u32_u24 v{a}, 896, v{a}")
    A(f"v_lshrrev_b32 v{b}, 5, v1")
    A(f"v_lshl_add_u32 v{V_OUT}, v{b}, 4, v{a}")
    A(f"s_lshl_b32 s{T5}, s{S_CT}, 7")
    A(f"s_lshl_b32 s{T0}, s{S_KH}, 6")
    A(f"s_add_u32 s{T5}, s{T5}, s{T0}")

def pair_set(which):
    A("s_waitcnt lgkmcnt(0)")
    A(f"ds_write_b32 v{V_P0}, v{V_ONE} offset:{16*which}")

def pair_wait(va, which, sleep, lo):
    L = newlabel("pw"); D = newlabel("pwd")
    A(f"s_mov_b32 s{S_CNT}, 0x100000")
    A.label(L)
    A(f"ds_read_b32 v8, v{va} offset:{16*which}")
    A("s_waitcnt lgkmcnt(0)")
    A("s_setprio 3")
    A(f"v_readfirstlane_b32 s{T0}, v8")
    A(f"s_setprio {lo}")
    A(f"s_cmp_lg_u32 s{T0}, 0")
    A(f"s_cbranch_scc1 {D}")
    if sleep: A(f"s_sleep {sleep}")
    A(f"s_sub_u32 s{S_CNT}, s{S_CNT}, 1")
    A(f"s_cmp_lg_u32 s{S_CNT}, 0")
    A(f"s_cbranch_scc1 {L}")
    A.label(D)

def phaseC():
    poll(V_HF, V_T, hi=True)
    stamp(4)
    A.vm_issued = 0
    for k in list(CTOK): CTOK[k] = 0
    def af(s, r): return CAF + 8 * (s % RING_N) + 4 * r
    def cA(s):
        for r in range(2):
            base = S_H0 if r == 0 else S_H1
            hi, lo = divmod(s, 4)
            if hi:
                A(f"s_add_u32 s{T7}, s{base}, {hi*4096}")
                so = T7
            else: so = base
            t = A.vm(f"buffer_load_dwordx4 {vr(af(s,r),4)}, v{V_L16}, {srd(SRD_WS)}, s{so} offen offset:{lo*1024} sc1")
        CTOK[("A", s)] = t
    A(f"s_lshl_b32 s{T0}, s{S_ORT}, 7")
    A(f"s_add_u32 s{T0}, s{T0}, {WS_G}")
    A.vm(f"buffer_load_dword v{V_G}, v{V_R4}, {srd(SRD_WS)}, s{T0} offen sc1")
    for s in range(RING_N): cA(s)
    def reads(s):
        fb = CWF + 8 * (s & 1)
        for c in range(2):
            ar, off = lds_ref(V_CT + c, V_CT2 + c, POS[s % RING_N])
            for a in range(2):
                A(f"ds_read_b64_tr_b16 {vr(fb+4*c+2*a,2)}, v{ar} offset:{off + a*1024}")
    def mf(s):
        fb = CWF + 8 * (s & 1)
        for r in range(2):
            for c in range(2):
                acc = CACC + 16 * (2 * r + c)
                cc = "0" if s == 0 else vr(acc, 16)
                A(f"v_mfma_f32_32x32x16_bf16 {vr(acc,16)}, {vr(fb+4*c,4)}, {vr(af(s,r),4)}, {cc}")
    reads(0)
    for s in range(28):
        if s == OPT["hold"]:
            L = newlabel("hold"); D = newlabel("holdd")
            A(f"v_mov_b32 v{V_T}, {LDS_CNT + 8}")
            A(f"s_mov_b32 s{S_CNT}, 0x10000")
            A.label(L)
            A(f"ds_read_b32 v{V_T+1}, v{V_T}")
            A("s_waitcnt lgkmcnt(0)")
            A(f"v_readfirstlane_b32 s{T0}, v{V_T+1}")
            A(f"s_cmp_ge_u32 s{T0}, {64*OPT['holdn']}")
            A(f"s_cbranch_scc1 {D}")
            A("s_sleep 3")
            A(f"s_sub_u32 s{S_CNT}, s{S_CNT}, 1")
            A(f"s_cmp_lg_u32 s{S_CNT}, 0")
            A(f"s_cbranch_scc1 {L}")
            A.label(D)
        if s + 1 < 28:
            A.vm_wait(max(CTOK[("W", s + 1)], CTOK[("A", s)]))
            reads(s + 1)
            A("s_waitcnt lgkmcnt(4)")
        else:
            A.vm_wait(CTOK[("A", s)], "lgkmcnt(0)")
        mf(s)
        n = s + RING_N
        if n < 36: cW(n)
        if n < 28: cA(n)
    stamp(5)
    def piece(k):
        p = (0, 1, 11, 12)[k >> 1]
        return POS[p] + 1024 * (k & 1)
    XH = V_T + 4
    A(f"s_setprio {OPT['xprio']}")
    A(f"v_add_u32 v{XH}, {WIN2}, v{V_XW}")
    A(f"v_add_u32 v{XH+1}, {WIN2}, v{V_XR1}")
    A("s_setprio 0")
    for k in range(8):
        ar, off = lds_ref(V_XW, XH, piece(k))
        A(f"ds_write_b128 v{ar}, {vr(CACC+32+4*k,4)} offset:{off}")
    A("s_waitcnt vmcnt(0)")
    pair_set(0)
    pair_wait(6, 0, 2, 0)
    OF = 196
    RX = 220
    for k in range(8):
        ar, off = lds_ref(V_XR1, XH + 1, piece(k))
        A(f"ds_read_b128 {vr(RX+4*k,4)}, v{ar} offset:{off}")
    for k in range(8):
        for ks in range(2):
            for c in range(2):
                ar, off = lds_ref(V_WO + c, V_WO2 + c, POS[(28 + 2 * (k & 3) + ks) % RING_N])
                for a in range(2):
                    A(f"ds_read_b64_tr_b16 {vr(COW+16*k+8*ks+4*c+2*a,2)}, v{ar} offset:{off + (k >> 2)*2048 + a*1024}")
    pair_set(1)
    A(f"s_setprio {OPT['xprio']}")
    A(f"v_sub_f32 v{V_G}, 1.0, v{V_G}")
    for i in range(32): A(f"v_add_f32 v{CACC+i}, v{CACC+i}, v{RX+i}")
    for i in range(32): A(f"v_mul_f32 v{CACC+i}, v{CACC+i}, v{V_G}")
    A("s_setprio 0")
    pair_wait(6, 1, 2, OPT["rprio"])
    def of(k, ks):
        if k < 7: return OF + 8 * k + 4 * ks
        return 252 if ks == 0 else 8
    stamp(6)
    A(f"s_movk_i32 s{S_PEND}, 0xff")
    A(f"s_mov_b32 s{S_NEXT}, 0")
    A(f"s_mov_b32 s{S_GET}, 0")
    if OPT["owait"]:
        L = newlabel("ow"); D = newlabel("owd")
        A("s_setprio 0")
        A(f"s_mov_b32 s{S_CNT}, 0x8000")
        A(f"v_mov_b32 v{V_T}, {LDS_CNT + 12}")
        A.label(L)
        A(f"ds_read_b32 v{V_T+1}, v{V_T}")
        A("s_waitcnt lgkmcnt(0)")
        A(f"v_readfirstlane_b32 s{T0}, v{V_T+1}")
        A(f"s_cmp_ge_u32 s{T0}, 4")
        A(f"s_cbranch_scc1 {D}")
        A("s_sleep 1")
        A(f"s_sub_u32 s{S_CNT}, s{S_CNT}, 1")
        A(f"s_cmp_lg_u32 s{S_CNT}, 0")
        A(f"s_cbranch_scc1 {L}")
        A.label(D)
        A(f"s_movk_i32 s{S_GET}, 0xff")
        stamp(9)
    A(f"s_mov_b32 s{S_CNT}, 0x8000")
    A.label("L_oround")
    if OPT["direct"] < 8: A(f"buffer_load_dword v{V_T+2}, v{V_PR}, {srd(SRD_WS)}, s{S_O0} offen offset:1008 sc1")
    A(f"s_cmp_eq_u32 s{S_GET}, 0")
    A("s_cbranch_scc1 L_oprobe")
    for k in range(8):
        sk = newlabel("ol")
        A(f"s_bitcmp1_b32 s{S_GET}, {k}")
        A(f"s_cbranch_scc0 {sk}")
        A(f"s_add_u32 s{T7}, s{S_O0}, {k*2048}")
        for ks in range(2):
            A(f"buffer_load_dwordx4 {vr(of(k,ks),4)}, v{V_L16}, {srd(SRD_WS)}, s{T7} offen offset:{ks*1024} sc1")
        A.label(sk)
    A("s_waitcnt vmcnt(0)")
    for k in range(8):
        sk = newlabel("om")
        o0, o1 = of(k, 0), of(k, 1)
        A(f"s_bitcmp1_b32 s{S_GET}, {k}")
        A(f"s_cbranch_scc0 {sk}")
        A(f"v_max3_u32 v{V_T}, v{o0}, v{o0+1}, v{o0+2}")
        A(f"v_max3_u32 v{V_T+1}, v{o0+3}, v{o1}, v{o1+1}")
        A(f"v_max3_u32 v{V_T}, v{V_T}, v{o1+2}, v{o1+3}")
        A(f"v_max_u32 v{V_T}, v{V_T}, v{V_T+1}")
        A(f"v_cmp_eq_u32 vcc, -1, v{V_T}")
        A(f"s_cbranch_vccnz {sk}")
        A(f"s_bitset0_b32 s{S_PEND}, {k}")
        A.label(sk)
        sk = newlabel("oa")
        A(f"s_cmp_lg_u32 s{S_NEXT}, {k}")
        A(f"s_cbranch_scc1 {sk}")
        A(f"s_bitcmp1_b32 s{S_PEND}, {k}")
        A(f"s_cbranch_scc1 {sk}")
        for ks in range(2):
            for c in (1, 0):
                acc = CACC + 16 * c
                A(f"v_mfma_f32_32x32x16_bf16 {vr(acc,16)}, {vr(COW+16*k+8*ks+4*c,4)}, {vr(of(k,ks),4)}, {vr(acc,16)}")
        A(f"s_mov_b32 s{S_NEXT}, {k+1}")
        A.label(sk)
    A(f"s_cmp_eq_u32 s{S_PEND}, 0")
    A("s_cbranch_scc1 L_odone")
    A.label("L_oprobe")
    A("s_waitcnt vmcnt(0)")
    A("s_setprio 3")
    A(f"v_cmp_ne_u32 vcc, -1, v{V_T+2}")
    A(f"s_setprio {OPT['rprio']}")
    A(f"s_lshr_b32 s{T0}, vcc_lo, 8")
    A(f"s_and_b32 s{T0}, s{T0}, vcc_lo")
    A(f"s_bcnt1_i32_b32 s{T1}, s{S_PEND}")
    A(f"s_cmp_le_u32 s{T1}, {OPT['direct']}")
    A(f"s_cselect_b32 s{T0}, -1, s{T0}")
    A(f"s_and_b32 s{S_GET}, s{T0}, s{S_PEND}")
    A("s_cbranch_scc1 L_onext")
    A("s_sleep 2")
    A.label("L_onext")
    A(f"s_sub_u32 s{S_CNT}, s{S_CNT}, 1")
    A(f"s_cmp_lg_u32 s{S_CNT}, 0")
    A("s_cbranch_scc1 L_oround")
    A.label("L_odone")
    stamp(8)
    A("s_nop 7")
    A("s_nop 1")
    for q in range(4):
        A(f"ds_write_b128 v{V_XW}, {vr(CACC+16+4*q,4)} offset:{piece(q)}")
    pair_set(2)
    A("s_nop 3")
    pair_wait(7, 2, 0, 3)
    for q in range(4):
        A(f"ds_read_b128 {vr(COW+4*q,4)}, v{V_XR2} offset:{piece(q)}")
    P = CACC + 16
    for q in range(4):
        A(f"s_waitcnt lgkmcnt({3-q})")
        for i in range(4): A(f"v_add_f32 v{CACC+4*q+i}, v{CACC+4*q+i}, v{COW+4*q+i}")
        for i in range(2): A(f"v_cvt_pk_bf16_f32 v{P+2*q+i}, v{CACC+4*q+2*i}, v{CACC+4*q+2*i+1}")
    for a, b in ((0, 2), (1, 3), (4, 6), (5, 7)):
        A(f"v_permlane32_swap_b32 v{P+a}, v{P+b}")
    A(f"buffer_store_dwordx4 {vr(P,4)}, v{V_OUT}, {srd(SRD_OUT)}, s{T5} offen {OPT['osc']}")
    A(f"buffer_store_dwordx4 {vr(P+4,4)}, v{V_OUT}, {srd(SRD_OUT)}, s{T5} offen offset:32 {OPT['osc']}")
    stamp(7)
    prof_dump(2)
    A("s_endpgm")

def main():
    prologue()
    x_dma_setup()
    A(f"s_cmp_lt_u32 s{S_SLOT}, 4")
    A("s_cbranch_scc1 L_v")
    reg_dma_setup()
    st = Stream(R_ITEMS, r_first, r_last, r_issue, lambda it: max(OPT["lead"], it[1] - 7))
    st.dma(4, force=True)
    reg_dma_setup2()
    st.dma(2 * OPT["pre1"] - 4, force=True)
    if OPT["gtouch"]: global_touch()
    A("s_barrier")
    st.dma(2 * (OPT["pre2"] - OPT["pre1"]), force=True)
    prologue2()
    stamp2(1)
    reg_readbases()
    reg_common(st)
    sn = snapshot(st)
    A(f"s_cmp_ge_u32 s{S_W}, 4")
    A("s_cbranch_scc1 L_G")
    roleA_tail(st)
    attention()
    A.label("L_G")
    restore(st, sn)
    roleG_tail(st)
    phaseC()
    A.label("L_v")
    v_path()
    attention_slow()
    A.label("L_end")
    body = A.finalize()
    hdr = open(f"cdna_kernels/{NAME}.s.ref").read().split("; Override launch")[0]
    text = hdr + f"""; @launch grid=(256,1,1) block=(512,1,1) lds={LDS_BYTES}
.amdgcn_target "amdgcn-amd-amdhsa--gfx950"
.text
.globl {NAME}_kernel
.p2align 8
.type {NAME}_kernel,@function
{NAME}_kernel:
{body}    s_endpgm
L_codeend:
.section .rodata,"a"
.p2align 6
.amdhsa_kernel {NAME}_kernel
  .amdhsa_next_free_vgpr 256
  .amdhsa_next_free_sgpr 102
  .amdhsa_accum_offset 256
  .amdhsa_group_segment_fixed_size 0
  .amdhsa_kernarg_size 88
  .amdhsa_user_sgpr_count 2
  .amdhsa_user_sgpr_kernarg_segment_ptr 1
  .amdhsa_system_sgpr_workgroup_id_x 1
.end_amdhsa_kernel
"""
    open(OUT, "w").write(text)
    print("wrote", OUT, len(text), "bytes,", len(A.ins), "instructions")

main()
```
